```python
import torch

def _softmax(x, axis=-1):
    return torch.softmax(x, dim=axis)
def _gelu(x):
    return torch.nn.functional.gelu(x, approximate="tanh")
def _silu(x):
    return torch.nn.functional.silu(x)
def _sigmoid(x):
    return torch.sigmoid(x)
def _layernorm(x, axis=-1, eps=1e-5):
    m = x.mean(dim=axis, keepdim=True)
    v = x.var(dim=axis, keepdim=True, unbiased=False)
    return (x - m) / torch.sqrt(v + eps)
def _scatter_add(tgt, idx, src, axis=0):
    return tgt.clone().index_add_(axis, idx, src)
def _segment_sum(src, seg, n):
    out = torch.zeros((n,) + src.shape[1:], dtype=src.dtype)
    return out.index_add_(0, seg, src)
def _pad(x, pw):
    flat = tuple(v for pair in reversed(pw) for v in pair)
    return torch.nn.functional.pad(x, flat)

kernel_name = 'parallel_sum__mha_block_cached__glu_gated_swiglu__decode'

def setup_inputs():

    _w = (lambda a: (lambda t: t.to(torch.bfloat16) if t.is_floating_point() else t)(torch.as_tensor(a)))
    def _A_setup():
        B, Sq, D = 2, 1, 512
        H, Sk, Dh = 32, 16384, 128
        return {
            "x": _w((lambda *s: torch.randn(*s, dtype=torch.bfloat16) * 0.05)(B, Sq, D)),
            "k_cache": _w((lambda *s: torch.randn(*s, dtype=torch.bfloat16) * 1.6)(B, H, Sk, Dh)),
            "v_cache": _w((lambda *s: torch.randn(*s, dtype=torch.bfloat16) * 0.8)(B, H, Sk, Dh)),
            "wq": _w((lambda *s: torch.randn(*s, dtype=torch.bfloat16) * 1.6)(D, H * Dh) * (D ** -0.5)),
            "wo": _w((lambda *s: torch.randn(*s, dtype=torch.bfloat16) * 0.8)(H * Dh, D) * ((H * Dh) ** -0.5)),
        }
    _A_in = _A_setup()

    def _B_setup():
        B, S, D, F = 2, 1, 512, 1792
        return {
            "x": _w((lambda *s: torch.randn(*s, dtype=torch.bfloat16) * 0.05)(B, S, D)),
            "w1": _w((lambda *s: torch.randn(*s, dtype=torch.bfloat16) * 0.4)(D, F) * (2.0 / D) ** 0.5),
            "w3": _w((lambda *s: torch.randn(*s, dtype=torch.bfloat16) * 0.4)(D, F) * (2.0 / D) ** 0.5),
            "w2": _w((lambda *s: torch.randn(*s, dtype=torch.bfloat16) * 0.4)(F, D) * (2.0 / F) ** 0.5),
        }
    _B_in = _B_setup()

    return {
        "A_x": _A_in["x"],
        "A_k_cache": _A_in["k_cache"],
        "A_v_cache": _A_in["v_cache"],
        "A_wq": _A_in["wq"],
        "A_wo": _A_in["wo"],
        "B_x": _B_in["x"],
        "B_w1": _B_in["w1"],
        "B_w3": _B_in["w3"],
        "B_w2": _B_in["w2"],
    }

def reference(A_x, A_k_cache, A_v_cache, A_wq, A_wo, B_x, B_w1, B_w3, B_w2):
    def _A_ref(x, k_cache, v_cache, wq, wo):
        B, Sq, D = x.shape
        H, Dh = 32, 128
        q = (lambda x, *d: x.permute(*d))((x @ wq).reshape(B, Sq, H, Dh), 0, 2, 1, 3)
        scores = torch.einsum("bhqd,bhkd->bhqk", q, k_cache) * (Dh ** -0.5)
        p = _softmax(scores, axis=-1)
        o = torch.einsum("bhqk,bhkd->bhqd", p, v_cache)
        return (lambda x, *d: x.permute(*d))(o, 0, 2, 1, 3).reshape(B, Sq, H * Dh) @ wo

    def _B_ref(x, w1, w3, w2):
        gate = torch.einsum("bsd,df->bsf", x, w1)
        up = torch.einsum("bsd,df->bsf", x, w3)
        h = _silu(gate) * up
        out = torch.einsum("bsf,fd->bsd", h, w2)
        return out

    x = A_x
    xn = _layernorm(x, axis=-1)
    return x + _A_ref(xn, A_k_cache, A_v_cache, A_wq, A_wo) + _B_ref(xn, B_w1, B_w3, B_w2)
```

```python
import sys, os, math

NAME = "parallel_sum__mha_block_cached__glu_gated_swiglu__decode_kernel"

HEADER = """; Kernarg layout for this problem (96 bytes, ptrs only, base s[0:1]):
"""

class P:
    d = 5
    dA = 5
    NS = 32
    kvflags = "nt"
    wflags = ""
    stamps = False

class Asm:
    def __init__(self):
        self.L = []
    def __call__(self, s):
        self.L.append("    " + s)
    def label(self, s):
        self.L.append(s + ":")
    def c(self, s):
        self.L.append("    ; " + s)
    def text(self):
        return "\n".join(self.L) + "\n"

def vr(b, n=4):
    return f"v[{b}:{b+n-1}]"
def sr(b, n=2):
    return f"s[{b}:{b+n-1}]"

RS = 1040
L_ST = 0
L_XP = 16640
L_QP = L_XP + 8192
L_ML = L_QP + 2048
L_OA = L_ML + 128
L_HP = L_OA + 2048
L_END = L_HP + 1536
LDS_BYTES = (L_END + 255) // 256 * 256

W_ACC = 0
NREP = 8
W_CNT = 32768
NCNT = 16
W_ML = 65536
ZERO_BYTES = 32768 + 4096

SCALE = (128 ** -0.5) * math.log2(math.e)

def f32bits(x):
    import struct
    return struct.unpack("<I", struct.pack("<f", x))[0]

def gen(p=P):
    a = Asm()
    d = p.d
    NS = p.NS
    sX, sK, sV, sWQ, sWO, sW1, sW3, sW2, sOUT, sDBG, sWS = 8, 10, 12, 14, 16, 20, 22, 24, 26, 28, 30
    sH, sB, sC, sBH = 32, 33, 34, 35
    SRD_K, SRD_V, SRD_W, SRD_W2 = 36, 40, 44, 48
    sPAR = 52
    sHL = 54
    sM0 = 56
    sCUR, sNXT, sCNT = 64, 65, 66
    sT0 = 68
    sFIRST = 80
    sWV = 3

    a.label(NAME)
    a(f"s_cmp_ge_u32 s2, 256")
    a(f"s_cbranch_scc1 L_end")
    a(f"s_load_dwordx16 s[8:23], s[0:1], 0")
    a(f"s_load_dwordx8 s[24:31], s[0:1], 64")
    a(f"v_lshrrev_b32 v1, 6, v0")
    a(f"v_and_b32 v0, 63, v0")
    a(f"v_readfirstlane_b32 s{sWV}, v1")
    a(f"s_and_b32 s{sH}, s2, 31")
    a(f"s_bfe_u32 s{sB}, s2, 0x10005")
    a(f"s_lshr_b32 s{sC}, s2, 6")
    a(f"s_lshl_b32 s{sBH}, s{sB}, 5")
    a(f"s_add_u32 s{sBH}, s{sBH}, s{sH}")
    a(f"v_and_b32 v2, 15, v0")
    a(f"v_lshrrev_b32 v3, 4, v0")
    a(f"s_cmp_ge_u32 s{sWV}, 4")
    a(f"s_cbranch_scc1 L_helper")

    vKO0, vKO1, vVO0, vVO1 = 4, 5, 6, 7
    vSA = 8
    vSR = 9
    vMR, vL = 10, 11
    vX0, vX1, vMN, vA, vE0, vE1 = 12, 13, 14, 15, 16, 17
    vD = 20
    vD2 = 24
    vSEL = 28
    vBT = 32
    vS0 = 36
    vS1 = 44
    vP = 52
    vMW = 56
    vBQ = 60
    vT = 92
    vSL = 128

    a(f"v_lshrrev_b32 v{vT}, 1, v2")
    a(f"v_and_b32 v{vT+1}, 1, v2")
    a(f"v_lshlrev_b32 v{vT}, 8, v{vT}")
    a(f"v_lshlrev_b32 v{vT+1}, 6, v{vT+1}")
    a(f"v_lshlrev_b32 v{vT+2}, 4, v3")
    a(f"v_add3_u32 v{vKO0}, v{vT}, v{vT+1}, v{vT+2}")
    a(f"s_lshl_b32 s{sT0}, s{sWV}, 13")
    a(f"v_add_u32 v{vKO0}, s{sT0}, v{vKO0}")
    a(f"v_add_u32 v{vKO1}, 0x1000, v{vKO0}")
    a(f"s_waitcnt lgkmcnt(0)")
    a(f"s_lshl_b32 s{sT0+1}, s{sBH}, 2")
    a(f"s_add_u32 s{sT0+1}, s{sT0+1}, s{sC}")
    a(f"s_lshl_b32 s{sT0+1}, s{sT0+1}, 20")
    a(f"s_add_u32 s{SRD_K}, s{sK}, s{sT0+1}")
    a(f"s_addc_u32 s{SRD_K+1}, s{sK+1}, 0")
    a(f"s_mov_b32 s{SRD_K+2}, 0x100000")
    a(f"s_mov_b32 s{SRD_K+3}, 0x00020000")
    a(f"s_add_u32 s{SRD_V}, s{sV}, s{sT0+1}")
    a(f"s_addc_u32 s{SRD_V+1}, s{sV+1}, 0")
    a(f"s_mov_b32 s{SRD_V+2}, 0x100000")
    a(f"s_mov_b32 s{SRD_V+3}, 0x00020000")

    def slot(i):
        return vSL + 4 * (i if i < NS else (i % 8))
    def kload(i, soff):
        ii = i & 7
        m, j = ii >> 1, ii & 1
        vo = vKO1 if m >= 2 else vKO0
        imm = (m & 1) * 2048 + j * 128
        a(f"buffer_load_dwordx4 {vr(slot(i))}, v{vo}, {sr(SRD_K,4)}, {soff} offen offset:{imm} {p.kvflags}")
    def vload(i, soff, slot_i):
        ii = i & 7
        vo = vVO1 if ii >= 4 else vVO0
        imm = (ii & 3) * 1024
        a(f"buffer_load_dwordx4 {vr(vSL + 4*slot_i)}, v{vo}, {sr(SRD_V,4)}, {soff} offen offset:{imm} {p.kvflags}")

    ngA = NS // 8
    for t in range(1, ngA + 1):
        a(f"s_mov_b32 s{sT0+2+t}, {t*32768}")
    def soffA(t):
        return "0" if t == 0 else f"s{sT0+2+t}"
    for i in range(NS):
        if i >= p.dA:
            a(f"s_waitcnt vmcnt({p.dA-1})")
        kload(i, soffA(i >> 3))
        if i == p.dA - 1:
            a(f"v_lshlrev_b32 v{vVO0}, 4, v0")
            a(f"s_lshl_b32 s{sT0}, s{sWV}, 13")
            a(f"v_add_u32 v{vVO0}, s{sT0}, v{vVO0}")
            a(f"v_add_u32 v{vVO1}, 0x1000, v{vVO0}")
            a(f"s_mov_b32 s{sPAR}, 0xaaaaaaaa"); a(f"s_mov_b32 s{sPAR+1}, 0xaaaaaaaa")
            a(f"s_mov_b32 s{sHL}, 0xcccccccc"); a(f"s_mov_b32 s{sHL+1}, 0xcccccccc")
            for m in range(4):
                mk = 0x000f000f << (4 * m)
                a(f"s_mov_b32 s{sM0+2*m}, {mk:#x}"); a(f"s_mov_b32 s{sM0+2*m+1}, {mk:#x}")
            a(f"s_mul_i32 s{sT0}, s{sWV}, {4*RS}")
            a(f"v_and_b32 v{vT}, 1, v3")
            a(f"v_mul_u32_u24 v{vT}, {2*RS}, v{vT}")
            a(f"v_lshrrev_b32 v{vT+1}, 2, v2")
            a(f"v_lshlrev_b32 v{vT+1}, 3, v{vT+1}")
            a(f"v_lshrrev_b32 v{vT+2}, 1, v3")
            a(f"v_lshlrev_b32 v{vT+2}, 2, v{vT+2}")
            a(f"v_add3_u32 v{vSA}, v{vT}, v{vT+1}, v{vT+2}")
            a(f"v_add_u32 v{vSA}, s{sT0}, v{vSA}")
            if L_ST: a(f"v_add_u32 v{vSA}, {L_ST}, v{vSA}")
            a(f"v_mul_u32_u24 v{vSR}, {RS}, v3")
            a(f"v_add_u32 v{vSR}, s{sT0}, v{vSR}")
            if L_ST: a(f"v_add_u32 v{vSR}, {L_ST}, v{vSR}")
            a(f"v_mov_b32 v{vMR}, 0xff7fffff")
            a(f"v_mov_b32 v{vL}, 0")
            emit_selectors(a, vSEL, vT)
    a("s_barrier")
    a(f"v_and_b32 v{vT}, 1, v2")
    a(f"v_lshlrev_b32 v{vT}, 7, v{vT}")
    a(f"v_lshlrev_b32 v{vT+1}, 5, v3")
    a(f"v_add_u32 v{vT}, v{vT}, v{vT+1}")
    a(f"v_add_u32 v{vT}, {L_QP}, v{vT}")
    qa = vT + 4
    qb = vT + 20
    for hw in range(4):
        dst = qa if hw == 0 else qb
        for j in range(2):
            for hf in range(2):
                a(f"ds_read_b128 {vr(dst + 8*j + 4*hf)}, v{vT} offset:{hw*512 + j*256 + hf*16}")
        if hw > 0:
            a("s_waitcnt lgkmcnt(0)")
            for e in range(16):
                a(f"v_add_f32 v{qa+e}, v{qa+e}, v{qb+e}")
    a(f"s_mov_b32 s{sT0}, {f32bits(SCALE):#x}")
    for e in range(16):
        a(f"v_mul_f32 v{qa+e}, s{sT0}, v{qa+e}")
    for j in range(2):
        for r in range(4):
            q0, q1 = qa + 8*j + 2*r, qa + 8*j + 2*r + 1
            H, h0, h1, Lp = qb, qb+1, qb+2, qb+3
            a(f"v_cvt_pk_bf16_f32 v{H}, v{q0}, v{q1}")
            a(f"v_lshlrev_b32 v{h0}, 16, v{H}")
            a(f"v_and_b32 v{h1}, 0xffff0000, v{H}")
            a(f"v_sub_f32 v{h0}, v{q0}, v{h0}")
            a(f"v_sub_f32 v{h1}, v{q1}, v{h1}")
            a(f"v_cvt_pk_bf16_f32 v{Lp}, v{h0}, v{h1}")
            a(f"v_cndmask_b32 v{qb+4}, v{H}, v{Lp}, {sr(sHL)}")
            for m in range(4):
                a(f"v_cndmask_b32 v{vBQ + (m*2+j)*4 + r}, 0, v{qb+4}, {sr(sM0+2*m)}")

    def kconsume(i):
        ii = i & 7
        m, j = ii >> 1, ii & 1
        b = vBQ + (m*2+j)*4
        c = "0" if ii == 0 else vr(vD)
        a(f"v_mfma_f32_16x16x32_bf16 {vr(vD)}, {vr(slot(i))}, {vr(b)}, {c}")
    def kpost():
        a("s_nop 7")
        a(f"v_cndmask_b32 v{vX0}, v{vD}, v{vD+1}, {sr(sPAR)}")
        a(f"v_cndmask_b32 v{vX1}, v{vD+2}, v{vD+3}, {sr(sPAR)}")
        a("s_nop 1")
        a(f"v_add_f32_dpp v{vX0}, v{vX0}, v{vX0} quad_perm:[1,0,3,2] row_mask:0xf bank_mask:0xf")
        a(f"v_add_f32_dpp v{vX1}, v{vX1}, v{vX1} quad_perm:[1,0,3,2] row_mask:0xf bank_mask:0xf")
        a("s_nop 1")
        a(f"v_add_f32_dpp v{vX0}, v{vX0}, v{vX0} quad_perm:[2,3,0,1] row_mask:0xf bank_mask:0xf")
        a(f"v_add_f32_dpp v{vX1}, v{vX1}, v{vX1} quad_perm:[2,3,0,1] row_mask:0xf bank_mask:0xf")
        a(f"v_max3_f32 v{vMN}, v{vMR}, v{vX0}, v{vX1}")
        a(f"ds_write_b32 v{vSA}, v{vX0}")
        a(f"ds_write_b32 v{vSA}, v{vX1} offset:{RS}")
        a(f"v_sub_f32 v{vA}, v{vMR}, v{vMN}")
        a(f"v_sub_f32 v{vE0}, v{vX0}, v{vMN}")
        a(f"v_sub_f32 v{vE1}, v{vX1}, v{vMN}")
        a(f"v_exp_f32 v{vA}, v{vA}")
        a(f"v_exp_f32 v{vE0}, v{vE0}")
        a(f"v_exp_f32 v{vE1}, v{vE1}")
        a(f"v_mov_b32 v{vMR}, v{vMN}")
        a(f"v_add_u32 v{vSA}, 32, v{vSA}")
        a(f"v_fma_f32 v{vL}, v{vL}, v{vA}, v{vE0}")
        a(f"v_add_f32 v{vL}, v{vL}, v{vE1}")

    issue_after = {}
    for k in range(d):
        pos = max(k, (k * NS) // d + 2)
        pos = min(pos, NS - 1)
        issue_after.setdefault(pos, []).append(NS + k)
    issued = NS
    for i in range(NS):
        outstanding_after = issued - 1 - i
        if outstanding_after < p.dA + d:
            a(f"s_waitcnt vmcnt({min(outstanding_after,63)})")
        kconsume(i)
        if (i & 7) == 7:
            kpost()
        for n in issue_after.get(i, []):
            a(f"s_waitcnt vmcnt({d-1})")
            kload(n, soffA(n >> 3))
            issued += 1
    a(f"s_mov_b32 s{sCUR}, {ngA*32768}")
    a(f"s_mov_b32 s{sNXT}, {(ngA+1)*32768}")
    a.label("L_kloop")
    for ii in range(8):
        a(f"s_waitcnt vmcnt({d-1})")
        n = ii + d
        kload(NS + (n & 7) + 8, f"s{sCUR}" if n < 8 else f"s{sNXT}")
        kconsume(NS + ii)
    kpost()
    a(f"s_mov_b32 s{sCUR}, s{sNXT}")
    a(f"s_add_u32 s{sNXT}, s{sNXT}, 32768")
    a(f"s_cmp_lt_u32 s{sCUR}, {31*32768}")
    a(f"s_cbranch_scc1 L_kloop")
    for ii in range(8):
        a(f"s_waitcnt vmcnt({d-1})")
        n = ii + d
        if n < 8:
            kload(NS + n, f"s{sCUR}")
        else:
            vload(n & 7, "0", n & 7)
        kconsume(NS + ii)
    kpost()
    a("s_nop 1")
    a(f"v_max_f32_dpp v{vMN}, v{vMR}, v{vMR} row_half_mirror row_mask:0xf bank_mask:0xf")
    a("s_nop 1")
    a(f"v_max_f32_dpp v{vMN}, v{vMN}, v{vMN} row_mirror row_mask:0xf bank_mask:0xf")
    a("s_nop 1")
    for k in range(4):
        a(f"v_readlane_b32 s{sT0+k}, v{vMN}, {16*k}")
    a("s_nop 1")
    a(f"v_mov_b32 v{vMW}, s{sT0}")
    a(f"v_max_f32 v{vMW}, s{sT0+1}, v{vMW}")
    a(f"v_max_f32 v{vMW}, s{sT0+2}, v{vMW}")
    a(f"v_max_f32 v{vMW}, s{sT0+3}, v{vMW}")
    a(f"v_sub_f32 v{vA}, v{vMR}, v{vMW}")
    a(f"v_exp_f32 v{vA}, v{vA}")
    a("s_nop 0")
    a(f"v_mul_f32 v{vL}, v{vL}, v{vA}")
    a("s_nop 1")
    a(f"v_add_f32_dpp v{vL}, v{vL}, v{vL} row_half_mirror row_mask:0xf bank_mask:0xf")
    a("s_nop 1")
    a(f"v_add_f32_dpp v{vL}, v{vL}, v{vL} row_mirror row_mask:0xf bank_mask:0xf")
    a("s_nop 1")
    for k in range(4):
        a(f"v_readlane_b32 s{sT0+k}, v{vL}, {16*k}")
    a("s_nop 1")
    a(f"v_mov_b32 v{vL}, s{sT0}")
    a(f"v_add_f32 v{vL}, s{sT0+1}, v{vL}")
    a(f"v_add_f32 v{vL}, s{sT0+2}, v{vL}")
    a(f"v_add_f32 v{vL}, s{sT0+3}, v{vL}")
    a(f"s_lshl_b32 s{sT0}, s{sWV}, 3")
    a(f"v_mov_b32 v{vT}, s{sT0}")
    a(f"v_mov_b32 v{vT+2}, v{vMW}")
    a(f"v_mov_b32 v{vT+3}, v{vL}")
    a(f"ds_write_b64 v{vT}, v[{vT+2}:{vT+3}] offset:{L_ML}")
    a(f"s_lshl_b32 s{sT0}, s{sWV}, 2")
    a(f"v_mov_b32 v{vT+1}, s{sT0}")
    a(f"v_mov_b32 v{vT+4}, 1")
    a("s_waitcnt lgkmcnt(0)")
    a(f"ds_write_b32 v{vT+1}, v{vT+4} offset:{L_ML+32}")
    for r in range(4):
        a(f"v_mov_b32 v{vD+r}, 0")
        a(f"v_mov_b32 v{vD2+r}, 0")
    a(f"ds_read_b128 {vr(vS0)}, v{vSR}")
    a(f"ds_read_b128 {vr(vS0+4)}, v{vSR} offset:16")
    a(f"v_add_u32 v{vSR}, 32, v{vSR}")
    def vconsume(ii, S):
        t, hi, lo, Pk = vP, vP+1, vP+2, vP+3
        a(f"v_sub_f32 v{t}, v{S+ii}, v{vMW}")
        a(f"v_exp_f32 v{t}, v{t}")
        a("s_nop 0")
        a(f"v_and_b32 v{hi}, 0xffff0000, v{t}")
        a(f"v_sub_f32 v{lo}, v{t}, v{hi}")
        a(f"v_cvt_pk_bf16_f32 v{Pk}, v{hi}, v{lo}")
        for r in range(4):
            a(f"v_perm_b32 v{vBT+r}, v{Pk}, v{Pk}, v{vSEL+r}")
        a("s_nop 1")
        D = vD if (ii & 1) == 0 else vD2
        a(f"v_mfma_f32_16x16x32_bf16 {vr(D)}, {vr(vSL+4*ii)}, {vr(vBT)}, {vr(D)}")
    def vgroup(last, S, Sn):
        a("s_waitcnt lgkmcnt(0)")
        if not last:
            a(f"ds_read_b128 {vr(Sn)}, v{vSR}")
            a(f"ds_read_b128 {vr(Sn+4)}, v{vSR} offset:16")
            a(f"v_add_u32 v{vSR}, 32, v{vSR}")
        for ii in range(8):
            n = ii + d
            if last:
                a(f"s_waitcnt vmcnt({min(d-1, 7-ii)})")
                if n < 8:
                    vload(n, f"s{sCUR}", n)
            else:
                a(f"s_waitcnt vmcnt({d-1})")
                vload(n & 7, f"s{sCUR}" if n < 8 else f"s{sNXT}", n & 7)
            vconsume(ii, S)
    a(f"s_mov_b32 s{sCUR}, 0")
    a(f"s_mov_b32 s{sNXT}, 32768")
    a.label("L_vloop")
    for half in range(2):
        vgroup(False, vS0 if half == 0 else vS1, vS1 if half == 0 else vS0)
        a(f"s_mov_b32 s{sCUR}, s{sNXT}")
        a(f"s_add_u32 s{sNXT}, s{sNXT}, 32768")
    a(f"s_cmp_lt_u32 s{sCUR}, {30*32768}")
    a(f"s_cbranch_scc1 L_vloop")
    vgroup(False, vS0, vS1)
    a(f"s_mov_b32 s{sCUR}, s{sNXT}")
    a("s_waitcnt lgkmcnt(0)")
    for ii in range(8):
        n = ii + d
        issued_before = min(ii + d, 8)
        a(f"s_waitcnt vmcnt({issued_before - 1 - ii})")
        if n < 8:
            vload(n, f"s{sCUR}", n)
        vconsume(ii, vS1)
    a("s_nop 7")
    for r in range(4):
        a(f"v_add_f32 v{vD+r}, v{vD+r}, v{vD2+r}")
    a("s_nop 1")
    for r in range(4):
        a(f"v_add_f32_dpp v{vD+r}, v{vD+r}, v{vD+r} row_ror:8 row_mask:0xf bank_mask:0xf")
    a(f"v_and_b32 v{vT}, 7, v2")
    a(f"v_lshlrev_b32 v{vT}, 2, v{vT}")
    a(f"v_lshlrev_b32 v{vT+1}, 7, v3")
    a(f"v_add_u32 v{vT}, v{vT}, v{vT+1}")
    a(f"s_lshl_b32 s{sT0}, s{sWV}, 9")
    a(f"v_add_u32 v{vT}, s{sT0}, v{vT}")
    for r in range(4):
        a(f"ds_write_b32 v{vT}, v{vD+r} offset:{L_OA + r*32}")
    a("s_waitcnt lgkmcnt(0)")
    a("s_barrier")
    a("s_endpgm")

    a.label("L_helper")
    sHW = 67
    hSEL = 4
    hB = 8
    hD = 12
    hP = 16
    hT = 48
    hVO = 96
    hVO2 = 97
    hW = 128
    a(f"s_sub_u32 s{sHW}, s{sWV}, 4")
    a(f"v_lshlrev_b32 v{hT}, 4, v0")
    a("s_waitcnt lgkmcnt(0)")
    a(f"s_lshl_b32 s{sT0}, s{sB}, 10")
    a(f"s_add_u32 s{sT0+2}, s{sX}, s{sT0}")
    a(f"s_addc_u32 s{sT0+3}, s{sX+1}, 0")
    a(f"global_load_dwordx4 {vr(hT+4)}, v{hT}, {sr(sT0+2)}")
    a(f"s_mov_b32 s{SRD_W}, s{sWQ}"); a(f"s_mov_b32 s{SRD_W+1}, s{sWQ+1}")
    a(f"s_mov_b32 s{SRD_W+2}, 0x400000"); a(f"s_mov_b32 s{SRD_W+3}, 0x00020000")
    a(f"v_lshlrev_b32 v{hVO}, 18, v3")
    a(f"v_lshlrev_b32 v{hT+1}, 4, v2")
    a(f"v_add_u32 v{hVO}, v{hVO}, v{hT+1}")
    a(f"s_lshl_b32 s{sT0}, s{sHW}, 20")
    a(f"s_lshl_b32 s{sT0+1}, s{sH}, 8")
    a(f"s_add_u32 s{sT0}, s{sT0}, s{sT0+1}")
    for n in range(32):
        a(f"buffer_load_dwordx4 {vr(hW+4*n)}, v{hVO}, {sr(SRD_W,4)}, s{sT0} offen {p.wflags}")
        if n < 31:
            a(f"s_add_u32 s{sT0}, s{sT0}, 8192")
    emit_selectors(a, hSEL, hT+8)
    a(f"s_mov_b32 s{sFIRST}, 0")
    a(f"s_cmp_lg_u32 s{sHW}, 0")
    a(f"s_cbranch_scc1 L_h_noclr")
    a(f"v_mov_b32 v{hT+8}, 0")
    a(f"v_lshlrev_b32 v{hT+9}, 2, v0")
    a(f"ds_write_b32 v{hT+9}, v{hT+8} offset:{L_ML}")
    a.label("L_h_noclr")
    a("s_waitcnt vmcnt(32)")
    X = hT + 8
    for r in range(4):
        a(f"v_lshlrev_b32 v{X+2*r}, 16, v{hT+4+r}")
        a(f"v_and_b32 v{X+2*r+1}, 0xffff0000, v{hT+4+r}")
    S = hT + 16
    a(f"v_add_f32 v{S}, v{X}, v{X+1}")
    for e in range(2, 8):
        a(f"v_add_f32 v{S}, v{S}, v{X+e}")
    wave_allreduce_add(a, S, sT0 + 4)
    a(f"v_mul_f32 v{S}, {f32bits(1.0/512):#x}, v{S}")
    for e in range(8):
        a(f"v_sub_f32 v{X+e}, v{X+e}, v{S}")
    a(f"v_mul_f32 v{S+1}, v{X}, v{X}")
    for e in range(1, 8):
        a(f"v_fmac_f32 v{S+1}, v{X+e}, v{X+e}")
    wave_allreduce_add(a, S + 1, sT0 + 4)
    a(f"v_mov_b32 v{S+2}, {f32bits(1e-5):#x}")
    a(f"v_fmac_f32 v{S+2}, {f32bits(1.0/512):#x}, v{S+1}")
    a(f"v_sqrt_f32 v{S+2}, v{S+2}")
    a("s_nop 0")
    a(f"v_rcp_f32 v{S+2}, v{S+2}")
    a("s_nop 0")
    for e in range(8):
        a(f"v_mul_f32 v{X+e}, v{X+e}, v{S+2}")
    Q = hT + 24
    for e in range(8):
        a(f"v_cvt_pk_bf16_f32 v{S+3}, v{X+e}, v{X+e}")
        a(f"v_and_b32 v{S+3}, 0xffff0000, v{S+3}")
        a(f"v_sub_f32 v{S+4}, v{X+e}, v{S+3}")
        a(f"v_cvt_pk_bf16_f32 v{Q+e}, v{S+3}, v{S+4}")
    a(f"s_lshl_b32 s{sT0}, s{sHW}, 11")
    a(f"v_lshlrev_b32 v{hT}, 5, v0")
    a(f"v_add_u32 v{hT}, s{sT0}, v{hT}")
    a(f"ds_write_b128 v{hT}, {vr(Q)} offset:{L_XP}")
    a(f"ds_write_b128 v{hT}, {vr(Q+4)} offset:{L_XP+16}")
    a(f"s_mul_i32 s{sT0}, s{sHW}, {2048+512}")
    a(f"v_lshlrev_b32 v{hT+1}, 7, v3")
    a(f"v_add_u32 v{hT+1}, s{sT0}, v{hT+1}")
    a("s_waitcnt lgkmcnt(0)")
    for i in range(8):
        a(f"ds_read_b128 {vr(hP+4*i)}, v{hT+1} offset:{L_XP+16*i}")
    a("s_waitcnt lgkmcnt(0)")
    def gemv_step(W, Pk, first, D=hD):
        for r in range(4):
            a(f"v_perm_b32 v{hB+r}, v{Pk}, v{Pk}, v{hSEL+r}")
        a("s_nop 1")
        a(f"v_mfma_f32_16x16x32_bf16 {vr(D)}, {vr(W)}, {vr(hB)}, {'0' if first else vr(D)}")
    for n in range(32):
        a(f"s_waitcnt vmcnt({31-n})")
        gemv_step(hW+4*n, hP+n, n == 0)
    a("s_nop 7")
    a("s_nop 1")
    for r in range(4):
        a(f"v_add_f32_dpp v{hD+r}, v{hD+r}, v{hD+r} row_ror:8 row_mask:0xf bank_mask:0xf")
    hDA = 98
    a(f"v_and_b32 v{hDA}, 7, v2")
    a(f"v_lshlrev_b32 v{hDA}, 2, v{hDA}")
    a(f"v_lshlrev_b32 v{hT+1}, 7, v3")
    a(f"v_add_u32 v{hDA}, v{hDA}, v{hT+1}")
    a(f"s_lshl_b32 s{sT0}, s{sHW}, 9")
    a(f"v_add_u32 v{hT}, s{sT0}, v{hDA}")
    for r in range(4):
        a(f"ds_write_b32 v{hT}, v{hD+r} offset:{L_QP + r*32}")
    a("s_waitcnt lgkmcnt(0)")
    a("s_barrier")

    a(f"s_cmp_lg_u32 s{sHW}, 1")
    a(f"s_cbranch_scc1 L_h_noinit")
    a(f"v_mov_b32 v{hT}, 0")
    a(f"v_mov_b32 v{hT+1}, 1")
    a(f"s_mov_b64 exec, 1")
    a(f"global_atomic_add v{hT+2}, v{hT}, v{hT+1}, {sr(sDBG)} sc0")
    a("s_waitcnt vmcnt(0)")
    a(f"v_readfirstlane_b32 s{sT0}, v{hT+2}")
    a(f"s_mov_b64 exec, -1")
    a(f"s_cmp_lg_u32 s{sT0}, 0")
    a(f"s_cbranch_scc1 L_h_noinit")
    a(f"s_mov_b32 s{sFIRST}, 1")
    for r in range(4):
        a(f"v_mov_b32 v{hT+4+r}, 0")
    a(f"v_lshlrev_b32 v{hT}, 4, v0")
    a(f"s_mov_b32 s{sT0+2}, s{sWS}"); a(f"s_mov_b32 s{sT0+3}, s{sWS+1}")
    for k in range(ZERO_BYTES // 1024):
        a(f"global_store_dwordx4 v{hT}, {vr(hT+4)}, {sr(sT0+2)} sc0 sc1")
        a(f"v_add_u32 v{hT}, 1024, v{hT}")
    a("s_waitcnt vmcnt(0)")
    a(f"v_mov_b32 v{hT}, 0")
    a(f"v_mov_b32 v{hT+1}, 1")
    a(f"s_mov_b64 exec, 1")
    a(f"global_atomic_add v{hT}, v{hT+1}, {sr(sDBG)} offset:4")
    a(f"s_mov_b64 exec, -1")
    a.label("L_h_noinit")

    a(f"s_cmp_lg_u32 s{sHW}, 3")
    a(f"s_cbranch_scc1 L_h_noffn")
    a(f"s_cmp_lg_u32 s{sC}, 1")
    a(f"s_cbranch_scc1 L_h_noffn")
    a(f"s_cmp_ge_u32 s{sH}, 14")
    a(f"s_cbranch_scc1 L_h_noffn")
    a(f"v_mul_u32_u24 v{hVO}, {128*3584}, v3")
    a(f"v_lshlrev_b32 v{hT+1}, 4, v2")
    a(f"v_add_u32 v{hVO}, v{hVO}, v{hT+1}")
    a(f"v_lshlrev_b32 v{hVO2}, 9, v3")
    a(f"v_add_u32 v{hVO2}, {L_XP + 3*2048}, v{hVO2}")
    hG = 100
    for mat, (sP, Dreg) in enumerate([(sW1, hG), (sW3, hG + 4)]):
        a(f"s_mov_b32 s{SRD_W}, s{sP}"); a(f"s_mov_b32 s{SRD_W+1}, s{sP+1}")
        a(f"s_mov_b32 s{SRD_W+2}, {512*3584}"); a(f"s_mov_b32 s{SRD_W+3}, 0x00020000")
        for r in range(4):
            a(f"v_mov_b32 v{Dreg+r}, 0")
        a(f"s_lshl_b32 s{sT0}, s{sH}, 8")
        a(f"v_mov_b32 v{hT+2}, v{hVO2}")
        a(f"s_mov_b32 s{sT0+1}, 0")
        a.label(f"L_ffn_up{mat}")
        for n in range(32):
            a(f"buffer_load_dwordx4 {vr(hW+4*n)}, v{hVO}, {sr(SRD_W,4)}, s{sT0} offen {p.wflags}")
            a(f"s_add_u32 s{sT0}, s{sT0}, 3584")
        for i in range(8):
            a(f"ds_read_b128 {vr(hP+4*i)}, v{hT+2} offset:{16*i}")
        a(f"v_add_u32 v{hT+2}, 128, v{hT+2}")
        a("s_waitcnt lgkmcnt(0)")
        for n in range(32):
            a(f"s_waitcnt vmcnt({31-n})")
            gemv_step(hW+4*n, hP+n, False, Dreg)
        a(f"s_add_u32 s{sT0+1}, s{sT0+1}, 1")
        a(f"s_cmp_lt_u32 s{sT0+1}, 4")
        a(f"s_cbranch_scc1 L_ffn_up{mat}")
    a("s_nop 7")
    a("s_nop 1")
    for r in range(8):
        a(f"v_add_f32_dpp v{hG+r}, v{hG+r}, v{hG+r} row_ror:8 row_mask:0xf bank_mask:0xf")
    a(f"s_mov_b32 s{sT0}, {f32bits(-math.log2(math.e)):#x}")
    for r in range(4):
        g_, u_ = hG + r, hG + 4 + r
        a(f"v_mul_f32 v{hT}, s{sT0}, v{g_}")
        a(f"v_exp_f32 v{hT}, v{hT}")
        a("s_nop 0")
        a(f"v_add_f32 v{hT}, 1.0, v{hT}")
        a(f"v_rcp_f32 v{hT}, v{hT}")
        a("s_nop 0")
        a(f"v_mul_f32 v{hT}, v{hT}, v{g_}")
        a(f"v_mul_f32 v{hT}, v{hT}, v{u_}")
        a(f"v_cvt_pk_bf16_f32 v{hT+1}, v{hT}, v{hT}")
        a(f"v_and_b32 v{hT+1}, 0xffff0000, v{hT+1}")
        a(f"v_sub_f32 v{hT+2}, v{hT}, v{hT+1}")
        a(f"v_cvt_pk_bf16_f32 v{hT+3}, v{hT+1}, v{hT+2}")
        a(f"ds_write_b32 v{hDA}, v{hT+3} offset:{L_HP + r*32}")
    a(f"v_lshlrev_b32 v{hT+1}, 7, v3")
    a("s_waitcnt lgkmcnt(0)")
    for i in range(8):
        a(f"ds_read_b128 {vr(hP+4*i)}, v{hT+1} offset:{L_HP+16*i}")
    a(f"s_mov_b32 s{SRD_W}, s{sW2}"); a(f"s_mov_b32 s{SRD_W+1}, s{sW2+1}")
    a(f"s_mov_b32 s{SRD_W+2}, {1792*1024}"); a(f"s_mov_b32 s{SRD_W+3}, 0x00020000")
    a(f"v_lshlrev_b32 v{hVO}, 15, v3")
    a(f"v_lshlrev_b32 v{hT+1}, 4, v2")
    a(f"v_add_u32 v{hVO}, v{hVO}, v{hT+1}")
    emit_wait_flag(a, "ffn", sDBG, hT)
    a(f"s_and_b32 s{sT0+4}, s2, {NREP-1}")
    a(f"s_lshl_b32 s{sT0+4}, s{sT0+4}, 12")
    a(f"s_lshl_b32 s{sT0+5}, s{sB}, 11")
    a(f"s_add_u32 s{sT0+4}, s{sT0+4}, s{sT0+5}")
    a(f"v_add_u32 v{hT+4}, s{sT0+4}, v{hDA}")
    a(f"s_mov_b32 s{sT0+1}, 0")
    a("s_waitcnt lgkmcnt(0)")
    a.label("L_ffn_down")
    a(f"s_lshl_b32 s{sT0}, s{sH}, 17")
    a(f"s_lshl_b32 s{sT0+2}, s{sT0+1}, 8")
    a(f"s_add_u32 s{sT0}, s{sT0}, s{sT0+2}")
    for n in range(32):
        a(f"buffer_load_dwordx4 {vr(hW+4*n)}, v{hVO}, {sr(SRD_W,4)}, s{sT0} offen {p.wflags}")
        a(f"s_add_u32 s{sT0}, s{sT0}, 1024")
    for n in range(32):
        a(f"s_waitcnt vmcnt({31-n})")
        gemv_step(hW+4*n, hP+n, n == 0)
    a("s_nop 7")
    a("s_nop 1")
    for r in range(4):
        a(f"v_add_f32_dpp v{hD+r}, v{hD+r}, v{hD+r} row_ror:8 row_mask:0xf bank_mask:0xf")
    emit_atomic_y(a, hD, hT+4, sWS, sT0+6)
    a(f"v_add_u32 v{hT+4}, 512, v{hT+4}")
    a(f"s_add_u32 s{sT0+1}, s{sT0+1}, 1")
    a(f"s_cmp_lt_u32 s{sT0+1}, 4")
    a(f"s_cbranch_scc1 L_ffn_down")
    a.label("L_h_noffn")

    a(f"s_mov_b32 s{SRD_W}, s{sWO}"); a(f"s_mov_b32 s{SRD_W+1}, s{sWO+1}")
    a(f"s_mov_b32 s{SRD_W+2}, 0x400000"); a(f"s_mov_b32 s{SRD_W+3}, 0x00020000")
    a(f"v_lshlrev_b32 v{hVO}, 15, v3")
    a(f"v_lshlrev_b32 v{hT+1}, 4, v2")
    a(f"v_add_u32 v{hVO}, v{hVO}, v{hT+1}")
    a(f"s_lshl_b32 s{sT0}, s{sH}, 17")
    a(f"s_lshl_b32 s{sT0+2}, s{sHW}, 8")
    a(f"s_add_u32 s{sT0}, s{sT0}, s{sT0+2}")
    for n in range(32):
        if n >= 4:
            a("s_waitcnt vmcnt(3)")
        a(f"buffer_load_dwordx4 {vr(hW+4*n)}, v{hVO}, {sr(SRD_W,4)}, s{sT0} offen {p.wflags}")
        a(f"s_add_u32 s{sT0}, s{sT0}, 1024")

    a(f"s_cmp_lg_u32 s{sHW}, 0")
    a(f"s_cbranch_scc1 L_h_noml")
    a(f"v_mov_b32 v{hT}, 0")
    a.label("L_ml_poll")
    a("s_sleep 8")
    a(f"ds_read_b128 {vr(hT+4)}, v{hT} offset:{L_ML+32}")
    a("s_waitcnt lgkmcnt(0)")
    a(f"v_and_b32 v{hT+4}, v{hT+4}, v{hT+5}")
    a(f"v_and_b32 v{hT+6}, v{hT+6}, v{hT+7}")
    a(f"v_and_b32 v{hT+4}, v{hT+4}, v{hT+6}")
    a(f"v_cmp_eq_u32 vcc, 1, v{hT+4}")
    a(f"s_cbranch_vccz L_ml_poll")
    a(f"ds_read_b128 {vr(hT+4)}, v{hT} offset:{L_ML}")
    a(f"ds_read_b128 {vr(hT+8)}, v{hT} offset:{L_ML+16}")
    a("s_waitcnt lgkmcnt(0)")
    m = [hT+4, hT+6, hT+8, hT+10]; l = [hT+5, hT+7, hT+9, hT+11]
    MC, LC = hT+12, hT+13
    a(f"v_max_f32 v{MC}, v{m[0]}, v{m[1]}")
    a(f"v_max3_f32 v{MC}, v{MC}, v{m[2]}, v{m[3]}")
    for k in range(4):
        a(f"v_sub_f32 v{hT+16+k}, v{m[k]}, v{MC}")
    for k in range(4):
        a(f"v_exp_f32 v{hT+16+k}, v{hT+16+k}")
    a("s_nop 0")
    a(f"v_mul_f32 v{LC}, v{l[0]}, v{hT+16}")
    for k in range(1, 4):
        a(f"v_fmac_f32 v{LC}, v{l[k]}, v{hT+16+k}")
    a(f"s_lshl_b32 s{sT0}, s{sBH}, 5")
    a(f"s_lshl_b32 s{sT0+1}, s{sC}, 3")
    a(f"s_add_u32 s{sT0+1}, s{sT0+1}, s{sT0}")
    a(f"s_add_u32 s{sT0+1}, s{sT0+1}, {W_ML}")
    a(f"v_mov_b32 v{hT+20}, s{sT0+1}")
    a(f"s_lshr_b32 s{sT0+2}, s{sBH}, 3")
    a(f"s_lshl_b32 s{sT0+2}, s{sT0+2}, 2")
    a(f"s_add_u32 s{sT0+2}, s{sT0+2}, 32")
    a(f"s_and_b32 s{sT0+3}, s{sBH}, 7")
    a(f"s_lshl_b32 s{sT0+3}, s{sT0+3}, 2")
    a(f"s_lshl_b32 s{sT0+4}, 1, s{sT0+3}")
    a(f"v_mov_b32 v{hT+21}, s{sT0+2}")
    a(f"v_mov_b32 v{hT+22}, s{sT0+4}")
    a(f"s_mov_b64 exec, 1")
    a(f"global_store_dwordx2 v{hT+20}, v[{MC}:{LC}], {sr(sWS)} sc0 sc1")
    a("s_waitcnt vmcnt(0)")
    a(f"global_atomic_add v{hT+21}, v{hT+22}, {sr(sDBG)}")
    a(f"s_mov_b64 exec, -1")
    a.label("L_grp_poll")
    a("s_sleep 8")
    a(f"global_load_dword v{hT+23}, v{hT+21}, {sr(sDBG)} sc0 sc1")
    a("s_waitcnt vmcnt(0)")
    a(f"v_lshrrev_b32 v{hT+23}, s{sT0+3}, v{hT+23}")
    a(f"v_and_b32 v{hT+23}, 15, v{hT+23}")
    a(f"v_cmp_eq_u32 vcc, 4, v{hT+23}")
    a(f"s_cbranch_vccz L_grp_poll")
    a(f"v_and_b32 v{hT+24}, 3, v0")
    a(f"v_lshlrev_b32 v{hT+24}, 3, v{hT+24}")
    a(f"s_add_u32 s{sT0}, s{sT0}, {W_ML}")
    a(f"v_add_u32 v{hT+24}, s{sT0}, v{hT+24}")
    a(f"global_load_dwordx2 v[{hT+26}:{hT+27}], v{hT+24}, {sr(sWS)} sc0 sc1")
    a("s_waitcnt vmcnt(0)")
    GM, GL = hT+28, hT+29
    a(f"v_max_f32_dpp v{GM}, v{hT+26}, v{hT+26} quad_perm:[1,0,3,2] row_mask:0xf bank_mask:0xf")
    a("s_nop 1")
    a(f"v_max_f32_dpp v{GM}, v{GM}, v{GM} quad_perm:[2,3,0,1] row_mask:0xf bank_mask:0xf")
    a("s_nop 1")
    a(f"v_sub_f32 v{GL}, v{hT+26}, v{GM}")
    a(f"v_exp_f32 v{GL}, v{GL}")
    a("s_nop 0")
    a(f"v_mul_f32 v{GL}, v{GL}, v{hT+27}")
    a("s_nop 1")
    a(f"v_add_f32_dpp v{GL}, v{GL}, v{GL} quad_perm:[1,0,3,2] row_mask:0xf bank_mask:0xf")
    a("s_nop 1")
    a(f"v_add_f32_dpp v{GL}, v{GL}, v{GL} quad_perm:[2,3,0,1] row_mask:0xf bank_mask:0xf")
    a("s_nop 1")
    a(f"v_rcp_f32 v{GL}, v{GL}")
    for k in range(4):
        a(f"v_sub_f32 v{hT+16+k}, v{m[k]}, v{GM}")
    for k in range(4):
        a(f"v_exp_f32 v{hT+16+k}, v{hT+16+k}")
    a("s_nop 0")
    for k in range(4):
        a(f"v_mul_f32 v{hT+16+k}, v{hT+16+k}, v{GL}")
    a(f"ds_write_b128 v{hT}, {vr(hT+16)} offset:{L_ML+64}")
    emit_wait_flag(a, "ml", sDBG, hT+30)
    a.label("L_h_noml")
    a("s_waitcnt vmcnt(0) lgkmcnt(0)")
    a("s_barrier")
    a(f"v_mov_b32 v{hT}, 0")
    a(f"ds_read_b128 {vr(hT+4)}, v{hT} offset:{L_ML+64}")
    a(f"v_lshlrev_b32 v{hT+1}, 7, v3")
    O = hT + 8
    for w in range(4):
        dst = hP if w == 0 else O
        for i in range(8):
            a(f"ds_read_b128 {vr(dst+4*i)}, v{hT+1} offset:{L_OA + w*512 + 16*i}")
        a("s_waitcnt lgkmcnt(0)")
        for n in range(32):
            if w == 0:
                a(f"v_mul_f32 v{hP+n}, v{hP+n}, v{hT+4}")
            else:
                a(f"v_fmac_f32 v{hP+n}, v{O+n}, v{hT+4+w}")
    for n in range(32):
        a(f"v_cvt_pk_bf16_f32 v{O}, v{hP+n}, v{hP+n}")
        a(f"v_and_b32 v{O}, 0xffff0000, v{O}")
        a(f"v_sub_f32 v{O+1}, v{hP+n}, v{O}")
        a(f"v_cvt_pk_bf16_f32 v{hP+n}, v{O}, v{O+1}")
    for n in range(32):
        gemv_step(hW+4*n, hP+n, n == 0)
    a("s_nop 7")
    a("s_nop 1")
    for r in range(4):
        a(f"v_add_f32_dpp v{hD+r}, v{hD+r}, v{hD+r} row_ror:8 row_mask:0xf bank_mask:0xf")
    a(f"s_and_b32 s{sT0+4}, s2, {NREP-1}")
    a(f"s_lshl_b32 s{sT0+4}, s{sT0+4}, 12")
    a(f"s_lshl_b32 s{sT0+5}, s{sB}, 11")
    a(f"s_add_u32 s{sT0+4}, s{sT0+4}, s{sT0+5}")
    a(f"s_lshl_b32 s{sT0+5}, s{sHW}, 9")
    a(f"s_add_u32 s{sT0+4}, s{sT0+4}, s{sT0+5}")
    a(f"v_add_u32 v{hT+4}, s{sT0+4}, v{hDA}")
    emit_atomic_y(a, hD, hT+4, sWS, sT0+6)
    a("s_waitcnt vmcnt(0)")
    a("s_barrier")
    a(f"s_cmp_lg_u32 s{sHW}, 0")
    a(f"s_cbranch_scc1 L_h_noarr")
    a(f"s_lshr_b32 s{sT0}, s2, 4")
    a(f"s_lshl_b32 s{sT0}, s{sT0}, 8")
    a(f"s_add_u32 s{sT0}, s{sT0}, {W_CNT}")
    a(f"v_mov_b32 v{hT}, s{sT0}")
    a(f"v_mov_b32 v{hT+1}, 1")
    a(f"s_mov_b64 exec, 1")
    a(f"global_atomic_add v{hT}, v{hT+1}, {sr(sWS)}")
    a(f"s_mov_b64 exec, -1")
    a.label("L_h_noarr")
    a(f"s_cmp_eq_u32 s{sFIRST}, 0")
    a(f"s_cbranch_scc1 L_end")
    a(f"v_and_b32 v{hT}, {NCNT-1}, v0")
    a(f"v_lshlrev_b32 v{hT}, 8, v{hT}")
    a(f"v_add_u32 v{hT}, {W_CNT}, v{hT}")
    a.label("L_fin_poll")
    a(f"global_load_dword v{hT+1}, v{hT}, {sr(sWS)} sc0 sc1")
    a("s_waitcnt vmcnt(0)")
    a(f"v_cmp_ne_u32 vcc, {256//NCNT}, v{hT+1}")
    a(f"s_cbranch_vccnz L_fin_poll")
    a(f"v_lshlrev_b32 v{hT}, 6, v0")
    for rep in range(NREP):
        for k in range(4):
            a(f"global_load_dwordx4 {vr(hW + rep*16 + 4*k)}, v{hT}, {sr(sWS)} offset:{16*k} sc0 sc1")
        a(f"v_add_u32 v{hT}, 4096, v{hT}")
    a(f"v_lshlrev_b32 v{hT+1}, 5, v0")
    a(f"global_load_dwordx4 {vr(hT+4)}, v{hT+1}, {sr(sX)}")
    a(f"global_load_dwordx4 {vr(hT+8)}, v{hT+1}, {sr(sX)} offset:16")
    a("s_waitcnt vmcnt(0)")
    for rep in range(1, NREP):
        for e in range(16):
            a(f"v_add_f32 v{hW+e}, v{hW+e}, v{hW+rep*16+e}")
    for r in range(8):
        a(f"v_lshlrev_b32 v{hT+12}, 16, v{hT+4+r}")
        a(f"v_and_b32 v{hT+13}, 0xffff0000, v{hT+4+r}")
        a(f"v_add_f32 v{hW+2*r}, v{hW+2*r}, v{hT+12}")
        a(f"v_add_f32 v{hW+2*r+1}, v{hW+2*r+1}, v{hT+13}")
        a(f"v_cvt_pk_bf16_f32 v{hT+16+r}, v{hW+2*r}, v{hW+2*r+1}")
    a(f"global_store_dwordx4 v{hT+1}, {vr(hT+16)}, {sr(sOUT)}")
    a(f"global_store_dwordx4 v{hT+1}, {vr(hT+20)}, {sr(sOUT)} offset:16")
    a.label("L_end")
    a("s_endpgm")

    kd = f""".section .rodata,"a"
.p2align 6
.amdhsa_kernel {NAME}
  .amdhsa_next_free_vgpr 256
  .amdhsa_next_free_sgpr 96
  .amdhsa_accum_offset 256
  .amdhsa_group_segment_fixed_size 0
  .amdhsa_kernarg_size 96
  .amdhsa_user_sgpr_count 2
  .amdhsa_user_sgpr_kernarg_segment_ptr 1
  .amdhsa_system_sgpr_workgroup_id_x 1
.end_amdhsa_kernel
"""
    txt = HEADER + f"; @launch grid=(256,1,1) block=(512,1,1) lds={LDS_BYTES}\n"
    txt += f'.amdgcn_target "amdgcn-amd-amdhsa--gfx950"\n.text\n.globl {NAME}\n.p2align 8\n.type {NAME},@function\n'
    txt += a.text() + kd
    return txt

def emit_selectors(a, vSEL, vT):
    a(f"v_lshrrev_b32 v{vT}, 3, v2")
    a(f"v_mul_u32_u24 v{vT}, 0x0202, v{vT}")
    a(f"v_add_u32 v{vT}, 0x0100, v{vT}")
    a(f"v_lshlrev_b32 v{vT+1}, 16, v{vT}")
    a(f"v_or_b32 v{vT+1}, 0x0c0c, v{vT+1}")
    a(f"v_or_b32 v{vT}, 0x0c0c0000, v{vT}")
    a(f"v_and_b32 v{vT+2}, 1, v2")
    a(f"v_cmp_eq_u32 vcc, 1, v{vT+2}")
    a("s_nop 1")
    a(f"v_cndmask_b32 v{vT}, v{vT}, v{vT+1}, vcc")
    a(f"v_bfe_u32 v{vT+2}, v2, 1, 2")
    a(f"v_mov_b32 v{vT+1}, 0x0c0c0c0c")
    for r in range(4):
        a(f"v_cmp_eq_u32 vcc, {r}, v{vT+2}")
        a("s_nop 1")
        a(f"v_cndmask_b32 v{vSEL+r}, v{vT+1}, v{vT}, vcc")

def wave_allreduce_add(a, v, sT):
    a("s_nop 1")
    a(f"v_add_f32_dpp v{v}, v{v}, v{v} quad_perm:[1,0,3,2] row_mask:0xf bank_mask:0xf")
    a("s_nop 1")
    a(f"v_add_f32_dpp v{v}, v{v}, v{v} quad_perm:[2,3,0,1] row_mask:0xf bank_mask:0xf")
    a("s_nop 1")
    a(f"v_add_f32_dpp v{v}, v{v}, v{v} row_half_mirror row_mask:0xf bank_mask:0xf")
    a("s_nop 1")
    a(f"v_add_f32_dpp v{v}, v{v}, v{v} row_mirror row_mask:0xf bank_mask:0xf")
    a("s_nop 1")
    for k in range(4):
        a(f"v_readlane_b32 s{sT+k}, v{v}, {16*k}")
    a("s_nop 1")
    a(f"v_mov_b32 v{v}, s{sT}")
    a(f"v_add_f32 v{v}, s{sT+1}, v{v}")
    a(f"v_add_f32 v{v}, s{sT+2}, v{v}")
    a(f"v_add_f32 v{v}, s{sT+3}, v{v}")

_flagn = [0]
def emit_wait_flag(a, tag, sDBG, vT):
    a(f"v_mov_b32 v{vT}, 0")
    a.label(f"L_flag_{tag}")
    a(f"global_load_dword v{vT+1}, v{vT}, s[{sDBG}:{sDBG+1}] offset:4 sc0 sc1")
    a("s_waitcnt vmcnt(0)")
    a(f"v_cmp_eq_u32 vcc, 0, v{vT+1}")
    a(f"s_cbranch_vccnz L_flag_{tag}")

def emit_atomic_y(a, D, vaddr, sWS, sTmp):
    a(f"s_mov_b32 s{sTmp}, 0x00ff00ff"); a(f"s_mov_b32 s{sTmp+1}, 0x00ff00ff")
    a(f"s_mov_b64 exec, s[{sTmp}:{sTmp+1}]")
    for r in range(4):
        a(f"global_atomic_add_f32 v{vaddr}, v{D+r}, s[{sWS}:{sWS+1}] offset:{r*32}")
    a(f"s_mov_b64 exec, -1")

if __name__ == "__main__":
    out = sys.argv[1] if len(sys.argv) > 1 else "parallel_sum__mha_block_cached__glu_gated_swiglu__decode.s"
    open(out, "w").write(gen())
    print("wrote", out)
```

```python
import sys, subprocess
from gen_stream import HDR, META, KMETA

def gen(name, NW, NWG, U, d, pattern, flags, G=1, rot=0, wimap='il1', rmap=0):
    per = (256 << 20) // NWG
    region = per * G
    tile = NW * U * 1024
    NT = per // tile
    assert NT & (NT - 1) == 0 and d <= U
    L = []
    A = L.append
    A(f".globl {name}\n.p2align 8\n.type {name},@function\n{name}:")
    A(f"s_cmp_ge_u32 s2, {NWG}")
    A("s_cbranch_scc1 L_end_%s" % name)
    A("s_load_dwordx4 s[4:7], s[0:1], 8")
    A("s_load_dwordx2 s[8:9], s[0:1], 80")
    A("s_load_dwordx2 s[44:45], s[0:1], 88")
    A("s_memrealtime s[40:41]")
    A("v_lshrrev_b32 v1, 6, v0")
    A("v_and_b32 v2, 63, v0")
    A("s_nop 0")
    A("v_readfirstlane_b32 s10, v1")
    if pattern == 'lin':
        A("v_lshlrev_b32 v3, 4, v2")
    elif pattern == 'perm':
        A("v_and_b32 v4, 15, v2")
        A("v_lshrrev_b32 v5, 4, v2")
        A("v_lshlrev_b32 v4, 6, v4")
        A("v_lshlrev_b32 v5, 4, v5")
        A("v_add_u32 v3, v4, v5")
    elif pattern == 'p128':
        A("v_and_b32 v4, 15, v2")
        A("v_lshrrev_b32 v5, 4, v2")
        A("v_lshrrev_b32 v6, 1, v4")
        A("v_and_b32 v7, 1, v4")
        A("v_lshlrev_b32 v6, 8, v6")
        A("v_lshlrev_b32 v7, 6, v7")
        A("v_lshlrev_b32 v5, 4, v5")
        A("v_add_u32 v3, v6, v7")
        A("v_add_u32 v3, v3, v5")
    elif pattern == 'q64':
        A("v_and_b32 v4, 15, v2")
        A("v_lshrrev_b32 v5, 4, v2")
        A("v_lshrrev_b32 v6, 2, v4")
        A("v_and_b32 v7, 3, v4")
        A("v_lshlrev_b32 v6, 8, v6")
        A("v_lshlrev_b32 v7, 4, v7")
        A("v_lshlrev_b32 v5, 6, v5")
        A("v_add_u32 v3, v6, v7")
        A("v_add_u32 v3, v3, v5")
    A("s_waitcnt lgkmcnt(0)")
    lg = G.bit_length() - 1
    if rmap == 1:
        A("s_and_b32 s24, s2, 63")
        A("s_lshl_b32 s24, s24, 2")
        A("s_lshr_b32 s25, s2, 6")
        A("s_or_b32 s24, s24, s25")
        A("s_mov_b32 s25, 0")
    elif rmap >= 10:
        k = rmap - 10
        A("s_and_b32 s24, s2, 7")
        A(f"s_lshl_b32 s24, s24, {k}")
        A("s_lshr_b32 s25, s2, 3")
        A(f"s_and_b32 s47, s25, {(1<<k)-1}")
        A("s_or_b32 s24, s24, s47")
        A(f"s_lshr_b32 s25, s25, {k}")
        A(f"s_lshl_b32 s25, s25, {k+3}")
        A("s_or_b32 s24, s24, s25")
        A("s_mov_b32 s25, 0")
    elif rmap == 2:
        A("s_and_b32 s24, s2, 7")
        A("s_lshl_b32 s24, s24, 2")
        A("s_bfe_u32 s25, s2, 0x20003")
        A("s_or_b32 s24, s24, s25")
        A("s_and_b32 s25, s2, 32")
        A("s_or_b32 s24, s24, s25")
        A("s_lshl_b32 s24, s24, 2")
        A("s_lshr_b32 s25, s2, 6")
        A("s_or_b32 s24, s24, s25")
        A("s_mov_b32 s25, 0")
    else:
        A(f"s_lshr_b32 s24, s2, {lg}")
        A(f"s_and_b32 s25, s2, {G-1}")
    A(f"s_mul_i32 s11, s24, {region}")
    A(f"s_mul_hi_u32 s12, s24, {region}")
    A("s_add_u32 s4, s4, s11"); A("s_addc_u32 s5, s5, s12")
    A("s_add_u32 s6, s6, s11"); A("s_addc_u32 s7, s7, s12")
    if wimap == 'il1':
        wave_off = 1024
        def loff(i): return i * NW * 1024
    else:
        wave_off = U * 1024
        def loff(i): return i * 1024
    if pattern == 'p128':
        assert wimap != 'il1'
        def loff(i): return (i // 2) * 2048 + (i % 2) * 128
    A(f"s_mul_i32 s13, s10, {wave_off}")
    A(f"s_mul_i32 s14, s25, {tile}")
    A("s_add_u32 s13, s13, s14")
    A("v_add_u32 v3, s13, v3")
    A(f"s_mul_i32 s26, s2, {rot}")
    A(f"s_and_b32 s26, s26, {NT-1}")
    def setsrd(base, off, step):
        A(f"s_add_u32 s27, s26, s{step}")
        A(f"s_and_b32 s27, s27, {NT-1}")
        A(f"s_mul_i32 s{off}, s27, {tile*G}")
        A(f"s_cmp_ge_u32 s{step}, {NT}")
        A(f"s_cselect_b32 s{base}, s6, s4"); A(f"s_cselect_b32 s{base+1}, s7, s5")
        A(f"s_cmp_ge_u32 s{step}, {2*NT}")
        A(f"s_cselect_b32 s{base+2}, 0, {region}")
        A(f"s_mov_b32 s{base+3}, 0x00020000")
    A("s_mov_b32 s21, 0")
    A("s_mov_b32 s22, 1")
    setsrd(16, 20, 21)
    setsrd(28, 32, 22)
    for r in range(4): A(f"v_mov_b32 v{8+r}, 0")
    B0 = 16
    vo = {}
    nextv = B0 + 4 * U
    for i in range(U):
        off = loff(i)
        hi = off & ~4095
        if hi not in vo:
            if hi == 0: vo[hi] = 3
            else:
                vo[hi] = nextv; A(f"v_add_u32 v{nextv}, {hi}, v3"); nextv += 1
    def load(i, nxt):
        off = loff(i); hi = off & ~4095; lo = off & 4095
        srd, so = ("s[28:31]", "s32") if nxt else ("s[16:19]", "s20")
        return f"buffer_load_dwordx4 v[{B0+4*i}:{B0+4*i+3}], v{vo[hi]}, {srd}, {so} offen offset:{lo} {flags}"
    for i in range(d): A(load(i, False))
    A(f"L_loop_{name}:")
    for i in range(U):
        A(f"s_waitcnt vmcnt({d-1})")
        for r in range(4): A(f"v_xor_b32 v{8+r}, v{8+r}, v{B0+4*i+r}")
        j = i + d
        A(load(j % U, j >= U))
    A("s_add_u32 s21, s21, 1")
    A("s_add_u32 s22, s22, 1")
    A("s_mov_b32 s16, s28"); A("s_mov_b32 s17, s29"); A("s_mov_b32 s18, s30"); A("s_mov_b32 s20, s32")
    setsrd(28, 32, 22)
    A(f"s_cmp_lt_u32 s21, {2*NT}")
    A(f"s_cbranch_scc1 L_loop_{name}")
    A("s_waitcnt vmcnt(0)")
    A("s_memrealtime s[42:43]")
    A("s_waitcnt lgkmcnt(0)")
    A(f"s_mul_i32 s46, s2, {NW}")
    A("s_add_u32 s46, s46, s10")
    A("s_lshl_b32 s46, s46, 3")
    A("v_mov_b32 v12, s46")
    A("v_mov_b32 v14, s40")
    A("v_mov_b32 v15, s42")
    A("s_mov_b64 exec, 1")
    A("global_store_dwordx2 v12, v[14:15], s[44:45]")
    A("s_mov_b64 exec, -1")
    A("v_xor_b32 v8, v8, v9"); A("v_xor_b32 v8, v8, v10"); A("v_xor_b32 v8, v8, v11")
    A("v_cmp_eq_u32 vcc, 0x12345678, v8")
    A("s_and_saveexec_b64 s[34:35], vcc")
    A(f"s_cbranch_execz L_end_{name}")
    A("v_mov_b32 v9, 0")
    A("global_store_dword v9, v8, s[8:9]")
    A(f"L_end_{name}:")
    A("s_endpgm")
    nv = max(nextv, 16)
    kd = f""".section .rodata,"a"
.p2align 6
.amdhsa_kernel {name}
  .amdhsa_next_free_vgpr {nv}
  .amdhsa_next_free_sgpr 48
  .amdhsa_accum_offset {(nv+3)//4*4}
  .amdhsa_group_segment_fixed_size 0
  .amdhsa_kernarg_size 96
  .amdhsa_user_sgpr_count 2
  .amdhsa_user_sgpr_kernarg_segment_ptr 1
  .amdhsa_system_sgpr_workgroup_id_x 1
.end_amdhsa_kernel
.text
"""
    return "\n".join(L) + "\n" + kd, KMETA.format(name=name, vgpr=nv)

class Set:
    def __init__(self, fname):
        self.fname = fname; self.ks = []; self.specs = []
    def add(self, NW, NWG, U, d, pattern='lin', flags='nt', G=1, rot=0, wimap='il1', lds=0, rmap=0):
        name = f"k_{NW}w_{NWG}g_U{U}_d{d}_{pattern}_{flags.replace(' ','') or 'def'}_G{G}_r{rot}_{wimap}_m{rmap}"
        self.ks.append(dict(name=name, NW=NW, NWG=NWG, U=U, d=d, pattern=pattern, flags=flags, G=G, rot=rot, wimap=wimap, rmap=rmap))
        self.specs.append(f"{self.fname}.co:{name}:{NWG}:{NW*64}:{lds}")
    def build(self):
        body = HDR; meta = ""
        for k in self.ks:
            b, m = gen(**k); body += b; meta += m
        body += META.format(kern=meta)
        open(self.fname + ".s", "w").write(body)
        subprocess.check_call(["clang", "-x", "assembler", "-target", "amdgcn-amd-amdhsa", "-mcpu=gfx950", self.fname + ".s", "-o", self.fname + ".co"])
        open(self.fname + ".specs", "w").write(" ".join(self.specs))
```

```python
import sys, subprocess

HDR = """.amdgcn_target "amdgcn-amd-amdhsa--gfx950"
.text
"""
META = """
.amdgpu_metadata
---
amdhsa.version: [1, 2]
amdhsa.kernels:
{kern}
...
.end_amdgpu_metadata
"""
KMETA = """  - .name: {name}
    .symbol: {name}.kd
    .kernarg_segment_size: 96
    .kernarg_segment_align: 8
    .group_segment_fixed_size: 0
    .private_segment_fixed_size: 0
    .wavefront_size: 64
    .sgpr_count: 102
    .vgpr_count: {vgpr}
    .max_flat_workgroup_size: 1024
    .args:
      - {{.name: kernargs, .size: 96, .offset: 0, .value_kind: by_value}}
"""

def gen(name, NW, NWG, DEPTH, pattern, flags, mapping, gran=1):
    region = (256 << 20) // NWG
    L = []
    A = L.append
    A(f".globl {name}\n.p2align 8\n.type {name},@function\n{name}:")
    A(f"s_cmp_ge_u32 s2, {NWG}")
    A("s_cbranch_scc1 L_end_%s" % name)
    A("s_load_dwordx4 s[4:7], s[0:1], 8")
    A("s_load_dwordx2 s[8:9], s[0:1], 80")
    A("v_lshrrev_b32 v1, 6, v0")
    A("v_and_b32 v2, 63, v0")
    A("s_nop 0")
    A("v_readfirstlane_b32 s10, v1")
    if pattern == 'lin':
        A("v_lshlrev_b32 v3, 4, v2")
    elif pattern == 'perm':
        A("v_and_b32 v4, 15, v2")
        A("v_lshrrev_b32 v5, 4, v2")
        A("v_lshlrev_b32 v4, 6, v4")
        A("v_lshlrev_b32 v5, 4, v5")
        A("v_add_u32 v3, v4, v5")
    elif pattern == 'p64':
        A("v_and_b32 v4, 15, v2")
        A("v_lshrrev_b32 v5, 4, v2")
        A("v_lshlrev_b32 v4, 8, v4")
        A("v_lshlrev_b32 v5, 4, v5")
        A("v_add_u32 v3, v4, v5")
    elif pattern == 'p128':
        A("v_and_b32 v4, 15, v2")
        A("v_lshrrev_b32 v5, 4, v2")
        A("v_lshrrev_b32 v6, 1, v4")
        A("v_and_b32 v7, 1, v4")
        A("v_lshlrev_b32 v6, 8, v6")
        A("v_lshlrev_b32 v7, 6, v7")
        A("v_lshlrev_b32 v5, 4, v5")
        A("v_add_u32 v3, v6, v7")
        A("v_add_u32 v3, v3, v5")
    A("s_waitcnt lgkmcnt(0)")
    A(f"s_mul_i32 s11, s2, {region & 0xffffffff}")
    A(f"s_mul_hi_u32 s12, s2, {region}")
    A("s_add_u32 s4, s4, s11"); A("s_addc_u32 s5, s5, s12")
    A("s_add_u32 s6, s6, s11"); A("s_addc_u32 s7, s7, s12")
    if mapping == 'wc':
        wave_off = region // NW
        tile_stride = DEPTH * 1024
        def loff(i): return i * 1024
    elif mapping == 'il':
        if gran == 1:
            wave_off = 1024
            tile_stride = NW * DEPTH * 1024
            def loff(i): return i * NW * 1024
        else:
            wave_off = DEPTH * 1024
            tile_stride = NW * DEPTH * 1024
            def loff(i): return i * 1024
    if pattern == 'p64':
        assert mapping == 'wc' or gran != 1
        def loff(i): return (i // 4) * 4096 + (i % 4) * 64
    if pattern == 'p128':
        assert mapping == 'wc' or gran != 1
        def loff(i): return (i // 2) * 2048 + (i % 2) * 128
    NT = region // (NW * DEPTH * 1024)
    A(f"s_mul_i32 s13, s10, {wave_off}")
    A("v_add_u32 v3, s13, v3")
    A("s_mov_b32 s16, s4"); A("s_mov_b32 s17, s5"); A(f"s_mov_b32 s18, {region}"); A("s_mov_b32 s19, 0x00020000")
    A("s_mov_b32 s20, 0")
    A("s_mov_b32 s21, 0")
    for r in range(4): A(f"v_mov_b32 v{8+r}, 0")
    B0 = 16
    vo = {}
    nextv = B0 + 4 * DEPTH
    for i in range(DEPTH):
        off = loff(i)
        hi = off & ~4095
        if hi not in vo:
            if hi == 0: vo[hi] = 3
            else:
                vo[hi] = nextv; A(f"v_add_u32 v{nextv}, {hi}, v3"); nextv += 1
    def load(i):
        off = loff(i); hi = off & ~4095; lo = off & 4095
        return f"buffer_load_dwordx4 v[{B0+4*i}:{B0+4*i+3}], v{vo[hi]}, s[16:19], s20 offen offset:{lo} {flags}"
    for i in range(DEPTH): A(load(i))
    A(f"L_loop_{name}:")
    A("s_add_u32 s21, s21, 1")
    A(f"s_add_u32 s20, s20, {tile_stride}")
    A(f"s_cmp_eq_u32 s21, {NT}")
    A("s_cselect_b32 s16, s6, s16"); A("s_cselect_b32 s17, s7, s17"); A("s_cselect_b32 s20, 0, s20")
    A(f"s_cmp_eq_u32 s21, {2*NT}")
    A("s_cselect_b32 s18, 0, s18")
    for i in range(DEPTH):
        A(f"s_waitcnt vmcnt({DEPTH-1})")
        for r in range(4): A(f"v_xor_b32 v{8+r}, v{8+r}, v{B0+4*i+r}")
        A(load(i))
    A(f"s_cmp_lt_u32 s21, {2*NT}")
    A(f"s_cbranch_scc1 L_loop_{name}")
    A("s_waitcnt vmcnt(0)")
    A("v_xor_b32 v8, v8, v9"); A("v_xor_b32 v8, v8, v10"); A("v_xor_b32 v8, v8, v11")
    A("v_cmp_eq_u32 vcc, 0x12345678, v8")
    A("s_and_saveexec_b64 s[22:23], vcc")
    A(f"s_cbranch_execz L_end_{name}")
    A("v_mov_b32 v9, 0")
    A("global_store_dword v9, v8, s[8:9]")
    A(f"L_end_{name}:")
    A("s_endpgm")
    nv = max(nextv, 16)
    kd = f""".section .rodata,"a"
.p2align 6
.amdhsa_kernel {name}
  .amdhsa_next_free_vgpr {nv}
  .amdhsa_next_free_sgpr 32
  .amdhsa_accum_offset {(nv+3)//4*4}
  .amdhsa_group_segment_fixed_size 0
  .amdhsa_kernarg_size 96
  .amdhsa_user_sgpr_count 2
  .amdhsa_user_sgpr_kernarg_segment_ptr 1
  .amdhsa_system_sgpr_workgroup_id_x 1
.end_amdhsa_kernel
.text
"""
    return "\n".join(L) + "\n" + kd, KMETA.format(name=name, vgpr=nv)

def build(fname, kernels):
    body = HDR; meta = ""
    for k in kernels:
        b, m = gen(**k); body += b; meta += m
    body += META.format(kern=meta)
    open(fname + ".s", "w").write(body)
    subprocess.check_call(["clang", "-x", "assembler", "-target", "amdgcn-amd-amdhsa", "-mcpu=gfx950", fname + ".s", "-o", fname + ".co"])

if __name__ == "__main__":
    ks = []
    specs = []
    def add(NW, NWG, DEPTH, pattern, flags, mapping, gran=1):
        name = f"k_{NW}w_{NWG}g_d{DEPTH}_{pattern}_{flags.replace(' ','') or 'def'}_{mapping}{gran}"
        ks.append(dict(name=name, NW=NW, NWG=NWG, DEPTH=DEPTH, pattern=pattern, flags=flags, mapping=mapping, gran=gran))
        specs.append(f"s1.co:{name}:{NWG}:{NW*64}:0")
    for fl in ['', 'nt']:
        add(8, 256, 16, 'lin', fl, 'wc')
        add(8, 256, 16, 'lin', fl, 'il', 1)
        add(8, 256, 16, 'lin', fl, 'il', 16)
        add(8, 256, 32, 'lin', fl, 'il', 32)
        add(16, 256, 8, 'lin', fl, 'il', 8)
        add(16, 256, 16, 'lin', fl, 'il', 16)
        add(4, 256, 32, 'lin', fl, 'il', 32)
        add(8, 256, 16, 'perm', fl, 'il', 16)
        add(8, 256, 16, 'p64', fl, 'il', 16)
        add(8, 256, 16, 'p128', fl, 'il', 16)
        add(8, 512, 16, 'lin', fl, 'il', 16)
        add(4, 1024, 16, 'lin', fl, 'il', 16)
    build("s1", ks)
    open("s1.specs", "w").write(" ".join(specs))
```

```python
import sys, os, math, struct

NAME = "parallel_sum__mha_block_cached__glu_gated_swiglu__decode_kernel"
OUT = "parallel_sum__mha_block_cached__glu_gated_swiglu__decode.s"

HEADER = """; Kernarg layout for this problem (96 bytes, ptrs only, base s[0:1]):
"""

class P:
    d = 5
    dA = 5
    NS = 48
    dQ = 4
    dF = 2
    dW = 2
    kvflags = "nt"
    wflags = "nt"
    stamps = False
    stampset = 'A'
    noffn = False
    nowo = False
    noml = False
    dE = 7
    wmap = 1
    GE = 8
    vsig = 22

class Asm:
    def __init__(self):
        self.L = []
    def __call__(self, s):
        self.L.append("    " + s)
    def label(self, s):
        self.L.append(s + ":")
    def c(self, s):
        self.L.append("    ; " + s)
    def text(self):
        return "\n".join(self.L) + "\n"

def vr(b, n=4):
    return f"v[{b}:{b+n-1}]"
def sr(b, n=2):
    return f"s[{b}:{b+n-1}]"
def f32bits(x):
    return struct.unpack("<I", struct.pack("<f", x))[0]

RS = 1040
L_ST = 0
L_XP = 16640
L_QP = L_XP + 8192
L_Z = L_QP + 2048
L_ML = L_Z
L_KF = L_Z + 32
L_F = L_Z + 64
L_VP = L_Z + 80
L_FC = L_Z + 96
L_GA = L_Z + 512
L_UA = L_Z + 1024
L_OA = L_Z + 2048
L_END = L_OA + 2048
LDS_BYTES = (L_END + 255) // 256 * 256

W_ACC = 0
NREP = 8
W_CNT = 32768
NCNT = 16
W_ML = 65536
ZERO_BYTES = 32768 + 4096

SCALE = (128 ** -0.5) * math.log2(math.e)

def gen(p=P):
    a = Asm()
    d = p.d
    NS = p.NS
    def stamp(k, which="A"):
        if p.stamps and p.stampset == which:
            a(f"s_memrealtime s[{82+2*k}:{83+2*k}]")
    def dump_stamps(n, vtmp):
        if not p.stamps: return
        a("s_waitcnt lgkmcnt(0)")
        a(f"s_lshl_b32 s81, s2, 3")
        a(f"s_add_u32 s81, s81, s3")
        a(f"s_lshl_b32 s81, s81, 6")
        a(f"s_add_u32 s81, s81, 0x100000")
        a(f"v_mov_b32 v{vtmp}, s81")
        a("s_mov_b64 exec, 1")
        for k in range(n):
            a(f"v_mov_b32 v{vtmp+1}, s{82+2*k}")
            a(f"global_store_dword v{vtmp}, v{vtmp+1}, s[30:31] offset:{4*k}")
        a("s_mov_b64 exec, -1")
    sX, sK, sV, sWQ, sWO, sW1, sW3, sW2, sOUT, sDBG, sWS = 8, 10, 12, 14, 16, 20, 22, 24, 26, 28, 30
    sH, sB, sC, sBH = 32, 33, 34, 35
    SRD_K, SRD_V, SRD_W = 36, 40, 44
    sPAR = 52
    sHL = 54
    sM0 = 56
    sCUR, sNXT = 64, 65
    sHW, sK8, sFIRST = 66, 67, 81
    sT0 = 68
    sWV = 3

    a.label(NAME)
    a(f"s_cmp_ge_u32 s2, 256")
    a(f"s_cbranch_scc1 L_end")
    a(f"s_load_dwordx16 s[8:23], s[0:1], 0")
    a(f"s_load_dwordx8 s[24:31], s[0:1], 64")
    a(f"v_lshrrev_b32 v1, 6, v0")
    a(f"v_and_b32 v0, 63, v0")
    a(f"v_readfirstlane_b32 s{sWV}, v1")
    if p.wmap == 0:
        a(f"s_and_b32 s{sH}, s2, 31")
        a(f"s_bfe_u32 s{sB}, s2, 0x10005")
        a(f"s_lshr_b32 s{sC}, s2, 6")
    elif p.wmap == 1:
        a(f"s_and_b32 s{sC}, s2, 1")
        a(f"s_lshl_b32 s{sC}, s{sC}, 1")
        a(f"s_bfe_u32 s{sB}, s2, 0x10003")
        a(f"s_or_b32 s{sC}, s{sC}, s{sB}")
        a(f"s_bfe_u32 s{sH}, s2, 0x30004")
        a(f"s_lshl_b32 s{sH}, s{sH}, 2")
        a(f"s_bfe_u32 s{sB}, s2, 0x20001")
        a(f"s_or_b32 s{sH}, s{sH}, s{sB}")
        a(f"s_lshr_b32 s{sB}, s2, 7")
    elif p.wmap == 2:
        a(f"s_and_b32 s{sC}, s2, 3")
        a(f"s_bfe_u32 s{sH}, s2, 0x50002")
        a(f"s_lshr_b32 s{sB}, s2, 7")
    elif p.wmap == 5:
        a(f"s_bfe_u32 s{sC}, s2, 0x20003")
        a(f"s_bfe_u32 s{sH}, s2, 0x30005")
        a(f"s_and_b32 s{sB}, s2, 3")
        a(f"s_lshl_b32 s{sB}, s{sB}, 3")
        a(f"s_or_b32 s{sH}, s{sH}, s{sB}")
        a(f"s_bfe_u32 s{sB}, s2, 0x10002")
    a(f"s_lshl_b32 s{sBH}, s{sB}, 5")
    a(f"s_add_u32 s{sBH}, s{sBH}, s{sH}")
    a(f"v_and_b32 v2, 15, v0")
    a(f"v_lshrrev_b32 v3, 4, v0")
    stamp(0); stamp(0, "S")
    a(f"s_cmp_ge_u32 s{sWV}, 4")
    a(f"s_cbranch_scc1 L_helper")

    vKO0, vKO1, vVO0, vVO1 = 4, 5, 6, 7
    vSA, vSR, vMR, vL = 8, 9, 10, 11
    vX0, vX1, vMN, vA, vE0, vE1, vMW, vPG = 12, 13, 14, 15, 16, 17, 18, 19
    vD, vD2, vSEL = 20, 24, 28
    vBQ = 32
    vBT, vS0, vS1, vP = 32, 36, 44, 52
    vPA = 56
    vT = 56
    vSL = 64

    t0, t1, t2 = vX0, vX1, vMN
    a(f"v_lshrrev_b32 v{t0}, 1, v2")
    a(f"v_and_b32 v{t1}, 1, v2")
    a(f"v_lshlrev_b32 v{t0}, 8, v{t0}")
    a(f"v_lshlrev_b32 v{t1}, 6, v{t1}")
    a(f"v_lshlrev_b32 v{t2}, 4, v3")
    a(f"v_add3_u32 v{vKO0}, v{t0}, v{t1}, v{t2}")
    a(f"s_lshl_b32 s{sT0}, s{sWV}, 13")
    a(f"s_lshl_b32 s{sT0+1}, s{sBH}, 2")
    a(f"s_add_u32 s{sT0+1}, s{sT0+1}, s{sC}")
    a(f"s_lshl_b32 s{sT0+1}, s{sT0+1}, 20")
    a(f"v_add_u32 v{vKO0}, s{sT0}, v{vKO0}")
    a(f"v_add_u32 v{vKO1}, 0x1000, v{vKO0}")
    a(f"s_mov_b32 s{SRD_K+2}, 0x100000")
    a(f"s_mov_b32 s{SRD_K+3}, 0x00020000")
    a(f"s_waitcnt lgkmcnt(0)")
    stamp(1, "S")
    a(f"s_add_u32 s{SRD_K}, s{sK}, s{sT0+1}")
    a(f"s_addc_u32 s{SRD_K+1}, s{sK+1}, 0")

    def slot(i):
        return vSL + 4 * (i if i < NS else (i % 8))
    def kload(i, soff):
        ii = i & 7
        m, j = ii >> 1, ii & 1
        vo = vKO1 if m >= 2 else vKO0
        imm = (m & 1) * 2048 + j * 128
        a(f"buffer_load_dwordx4 {vr(slot(i))}, v{vo}, {sr(SRD_K,4)}, {soff} offen offset:{imm} {p.kvflags}")
    def vload(i, soff):
        ii = i & 7
        vo = vVO1 if ii >= 4 else vVO0
        imm = (ii & 3) * 1024
        a(f"buffer_load_dwordx4 {vr(vSL + 4*ii)}, v{vo}, {sr(SRD_V,4)}, {soff} offen offset:{imm} {p.kvflags}")

    ngA = NS // 8
    assert ngA <= 8
    def soffA(t):
        return "0" if t == 0 else f"s{sT0+2+t}"
    for i in range(NS):
        if i >= p.dA:
            a(f"s_waitcnt vmcnt({p.dA-1})")
        if i == p.dA: stamp(3, "S")
        if i == 16: stamp(4, "S")
        kload(i, soffA(i >> 3))
        if i == p.dA - 1:
            stamp(2, "S")
            for t in range(1, ngA + 1):
                a(f"s_mov_b32 s{sT0+2+t}, {t*32768}")
            a(f"s_add_u32 s{SRD_V}, s{sV}, s{sT0+1}")
            a(f"s_addc_u32 s{SRD_V+1}, s{sV+1}, 0")
            a(f"s_mov_b32 s{SRD_V+2}, 0x100000")
            a(f"s_mov_b32 s{SRD_V+3}, 0x00020000")
            a(f"v_lshlrev_b32 v{vVO0}, 4, v0")
            a(f"v_add_u32 v{vVO0}, s{sT0}, v{vVO0}")
            a(f"v_add_u32 v{vVO1}, 0x1000, v{vVO0}")
            a(f"s_mov_b32 s{sPAR}, 0xaaaaaaaa"); a(f"s_mov_b32 s{sPAR+1}, 0xaaaaaaaa")
            a(f"s_mov_b32 s{sHL}, 0xcccccccc"); a(f"s_mov_b32 s{sHL+1}, 0xcccccccc")
            for m in range(4):
                mk = 0x000f000f << (4 * m)
                a(f"s_mov_b32 s{sM0+2*m}, {mk:#x}"); a(f"s_mov_b32 s{sM0+2*m+1}, {mk:#x}")
            a(f"s_mul_i32 s{sT0}, s{sWV}, {4*RS}")
            a(f"v_and_b32 v{t0}, 1, v3")
            a(f"v_mul_u32_u24 v{t0}, {2*RS}, v{t0}")
            a(f"v_lshrrev_b32 v{t1}, 2, v2")
            a(f"v_lshlrev_b32 v{t1}, 3, v{t1}")
            a(f"v_lshrrev_b32 v{t2}, 1, v3")
            a(f"v_lshlrev_b32 v{t2}, 2, v{t2}")
            a(f"v_add3_u32 v{vSA}, v{t0}, v{t1}, v{t2}")
            a(f"v_add_u32 v{vSA}, s{sT0}, v{vSA}")
            a(f"v_mul_u32_u24 v{vSR}, {RS}, v3")
            a(f"v_add_u32 v{vSR}, s{sT0}, v{vSR}")
            a(f"v_mov_b32 v{vMR}, 0xff7fffff")
            a(f"v_mov_b32 v{vL}, 0")
            emit_selectors(a, vSEL, t0)
    stamp(1); stamp(5, "S")
    a("s_barrier")
    stamp(2); stamp(6, "S")
    qa, qb = vD, vX0
    vQA = vSA
    a(f"v_and_b32 v1, 1, v2")
    a(f"v_lshlrev_b32 v1, 7, v1")
    a(f"v_lshl_add_u32 v1, v3, 5, v1")
    a(f"s_mov_b32 s{sT0}, {f32bits(SCALE):#x}")
    for j in range(2):
        for hw in range(4):
            dst = qa if hw == 0 else qb
            for hf in range(2):
                a(f"ds_read_b128 {vr(dst + 4*hf)}, v1 offset:{L_QP + hw*512 + j*256 + hf*16}")
            if hw > 0:
                a("s_waitcnt lgkmcnt(0)")
                for e in range(8):
                    a(f"v_add_f32 v{qa+e}, v{qa+e}, v{qb+e}")
        for e in range(8):
            a(f"v_mul_f32 v{qa+e}, s{sT0}, v{qa+e}")
        for r in range(4):
            q0, q1 = qa + 2*r, qa + 2*r + 1
            H, h0, h1, Lp, sel = qb, qb+1, qb+2, qb+3, qb+4
            a(f"v_cvt_pk_bf16_f32 v{H}, v{q0}, v{q1}")
            a(f"v_lshlrev_b32 v{h0}, 16, v{H}")
            a(f"v_and_b32 v{h1}, 0xffff0000, v{H}")
            a(f"v_sub_f32 v{h0}, v{q0}, v{h0}")
            a(f"v_sub_f32 v{h1}, v{q1}, v{h1}")
            a(f"v_cvt_pk_bf16_f32 v{Lp}, v{h0}, v{h1}")
            a(f"v_cndmask_b32 v{sel}, v{H}, v{Lp}, {sr(sHL)}")
            for m in range(4):
                a(f"v_cndmask_b32 v{vBQ + (m*2+j)*4 + r}, 0, v{sel}, {sr(sM0+2*m)}")
    stamp(3); stamp(7, "S")

    def kconsume(i):
        ii = i & 7
        m, j = ii >> 1, ii & 1
        b = vBQ + (m*2+j)*4
        c = "0" if ii == 0 else vr(vD)
        a(f"v_mfma_f32_16x16x32_bf16 {vr(vD)}, {vr(slot(i))}, {vr(b)}, {c}")
    def kpost():
        a("s_nop 7")
        a(f"v_cndmask_b32 v{vX0}, v{vD}, v{vD+1}, {sr(sPAR)}")
        a(f"v_cndmask_b32 v{vX1}, v{vD+2}, v{vD+3}, {sr(sPAR)}")
        a("s_nop 1")
        a(f"v_add_f32_dpp v{vX0}, v{vX0}, v{vX0} quad_perm:[1,0,3,2] row_mask:0xf bank_mask:0xf")
        a(f"v_add_f32_dpp v{vX1}, v{vX1}, v{vX1} quad_perm:[1,0,3,2] row_mask:0xf bank_mask:0xf")
        a("s_nop 1")
        a(f"v_add_f32_dpp v{vX0}, v{vX0}, v{vX0} quad_perm:[2,3,0,1] row_mask:0xf bank_mask:0xf")
        a(f"v_add_f32_dpp v{vX1}, v{vX1}, v{vX1} quad_perm:[2,3,0,1] row_mask:0xf bank_mask:0xf")
        a(f"v_max3_f32 v{vMN}, v{vMR}, v{vX0}, v{vX1}")
        a(f"ds_write_b32 v{vSA}, v{vX0} offset:{L_ST}")
        a(f"ds_write_b32 v{vSA}, v{vX1} offset:{L_ST+RS}")
        a(f"v_sub_f32 v{vA}, v{vMR}, v{vMN}")
        a(f"v_sub_f32 v{vE0}, v{vX0}, v{vMN}")
        a(f"v_sub_f32 v{vE1}, v{vX1}, v{vMN}")
        a(f"v_exp_f32 v{vA}, v{vA}")
        a(f"v_exp_f32 v{vE0}, v{vE0}")
        a(f"v_exp_f32 v{vE1}, v{vE1}")
        a(f"v_mov_b32 v{vMR}, v{vMN}")
        a(f"v_add_u32 v{vSA}, 32, v{vSA}")
        a(f"v_fma_f32 v{vL}, v{vL}, v{vA}, v{vE0}")
        a(f"v_add_f32 v{vL}, v{vL}, v{vE1}")

    issue_after = {}
    for k in range(d):
        pos = min(max(k, (k * NS) // d + 2), NS - 1)
        issue_after.setdefault(pos, []).append(NS + k)
    issued = NS
    for i in range(NS):
        outstanding_after = issued - 1 - i
        if outstanding_after < p.dA + d:
            a(f"s_waitcnt vmcnt({min(outstanding_after,63)})")
        kconsume(i)
        if (i & 7) == 7:
            kpost()
        for n in issue_after.get(i, []):
            a(f"s_waitcnt vmcnt({d-1})")
            kload(n, soffA(n >> 3))
            issued += 1
    stamp(4)
    a(f"s_mov_b32 s{sCUR}, {ngA*32768}")
    a(f"s_mov_b32 s{sNXT}, {(ngA+1)*32768}")
    a.label("L_kloop")
    for ii in range(8):
        a(f"s_waitcnt vmcnt({d-1})")
        n = ii + d
        kload(NS + 8 + (n & 7), f"s{sCUR}" if n < 8 else f"s{sNXT}")
        kconsume(NS + ii)
    kpost()
    a(f"s_mov_b32 s{sCUR}, s{sNXT}")
    a(f"s_add_u32 s{sNXT}, s{sNXT}, 32768")
    a(f"s_cmp_lt_u32 s{sCUR}, {31*32768}")
    a(f"s_cbranch_scc1 L_kloop")
    for ii in range(8):
        a(f"s_waitcnt vmcnt({d-1})")
        n = ii + d
        if n < 8:
            kload(NS + n, f"s{sCUR}")
        else:
            vload(n & 7, "0")
        kconsume(NS + ii)
    kpost()
    a("s_nop 1")
    a(f"v_max_f32_dpp v{vMN}, v{vMR}, v{vMR} row_half_mirror row_mask:0xf bank_mask:0xf")
    a("s_nop 1")
    a(f"v_max_f32_dpp v{vMN}, v{vMN}, v{vMN} row_mirror row_mask:0xf bank_mask:0xf")
    a("s_nop 1")
    for k in range(4):
        a(f"v_readlane_b32 s{sT0+k}, v{vMN}, {16*k}")
    a("s_nop 1")
    a(f"v_mov_b32 v{vMW}, s{sT0}")
    a(f"v_max_f32 v{vMW}, s{sT0+1}, v{vMW}")
    a(f"v_max_f32 v{vMW}, s{sT0+2}, v{vMW}")
    a(f"v_max_f32 v{vMW}, s{sT0+3}, v{vMW}")
    a(f"v_sub_f32 v{vA}, v{vMR}, v{vMW}")
    a(f"v_exp_f32 v{vA}, v{vA}")
    a("s_nop 0")
    a(f"v_mul_f32 v{vL}, v{vL}, v{vA}")
    a("s_nop 1")
    a(f"v_add_f32_dpp v{vL}, v{vL}, v{vL} row_half_mirror row_mask:0xf bank_mask:0xf")
    a("s_nop 1")
    a(f"v_add_f32_dpp v{vL}, v{vL}, v{vL} row_mirror row_mask:0xf bank_mask:0xf")
    a("s_nop 1")
    for k in range(4):
        a(f"v_readlane_b32 s{sT0+k}, v{vL}, {16*k}")
    a("s_nop 1")
    a(f"v_mov_b32 v{vL}, s{sT0}")
    a(f"v_add_f32 v{vL}, s{sT0+1}, v{vL}")
    a(f"v_add_f32 v{vL}, s{sT0+2}, v{vL}")
    a(f"v_add_f32 v{vL}, s{sT0+3}, v{vL}")
    a(f"s_lshl_b32 s{sT0}, s{sWV}, 3")
    a(f"v_mov_b32 v{vT}, s{sT0}")
    a(f"v_mov_b32 v{vT+2}, v{vMW}")
    a(f"v_mov_b32 v{vT+3}, v{vL}")
    a(f"ds_write_b64 v{vT}, v[{vT+2}:{vT+3}] offset:{L_ML}")
    a(f"s_lshl_b32 s{sT0}, s{sWV}, 2")
    a(f"v_mov_b32 v{vPA}, s{sT0}")
    a(f"v_mov_b32 v{vT+4}, 1")
    a("s_waitcnt lgkmcnt(0)")
    a(f"ds_write_b32 v{vPA}, v{vT+4} offset:{L_KF}")
    stamp(5)
    for r in range(4):
        a(f"v_mov_b32 v{vD+r}, 0")
        a(f"v_mov_b32 v{vD2+r}, 0")
    a(f"v_mov_b32 v{vPG}, 0")
    a(f"ds_read_b128 {vr(vS0)}, v{vSR} offset:{L_ST}")
    a(f"ds_read_b128 {vr(vS0+4)}, v{vSR} offset:{L_ST+16}")
    a(f"v_add_u32 v{vSR}, 32, v{vSR}")
    def vconsume(ii, S):
        t, hi, lo, Pk = vP, vP+1, vP+2, vP+3
        a(f"v_sub_f32 v{t}, v{S+ii}, v{vMW}")
        a(f"v_exp_f32 v{t}, v{t}")
        a("s_nop 0")
        a(f"v_and_b32 v{hi}, 0xffff0000, v{t}")
        a(f"v_sub_f32 v{lo}, v{t}, v{hi}")
        a(f"v_cvt_pk_bf16_f32 v{Pk}, v{hi}, v{lo}")
        for r in range(4):
            a(f"v_perm_b32 v{vBT+r}, v{Pk}, v{Pk}, v{vSEL+r}")
        a("s_nop 1")
        D = vD if (ii & 1) == 0 else vD2
        a(f"v_mfma_f32_16x16x32_bf16 {vr(D)}, {vr(vSL+4*ii)}, {vr(vBT)}, {vr(D)}")
    def vgroup(S, Sn, dc, dprev=None):
        a("s_waitcnt lgkmcnt(0)")
        a(f"ds_read_b128 {vr(Sn)}, v{vSR} offset:{L_ST}")
        a(f"ds_read_b128 {vr(Sn+4)}, v{vSR} offset:{L_ST+16}")
        a(f"v_add_u32 v{vSR}, 32, v{vSR}")
        for ii in range(8):
            if ii == 0 and dprev is not None and dprev != dc:
                a(f"s_waitcnt vmcnt({dprev-1})")
                for n in range(dprev, dc + 1):
                    vload(n & 7, f"s{sCUR}" if n < 8 else f"s{sNXT}")
            else:
                n = ii + dc
                a(f"s_waitcnt vmcnt({dc-1})")
                vload(n & 7, f"s{sCUR}" if n < 8 else f"s{sNXT}")
            vconsume(ii, S)
    def adv():
        a(f"s_mov_b32 s{sCUR}, s{sNXT}")
        a(f"s_add_u32 s{sNXT}, s{sNXT}, 32768")
    a(f"s_mov_b32 s{sCUR}, 0")
    a(f"s_mov_b32 s{sNXT}, 32768")
    dE, GE = p.dE, p.GE
    assert GE % 2 == 0 and GE >= 4
    G0 = 32 - GE
    a.label("L_vloop")
    a(f"v_add_u32 v{vPG}, 2, v{vPG}")
    a(f"ds_write_b32 v{vPA}, v{vPG} offset:{L_VP}")
    for half in range(2):
        vgroup(vS0 if half == 0 else vS1, vS1 if half == 0 else vS0, d)
        adv()
    a(f"s_cmp_lt_u32 s{sCUR}, {G0*32768}")
    a(f"s_cbranch_scc1 L_vloop")
    vgroup(vS0, vS1, dE, d); adv()
    vgroup(vS1, vS0, dE); adv()
    if GE > 4:
        a.label("L_vloop2")
        for half in range(2):
            vgroup(vS0 if half == 0 else vS1, vS1 if half == 0 else vS0, dE)
            adv()
        a(f"s_cmp_lt_u32 s{sCUR}, {30*32768}")
        a(f"s_cbranch_scc1 L_vloop2")
    vgroup(vS0, vS1, dE)
    a(f"s_mov_b32 s{sCUR}, s{sNXT}")
    a("s_waitcnt lgkmcnt(0)")
    for ii in range(8):
        n = ii + dE
        issued_before = min(ii + dE, 8)
        a(f"s_waitcnt vmcnt({issued_before - 1 - ii})")
        if n < 8:
            vload(n, f"s{sCUR}")
        vconsume(ii, vS1)
    stamp(6)
    a(f"v_and_b32 v{vT}, 7, v2")
    a(f"v_lshlrev_b32 v{vT}, 2, v{vT}")
    a(f"v_lshl_add_u32 v{vT}, v3, 7, v{vT}")
    a(f"s_lshl_b32 s{sT0}, s{sWV}, 9")
    a(f"v_add_u32 v{vT}, s{sT0}, v{vT}")
    a("s_nop 3")
    for r in range(4):
        a(f"v_add_f32 v{vD+r}, v{vD+r}, v{vD2+r}")
    a("s_nop 1")
    for r in range(4):
        a(f"v_add_f32_dpp v{vD+r}, v{vD+r}, v{vD+r} row_ror:8 row_mask:0xf bank_mask:0xf")
    for r in range(4):
        a(f"ds_write_b32 v{vT}, v{vD+r} offset:{L_OA + r*32}")
    a("s_waitcnt lgkmcnt(0)")
    a("s_barrier")
    stamp(7)
    dump_stamps(8, vT)
    a("s_endpgm")

    a.label("L_helper")
    hSEL = 4
    hB = 8
    hD = 12
    hP = 16
    hT = 48
    hVO = 96
    hDA = 98
    hG = 100
    hW = 128
    a(f"s_sub_u32 s{sHW}, s{sWV}, 4")
    a(f"v_lshlrev_b32 v{hT}, 4, v0")
    a(f"s_lshl_b32 s{sT0}, s{sB}, 10")
    a(f"s_mov_b32 s{SRD_W+2}, 0x400000"); a(f"s_mov_b32 s{SRD_W+3}, 0x00020000")
    a(f"v_lshlrev_b32 v{hVO}, 18, v3")
    a(f"v_lshl_add_u32 v{hVO}, v2, 4, v{hVO}")
    if p.wmap == 0:
        a(f"s_lshr_b32 s{sK8}, s2, 5")
    elif p.wmap == 5:
        a(f"s_lshl_b32 s{sK8}, s{sC}, 1")
    else:
        a(f"s_lshl_b32 s{sK8}, s{sB}, 2")
        a(f"s_and_b32 s{sT0+1}, s{sC}, 1")
        a(f"s_lshl_b32 s{sT0+1}, s{sT0+1}, 1")
        a(f"s_add_u32 s{sK8}, s{sK8}, s{sT0+1}")
        a(f"s_lshr_b32 s{sT0+1}, s{sC}, 1")
        a(f"s_add_u32 s{sK8}, s{sK8}, s{sT0+1}")
    a("s_waitcnt lgkmcnt(0)")
    stamp(1, "S")
    a(f"s_add_u32 s{sT0+2}, s{sX}, s{sT0}")
    a(f"s_addc_u32 s{sT0+3}, s{sX+1}, 0")
    a(f"global_load_dwordx4 {vr(hT+4)}, v{hT}, {sr(sT0+2)}")
    a(f"s_mov_b32 s{SRD_W}, s{sWQ}"); a(f"s_mov_b32 s{SRD_W+1}, s{sWQ+1}")
    a(f"s_lshl_b32 s{sT0}, s{sHW}, 20")
    a(f"s_lshl_b32 s{sT0+1}, s{sH}, 8")
    a(f"s_add_u32 s{sT0}, s{sT0}, s{sT0+1}")

    def gemv_step(W, Pk, first, D=hD):
        for r in range(4):
            a(f"v_perm_b32 v{hB+r}, v{Pk}, v{Pk}, v{hSEL+r}")
        a("s_nop 1")
        a(f"v_mfma_f32_16x16x32_bf16 {vr(D)}, {vr(W)}, {vr(hB)}, {'0' if first else vr(D)}")

    X, S, Q = hT + 8, hT + 16, hT + 24
    sR = sT0 + 4
    chunks = []
    def chunk(f): chunks.append(f)
    def c_sel():
        emit_selectors(a, hSEL, hT+8)
    def c_clear():
        a(f"s_cmp_lg_u32 s{sHW}, 0")
        a(f"s_cbranch_scc1 L_h_noclr")
        for r in range(4): a(f"v_mov_b32 v{hT+8+r}, 0")
        a(f"ds_write_b128 v{hT}, {vr(hT+8)} offset:{L_Z}")
        a(f"ds_write_b128 v{hT}, {vr(hT+8)} offset:{L_Z+1024}")
        a.label("L_h_noclr")
        a(f"v_and_b32 v{hDA}, 7, v2")
        a(f"v_lshlrev_b32 v{hDA}, 2, v{hDA}")
        a(f"v_lshl_add_u32 v{hDA}, v3, 7, v{hDA}")
    def c_ln1():
        for r in range(4):
            a(f"v_lshlrev_b32 v{X+2*r}, 16, v{hT+4+r}")
            a(f"v_and_b32 v{X+2*r+1}, 0xffff0000, v{hT+4+r}")
        a(f"v_add_f32 v{S}, v{X}, v{X+1}")
        for e in range(2, 8):
            a(f"v_add_f32 v{S}, v{S}, v{X+e}")
    def c_ln2():
        wave_allreduce_add(a, S, sR)
    def c_ln3():
        a(f"v_mul_f32 v{S}, {f32bits(1.0/512):#x}, v{S}")
        for e in range(8):
            a(f"v_sub_f32 v{X+e}, v{X+e}, v{S}")
        a(f"v_mul_f32 v{S+1}, v{X}, v{X}")
        for e in range(1, 8):
            a(f"v_fmac_f32 v{S+1}, v{X+e}, v{X+e}")
    def c_ln4():
        wave_allreduce_add(a, S + 1, sR)
    def c_ln5():
        a(f"v_mov_b32 v{S+2}, {f32bits(1e-5):#x}")
        a(f"v_fmac_f32 v{S+2}, {f32bits(1.0/512):#x}, v{S+1}")
        a(f"v_sqrt_f32 v{S+2}, v{S+2}")
        a("s_nop 0")
        a(f"v_rcp_f32 v{S+2}, v{S+2}")
        a("s_nop 0")
        for e in range(8):
            a(f"v_mul_f32 v{X+e}, v{X+e}, v{S+2}")
    def c_ln6(lo, hi):
        def f():
            for e in range(lo, hi):
                a(f"v_cvt_pk_bf16_f32 v{S+3}, v{X+e}, v{X+e}")
                a(f"v_and_b32 v{S+3}, 0xffff0000, v{S+3}")
                a(f"v_sub_f32 v{S+4}, v{X+e}, v{S+3}")
                a(f"v_cvt_pk_bf16_f32 v{Q+e}, v{S+3}, v{S+4}")
        return f
    def c_ln7():
        a(f"s_lshl_b32 s{sR}, s{sHW}, 11")
        a(f"v_lshlrev_b32 v{hT+1}, 5, v0")
        a(f"v_add_u32 v{hT+1}, s{sR}, v{hT+1}")
        a(f"ds_write_b128 v{hT+1}, {vr(Q)} offset:{L_XP}")
        a(f"ds_write_b128 v{hT+1}, {vr(Q+4)} offset:{L_XP+16}")
        a(f"s_mul_i32 s{sR}, s{sHW}, {2048+512}")
        a(f"v_lshlrev_b32 v{hT+1}, 7, v3")
        a(f"v_add_u32 v{hT+1}, s{sR}, v{hT+1}")
    def c_ln8():
        a("s_waitcnt lgkmcnt(0)")
        for i in range(8):
            a(f"s_add_u32 s{sR}, s{sK8}, {i}")
            a(f"s_and_b32 s{sR}, s{sR}, 7")
            a(f"s_lshl_b32 s{sR}, s{sR}, 4")
            a(f"v_add_u32 v{hT+2}, s{sR}, v{hT+1}")
            a(f"ds_read_b128 {vr(hP+4*i)}, v{hT+2} offset:{L_XP}")
    def c_ln9():
        a("s_waitcnt lgkmcnt(0)")
        stamp(4, "S")
    pre = [c_sel, c_clear]
    post = [c_ln1, c_ln2, c_ln3, c_ln4, c_ln5, c_ln6(0, 4), c_ln6(4, 8), c_ln7, c_ln8, c_ln9]
    dQ = p.dQ
    next_gemv = 0
    for n in range(32):
        i, r = n >> 2, n & 3
        if n >= dQ:
            a(f"s_waitcnt vmcnt({dQ-1})")
            if n == dQ: stamp(3, "S")
        if r == 0:
            a(f"s_add_u32 s{sT0+1}, s{sK8}, {i}")
            a(f"s_and_b32 s{sT0+1}, s{sT0+1}, 7")
            a(f"s_lshl_b32 s{sT0+1}, s{sT0+1}, 15")
            a(f"s_add_u32 s{sT0+1}, s{sT0+1}, s{sT0}")
        else:
            a(f"s_add_u32 s{sT0+1}, s{sT0+1}, 8192")
        a(f"buffer_load_dwordx4 {vr(hW+4*n)}, v{hVO}, {sr(SRD_W,4)}, s{sT0+1} offen {p.wflags}")
        if pre:
            pre.pop(0)()
        elif n >= dQ and post:
            post.pop(0)()
        elif n >= dQ:
            landed = n - dQ
            k = 0
            while next_gemv <= landed and k < 3:
                gemv_step(hW+4*next_gemv, hP+next_gemv, next_gemv == 0); next_gemv += 1; k += 1
    stamp(2, "S")
    assert not post
    while next_gemv < 32:
        a(f"s_waitcnt vmcnt({31-next_gemv})")
        gemv_step(hW+4*next_gemv, hP+next_gemv, next_gemv == 0); next_gemv += 1
    stamp(6, "S")
    a(f"s_lshl_b32 s{sT0}, s{sHW}, 9")
    a(f"v_add_u32 v{hT}, s{sT0}, v{hDA}")
    a("s_nop 7")
    for r in range(4):
        a(f"v_add_f32_dpp v{hD+r}, v{hD+r}, v{hD+r} row_ror:8 row_mask:0xf bank_mask:0xf")
    for r in range(4):
        a(f"ds_write_b32 v{hT}, v{hD+r} offset:{L_QP + r*32}")
    a("s_waitcnt lgkmcnt(0)")
    stamp(2); stamp(7, "S")
    a("s_barrier")

    def paced_gemv(stride, first, D, dF):
        def ld(n):
            a(f"buffer_load_dwordx4 {vr(hW+4*n)}, v{hVO}, {sr(SRD_W,4)}, s{sT0} offen {p.wflags}")
            a(f"s_add_u32 s{sT0}, s{sT0}, {stride}")
        for n in range(dF): ld(n)
        a("s_waitcnt lgkmcnt(0)")
        for n in range(32):
            a(f"s_waitcnt vmcnt({min(dF-1, 31-n)})")
            if n + dF < 32: ld(n + dF)
            gemv_step(hW+4*n, hP+n, first and n == 0, D)

    a(f"s_mov_b32 s{sFIRST}, 0")
    a(f"s_cmp_lg_u32 s{sHW}, 1")
    a(f"s_cbranch_scc1 L_h_noinit")
    a(f"v_mov_b32 v{hT}, 0")
    a(f"v_mov_b32 v{hT+1}, 1")
    a(f"s_mov_b64 exec, 1")
    a(f"global_atomic_add v{hT+2}, v{hT}, v{hT+1}, {sr(sDBG)} sc0")
    a("s_waitcnt vmcnt(0)")
    a(f"v_readfirstlane_b32 s{sT0}, v{hT+2}")
    a(f"s_mov_b64 exec, -1")
    a(f"s_cmp_lg_u32 s{sT0}, 0")
    a(f"s_cbranch_scc1 L_h_noinit")
    a(f"s_mov_b32 s{sFIRST}, 1")
    for r in range(4):
        a(f"v_mov_b32 v{hT+4+r}, 0")
    a(f"v_lshlrev_b32 v{hT}, 4, v0")
    for k in range(ZERO_BYTES // 1024):
        a(f"global_store_dwordx4 v{hT}, {vr(hT+4)}, {sr(sWS)} sc0 sc1")
        a(f"v_add_u32 v{hT}, 1024, v{hT}")
    a("s_waitcnt vmcnt(0)")
    a(f"v_mov_b32 v{hT}, 0")
    a(f"v_mov_b32 v{hT+1}, 1")
    a(f"s_mov_b64 exec, 1")
    a(f"global_atomic_add v{hT}, v{hT+1}, {sr(sDBG)} offset:4")
    a(f"s_mov_b64 exec, -1")
    a.label("L_h_noinit")

    if p.noffn: a("s_branch L_h_noffn")
    a(f"s_cmp_lg_u32 s{sC}, 1")
    a(f"s_cbranch_scc1 L_h_noffn")
    a(f"s_cmp_ge_u32 s{sH}, 14")
    a(f"s_cbranch_scc1 L_h_noffn")
    a(f"v_mul_u32_u24 v{hVO}, {32*3584}, v3")
    a(f"v_lshl_add_u32 v{hVO}, v2, 4, v{hVO}")
    a(f"s_mul_i32 s{sT0}, s{sHW}, {2048+512}")
    a(f"v_lshlrev_b32 v{hT+1}, 7, v3")
    a(f"v_add_u32 v{hT+1}, s{sT0}, v{hT+1}")
    for i in range(8):
        a(f"ds_read_b128 {vr(hP+4*i)}, v{hT+1} offset:{L_XP+16*i}")
    for mat, (sP, Lacc) in enumerate([(sW1, L_GA), (sW3, L_UA)]):
        a(f"s_mov_b32 s{SRD_W}, s{sP}"); a(f"s_mov_b32 s{SRD_W+1}, s{sP+1}")
        a(f"s_mov_b32 s{SRD_W+2}, {512*3584}")
        a(f"s_mul_i32 s{sT0}, s{sHW}, {128*3584}")
        a(f"s_lshl_b32 s{sT0+1}, s{sH}, 8")
        a(f"s_add_u32 s{sT0}, s{sT0}, s{sT0+1}")
        paced_gemv(3584, True, hD, p.dF)
        a("s_nop 7")
        for r in range(4):
            a(f"v_add_f32_dpp v{hD+r}, v{hD+r}, v{hD+r} row_ror:8 row_mask:0xf bank_mask:0xf")
        a(f"s_mov_b32 s{sT0+6}, 0x00ff00ff"); a(f"s_mov_b32 s{sT0+7}, 0x00ff00ff")
        a(f"s_mov_b64 exec, {sr(sT0+6)}")
        for r in range(4):
            a(f"ds_add_f32 v{hDA}, v{hD+r} offset:{Lacc + r*32}")
        a(f"s_mov_b64 exec, -1")
    a("s_waitcnt lgkmcnt(0)")
    a(f"v_mov_b32 v{hT}, 0")
    a(f"v_mov_b32 v{hT+1}, 1")
    a(f"s_mov_b64 exec, 1")
    a(f"ds_add_u32 v{hT}, v{hT+1} offset:{L_FC}")
    a(f"s_mov_b64 exec, -1")
    a.label("L_ffn_sync")
    a("s_sleep 4")
    a(f"ds_read_b32 v{hT+1}, v{hT} offset:{L_FC}")
    a("s_waitcnt lgkmcnt(0)")
    a(f"v_cmp_ne_u32 vcc, 4, v{hT+1}")
    a(f"s_cbranch_vccnz L_ffn_sync")
    a(f"v_lshlrev_b32 v{hT+1}, 7, v3")
    U = hT + 8
    for i in range(8):
        a(f"ds_read_b128 {vr(hP+4*i)}, v{hT+1} offset:{L_GA+16*i}")
        a(f"ds_read_b128 {vr(U+4*i)}, v{hT+1} offset:{L_UA+16*i}")
    a(f"s_mov_b32 s{sT0}, {f32bits(-math.log2(math.e)):#x}")
    a("s_waitcnt lgkmcnt(0)")
    for n in range(32):
        g_, u_ = hP + n, U + n
        a(f"v_mul_f32 v{hT}, s{sT0}, v{g_}")
        a(f"v_exp_f32 v{hT}, v{hT}")
        a("s_nop 0")
        a(f"v_add_f32 v{hT}, 1.0, v{hT}")
        a(f"v_rcp_f32 v{hT}, v{hT}")
        a("s_nop 0")
        a(f"v_mul_f32 v{hT}, v{hT}, v{g_}")
        a(f"v_mul_f32 v{hT}, v{hT}, v{u_}")
        a(f"v_cvt_pk_bf16_f32 v{hT+1}, v{hT}, v{hT}")
        a(f"v_and_b32 v{hT+1}, 0xffff0000, v{hT+1}")
        a(f"v_sub_f32 v{hT+2}, v{hT}, v{hT+1}")
        a(f"v_cvt_pk_bf16_f32 v{g_}, v{hT+1}, v{hT+2}")
    a(f"s_mov_b32 s{SRD_W}, s{sW2}"); a(f"s_mov_b32 s{SRD_W+1}, s{sW2+1}")
    a(f"s_mov_b32 s{SRD_W+2}, {1792*1024}")
    a(f"v_lshlrev_b32 v{hVO}, 15, v3")
    a(f"v_lshl_add_u32 v{hVO}, v2, 4, v{hVO}")
    a(f"s_lshl_b32 s{sT0}, s{sH}, 17")
    a(f"s_lshl_b32 s{sT0+2}, s{sHW}, 8")
    a(f"s_add_u32 s{sT0}, s{sT0}, s{sT0+2}")
    paced_gemv(1024, True, hD, p.dF)
    a("s_nop 7")
    for r in range(4):
        a(f"v_add_f32_dpp v{hD+r}, v{hD+r}, v{hD+r} row_ror:8 row_mask:0xf bank_mask:0xf")
    emit_wait_flag(a, "ffn", sDBG, hT)
    emit_y_addr(a, hT+4, hDA, sT0+4, sB, sHW)
    emit_atomic_y(a, hD, hT+4, sWS, sT0+6)
    a.label("L_h_noffn")
    stamp(3)

    a(f"s_mov_b32 s{SRD_W}, s{sWO}"); a(f"s_mov_b32 s{SRD_W+1}, s{sWO+1}")
    a(f"s_mov_b32 s{SRD_W+2}, 0x400000")
    a(f"v_lshlrev_b32 v{hVO}, 15, v3")
    a(f"v_lshl_add_u32 v{hVO}, v2, 4, v{hVO}")
    a(f"s_lshl_b32 s{sT0}, s{sH}, 17")
    a(f"s_lshl_b32 s{sT0+2}, s{sHW}, 8")
    a(f"s_add_u32 s{sT0}, s{sT0}, s{sT0+2}")
    for n in range(0 if p.nowo else 32):
        if n >= p.dW:
            a(f"s_waitcnt vmcnt({p.dW-1})")
        a(f"buffer_load_dwordx4 {vr(hW+4*n)}, v{hVO}, {sr(SRD_W,4)}, s{sT0} offen {p.wflags}")
        a(f"s_add_u32 s{sT0}, s{sT0}, 1024")
    stamp(4)

    if p.noml: a("s_branch L_h_noml")
    a(f"s_cmp_lg_u32 s{sHW}, 0")
    a(f"s_cbranch_scc1 L_h_noml")
    a(f"v_mov_b32 v{hT}, 0")
    a.label("L_ml_poll")
    a("s_sleep 16")
    a(f"ds_read_b128 {vr(hT+4)}, v{hT} offset:{L_KF}")
    a("s_waitcnt lgkmcnt(0)")
    a(f"v_and_b32 v{hT+4}, v{hT+4}, v{hT+5}")
    a(f"v_and_b32 v{hT+6}, v{hT+6}, v{hT+7}")
    a(f"v_and_b32 v{hT+4}, v{hT+4}, v{hT+6}")
    a(f"v_cmp_eq_u32 vcc, 1, v{hT+4}")
    a(f"s_cbranch_vccz L_ml_poll")
    a(f"ds_read_b128 {vr(hT+4)}, v{hT} offset:{L_ML}")
    a(f"ds_read_b128 {vr(hT+8)}, v{hT} offset:{L_ML+16}")
    a("s_waitcnt lgkmcnt(0)")
    m = [hT+4, hT+6, hT+8, hT+10]; l = [hT+5, hT+7, hT+9, hT+11]
    MC, LC = hT+12, hT+13
    a(f"v_max_f32 v{MC}, v{m[0]}, v{m[1]}")
    a(f"v_max3_f32 v{MC}, v{MC}, v{m[2]}, v{m[3]}")
    for k in range(4):
        a(f"v_sub_f32 v{hT+16+k}, v{m[k]}, v{MC}")
    for k in range(4):
        a(f"v_exp_f32 v{hT+16+k}, v{hT+16+k}")
    a("s_nop 0")
    a(f"v_mul_f32 v{LC}, v{l[0]}, v{hT+16}")
    for k in range(1, 4):
        a(f"v_fmac_f32 v{LC}, v{l[k]}, v{hT+16+k}")
    a(f"s_lshl_b32 s{sT0}, s{sBH}, 5")
    a(f"s_lshl_b32 s{sT0+1}, s{sC}, 3")
    a(f"s_add_u32 s{sT0+1}, s{sT0+1}, s{sT0}")
    a(f"s_add_u32 s{sT0+1}, s{sT0+1}, {W_ML}")
    a(f"v_mov_b32 v{hT+20}, s{sT0+1}")
    a(f"s_lshr_b32 s{sT0+2}, s{sBH}, 3")
    a(f"s_lshl_b32 s{sT0+2}, s{sT0+2}, 2")
    a(f"s_add_u32 s{sT0+2}, s{sT0+2}, 32")
    a(f"s_and_b32 s{sT0+3}, s{sBH}, 7")
    a(f"s_lshl_b32 s{sT0+3}, s{sT0+3}, 2")
    a(f"s_lshl_b32 s{sT0+4}, 1, s{sT0+3}")
    a(f"v_mov_b32 v{hT+21}, s{sT0+2}")
    a(f"v_mov_b32 v{hT+22}, s{sT0+4}")
    a(f"s_mov_b64 exec, 1")
    a(f"global_store_dwordx2 v{hT+20}, v[{MC}:{LC}], {sr(sWS)} sc0 sc1")
    a("s_waitcnt vmcnt(0)")
    a(f"global_atomic_add v{hT+21}, v{hT+22}, {sr(sDBG)}")
    a(f"s_mov_b64 exec, -1")
    a.label("L_vp_poll")
    a("s_sleep 32")
    a(f"ds_read_b32 v{hT+23}, v{hT} offset:{L_VP}")
    a("s_waitcnt lgkmcnt(0)")
    a(f"v_cmp_gt_u32 vcc, {p.vsig}, v{hT+23}")
    a(f"s_cbranch_vccnz L_vp_poll")
    a.label("L_grp_poll")
    a(f"global_load_dword v{hT+23}, v{hT+21}, {sr(sDBG)} sc0 sc1")
    a("s_waitcnt vmcnt(0)")
    a(f"v_lshrrev_b32 v{hT+23}, s{sT0+3}, v{hT+23}")
    a(f"v_and_b32 v{hT+23}, 15, v{hT+23}")
    a(f"v_cmp_eq_u32 vcc, 4, v{hT+23}")
    a(f"s_cbranch_vccnz L_grp_done")
    a("s_sleep 64")
    a("s_branch L_grp_poll")
    a.label("L_grp_done")
    a(f"v_and_b32 v{hT+24}, 3, v0")
    a(f"v_lshlrev_b32 v{hT+24}, 3, v{hT+24}")
    a(f"s_add_u32 s{sT0}, s{sT0}, {W_ML}")
    a(f"v_add_u32 v{hT+24}, s{sT0}, v{hT+24}")
    a(f"global_load_dwordx2 v[{hT+26}:{hT+27}], v{hT+24}, {sr(sWS)} sc0 sc1")
    a("s_waitcnt vmcnt(0)")
    GM, GL = hT+28, hT+29
    a(f"v_max_f32_dpp v{GM}, v{hT+26}, v{hT+26} quad_perm:[1,0,3,2] row_mask:0xf bank_mask:0xf")
    a("s_nop 1")
    a(f"v_max_f32_dpp v{GM}, v{GM}, v{GM} quad_perm:[2,3,0,1] row_mask:0xf bank_mask:0xf")
    a("s_nop 1")
    a(f"v_sub_f32 v{GL}, v{hT+26}, v{GM}")
    a(f"v_exp_f32 v{GL}, v{GL}")
    a("s_nop 0")
    a(f"v_mul_f32 v{GL}, v{GL}, v{hT+27}")
    a("s_nop 1")
    a(f"v_add_f32_dpp v{GL}, v{GL}, v{GL} quad_perm:[1,0,3,2] row_mask:0xf bank_mask:0xf")
    a("s_nop 1")
    a(f"v_add_f32_dpp v{GL}, v{GL}, v{GL} quad_perm:[2,3,0,1] row_mask:0xf bank_mask:0xf")
    a("s_nop 1")
    a(f"v_rcp_f32 v{GL}, v{GL}")
    for k in range(4):
        a(f"v_sub_f32 v{hT+16+k}, v{m[k]}, v{GM}")
    for k in range(4):
        a(f"v_exp_f32 v{hT+16+k}, v{hT+16+k}")
    a("s_nop 0")
    for k in range(4):
        a(f"v_mul_f32 v{hT+16+k}, v{hT+16+k}, v{GL}")
    a(f"ds_write_b128 v{hT}, {vr(hT+16)} offset:{L_F}")
    emit_wait_flag(a, "ml", sDBG, hT+30)
    a.label("L_h_noml")
    emit_y_addr(a, hT+40, hDA, sT0+4, sB, sHW)
    a("s_waitcnt vmcnt(0) lgkmcnt(0)")
    stamp(5)
    a("s_barrier")
    stamp(6)
    a(f"v_mov_b32 v{hT}, 0")
    a(f"ds_read_b128 {vr(hT+4)}, v{hT} offset:{L_F}")
    a(f"v_lshlrev_b32 v{hT+1}, 7, v3")
    O = hT + 8
    for w in range(4):
        dst = hP if w == 0 else O
        for i in range(8):
            a(f"ds_read_b128 {vr(dst+4*i)}, v{hT+1} offset:{L_OA + w*512 + 16*i}")
        a("s_waitcnt lgkmcnt(0)")
        for n in range(32):
            if w == 0:
                a(f"v_mul_f32 v{hP+n}, v{hP+n}, v{hT+4}")
            else:
                a(f"v_fmac_f32 v{hP+n}, v{O+n}, v{hT+4+w}")
    for n in range(32):
        a(f"v_cvt_pk_bf16_f32 v{O}, v{hP+n}, v{hP+n}")
        a(f"v_and_b32 v{O}, 0xffff0000, v{O}")
        a(f"v_sub_f32 v{O+1}, v{hP+n}, v{O}")
        a(f"v_cvt_pk_bf16_f32 v{hP+n}, v{O}, v{O+1}")
        gemv_step(hW+4*n, hP+n, n == 0)
    a("s_nop 7")
    for r in range(4):
        a(f"v_add_f32_dpp v{hD+r}, v{hD+r}, v{hD+r} row_ror:8 row_mask:0xf bank_mask:0xf")
    emit_atomic_y(a, hD, hT+40, sWS, sT0+6)
    a("s_waitcnt vmcnt(0)")
    stamp(7)
    a("s_barrier")
    a(f"s_cmp_lg_u32 s{sHW}, 0")
    a(f"s_cbranch_scc1 L_h_noarr")
    a(f"s_lshr_b32 s{sT0}, s2, 4")
    a(f"s_lshl_b32 s{sT0}, s{sT0}, 8")
    a(f"s_add_u32 s{sT0}, s{sT0}, {W_CNT}")
    a(f"v_mov_b32 v{hT}, s{sT0}")
    a(f"v_mov_b32 v{hT+1}, 1")
    a(f"s_mov_b64 exec, 1")
    a(f"global_atomic_add v{hT}, v{hT+1}, {sr(sWS)}")
    a(f"s_mov_b64 exec, -1")
    a.label("L_h_noarr")
    a(f"s_cmp_eq_u32 s{sFIRST}, 0")
    a(f"s_cbranch_scc1 L_hend")
    a(f"v_and_b32 v{hT}, {NCNT-1}, v0")
    a(f"v_lshlrev_b32 v{hT}, 8, v{hT}")
    a(f"v_add_u32 v{hT}, {W_CNT}, v{hT}")
    a(f"v_lshlrev_b32 v{hT+1}, 5, v0")
    a(f"global_load_dwordx4 {vr(hT+4)}, v{hT+1}, {sr(sX)}")
    a(f"global_load_dwordx4 {vr(hT+8)}, v{hT+1}, {sr(sX)} offset:16")
    a.label("L_fin_poll")
    a(f"global_load_dword v{hT+2}, v{hT}, {sr(sWS)} sc0 sc1")
    a("s_waitcnt vmcnt(0)")
    a(f"v_cmp_ne_u32 vcc, {256//NCNT}, v{hT+2}")
    a(f"s_cbranch_vccnz L_fin_poll")
    stamp(8)
    a(f"v_lshlrev_b32 v{hT}, 6, v0")
    for rep in range(NREP):
        for k in range(4):
            a(f"global_load_dwordx4 {vr(hW + rep*16 + 4*k)}, v{hT}, {sr(sWS)} offset:{16*k} sc0 sc1")
        a(f"v_add_u32 v{hT}, 4096, v{hT}")
    for rep in range(1, NREP):
        a(f"s_waitcnt vmcnt({(NREP-1-rep)*4})")
        for e in range(16):
            a(f"v_add_f32 v{hW+e}, v{hW+e}, v{hW+rep*16+e}")
    for r in range(8):
        a(f"v_lshlrev_b32 v{hT+12}, 16, v{hT+4+r}")
        a(f"v_and_b32 v{hT+13}, 0xffff0000, v{hT+4+r}")
        a(f"v_add_f32 v{hW+2*r}, v{hW+2*r}, v{hT+12}")
        a(f"v_add_f32 v{hW+2*r+1}, v{hW+2*r+1}, v{hT+13}")
        a(f"v_cvt_pk_bf16_f32 v{hT+16+r}, v{hW+2*r}, v{hW+2*r+1}")
    a(f"global_store_dwordx4 v{hT+1}, {vr(hT+16)}, {sr(sOUT)}")
    a(f"global_store_dwordx4 v{hT+1}, {vr(hT+20)}, {sr(sOUT)} offset:16")
    a.label("L_hend")
    stamp(9)
    dump_stamps(10, hT)
    a.label("L_end")
    a("s_endpgm")

    kd = f""".section .rodata,"a"
.p2align 6
.amdhsa_kernel {NAME}
  .amdhsa_next_free_vgpr 256
  .amdhsa_next_free_sgpr 102
  .amdhsa_accum_offset 256
  .amdhsa_group_segment_fixed_size 0
  .amdhsa_kernarg_size 96
  .amdhsa_user_sgpr_count 2
  .amdhsa_user_sgpr_kernarg_segment_ptr 1
  .amdhsa_system_sgpr_workgroup_id_x 1
.end_amdhsa_kernel
"""
    txt = HEADER + f"; @launch grid=(256,1,1) block=(512,1,1) lds={LDS_BYTES}\n"
    txt += f'.amdgcn_target "amdgcn-amd-amdhsa--gfx950"\n.text\n.globl {NAME}\n.p2align 8\n.type {NAME},@function\n'
    txt += a.text() + kd
    return txt

def emit_selectors(a, vSEL, vT):
    a(f"v_lshrrev_b32 v{vT}, 3, v2")
    a(f"v_mul_u32_u24 v{vT}, 0x0202, v{vT}")
    a(f"v_add_u32 v{vT}, 0x0100, v{vT}")
    a(f"v_lshlrev_b32 v{vT+1}, 16, v{vT}")
    a(f"v_or_b32 v{vT+1}, 0x0c0c, v{vT+1}")
    a(f"v_or_b32 v{vT}, 0x0c0c0000, v{vT}")
    a(f"v_and_b32 v{vT+2}, 1, v2")
    a(f"v_cmp_eq_u32 vcc, 1, v{vT+2}")
    a("s_nop 1")
    a(f"v_cndmask_b32 v{vT}, v{vT}, v{vT+1}, vcc")
    a(f"v_bfe_u32 v{vT+2}, v2, 1, 2")
    a(f"v_mov_b32 v{vT+1}, 0x0c0c0c0c")
    for r in range(4):
        a(f"v_cmp_eq_u32 vcc, {r}, v{vT+2}")
        a("s_nop 1")
        a(f"v_cndmask_b32 v{vSEL+r}, v{vT+1}, v{vT}, vcc")

def wave_allreduce_add(a, v, sT):
    a("s_nop 1")
    a(f"v_add_f32_dpp v{v}, v{v}, v{v} quad_perm:[1,0,3,2] row_mask:0xf bank_mask:0xf")
    a("s_nop 1")
    a(f"v_add_f32_dpp v{v}, v{v}, v{v} quad_perm:[2,3,0,1] row_mask:0xf bank_mask:0xf")
    a("s_nop 1")
    a(f"v_add_f32_dpp v{v}, v{v}, v{v} row_half_mirror row_mask:0xf bank_mask:0xf")
    a("s_nop 1")
    a(f"v_add_f32_dpp v{v}, v{v}, v{v} row_mirror row_mask:0xf bank_mask:0xf")
    a("s_nop 1")
    for k in range(4):
        a(f"v_readlane_b32 s{sT+k}, v{v}, {16*k}")
    a("s_nop 1")
    a(f"v_mov_b32 v{v}, s{sT}")
    a(f"v_add_f32 v{v}, s{sT+1}, v{v}")
    a(f"v_add_f32 v{v}, s{sT+2}, v{v}")
    a(f"v_add_f32 v{v}, s{sT+3}, v{v}")

def emit_wait_flag(a, tag, sDBG, vT):
    a(f"v_mov_b32 v{vT}, 0")
    a.label(f"L_flag_{tag}")
    a(f"global_load_dword v{vT+1}, v{vT}, s[{sDBG}:{sDBG+1}] offset:4 sc0 sc1")
    a("s_waitcnt vmcnt(0)")
    a(f"v_cmp_eq_u32 vcc, 0, v{vT+1}")
    a(f"s_cbranch_vccnz L_flag_{tag}")

def emit_y_addr(a, vaddr, hDA, sT, sB, sHW):
    a(f"s_and_b32 s{sT}, s2, {NREP-1}")
    a(f"s_lshl_b32 s{sT}, s{sT}, 12")
    a(f"s_lshl_b32 s{sT+1}, s{sB}, 11")
    a(f"s_add_u32 s{sT}, s{sT}, s{sT+1}")
    a(f"s_lshl_b32 s{sT+1}, s{sHW}, 9")
    a(f"s_add_u32 s{sT}, s{sT}, s{sT+1}")
    a(f"v_add_u32 v{vaddr}, s{sT}, v{hDA}")

def emit_atomic_y(a, D, vaddr, sWS, sTmp):
    a(f"s_mov_b32 s{sTmp}, 0x00ff00ff"); a(f"s_mov_b32 s{sTmp+1}, 0x00ff00ff")
    a(f"s_mov_b64 exec, s[{sTmp}:{sTmp+1}]")
    for r in range(4):
        a(f"global_atomic_add_f32 v{vaddr}, v{D+r}, s[{sWS}:{sWS+1}] offset:{r*32}")
    a(f"s_mov_b64 exec, -1")

if __name__ == "__main__":
    out = sys.argv[1] if len(sys.argv) > 1 else OUT
    if out == "-": out = OUT
    for kv in sys.argv[2:]:
        k, v = kv.split("=", 1)
        cur = getattr(P, k)
        setattr(P, k, (v == "1") if isinstance(cur, bool) else type(cur)(v))
    open(out, "w").write(gen())
    print("wrote", out)
```

```python
import sys, os, math, struct

NAME = "parallel_sum__mha_block_cached__glu_gated_swiglu__decode_kernel"
OUT = "parallel_sum__mha_block_cached__glu_gated_swiglu__decode.s"

HEADER = """; Kernarg layout for this problem (96 bytes, ptrs only, base s[0:1]):
"""

class P:
    d = 5
    dA = 5
    NR = 48
    NL = 32
    NB = 64
    dQ = 3
    dF = 2
    dW = 4
    kvflags = "nt"
    wflags = ""
    stamps = False
    stampset = 'A'
    noffn = False
    nowo = False
    noml = False
    dE = 7
    ctl = False
    cdelta = 1
    csleep = 64
    wmap = 1
    GE = 8
    vsig = 22

class Asm:
    def __init__(self):
        self.L = []
    def __call__(self, s):
        self.L.append("    " + s)
    def label(self, s):
        self.L.append(s + ":")
    def c(self, s):
        self.L.append("    ; " + s)
    def text(self):
        return "\n".join(self.L) + "\n"

def vr(b, n=4):
    return f"v[{b}:{b+n-1}]"
def sr(b, n=2):
    return f"s[{b}:{b+n-1}]"
def f32bits(x):
    return struct.unpack("<I", struct.pack("<f", x))[0]

RS = 1040
L_ST = 0
L_XP = 16640
L_QP = L_XP + 8192
L_Z = L_QP + 2048
L_ML = L_Z
L_KF = L_Z + 32
L_F = L_Z + 64
L_VP = L_Z + 80
L_FC = L_Z + 96
L_FR = L_Z + 100
L_FI = L_Z + 104
L_PB = L_Z + 112
L_MD = L_Z + 128
L_GA = L_Z + 512
L_UA = L_Z + 1024
L_OA = L_Z + 2048
L_KB = L_OA + 2048
def lds_bytes(NL): return (L_KB + 4 * NL * 1024 + 255) // 256 * 256

W_ACC = 0
NREP = 8
W_CNT = 32768
NCNT = 16
W_ML = 65536
W_PR = 32768 + 4096
ZERO_BYTES = 32768 + 4096 + 1024

SCALE = (128 ** -0.5) * math.log2(math.e)

def gen(p=P):
    a = Asm()
    d = p.d
    NR, NL, NB = p.NR, p.NL, p.NB
    NS = NR + NL
    def stamp(k, which="A"):
        if p.stamps and p.stampset == which:
            a(f"s_memrealtime s[{82+2*k}:{83+2*k}]")
    def dump_stamps(n, vtmp):
        if not p.stamps: return
        a("s_waitcnt lgkmcnt(0)")
        a(f"s_lshl_b32 s81, s2, 3")
        a(f"s_add_u32 s81, s81, s3")
        a(f"s_lshl_b32 s81, s81, 6")
        a(f"s_add_u32 s81, s81, 0x100000")
        a(f"v_mov_b32 v{vtmp}, s81")
        a("s_mov_b64 exec, 1")
        for k in range(n):
            a(f"v_mov_b32 v{vtmp+1}, s{82+2*k}")
            a(f"global_store_dword v{vtmp}, v{vtmp+1}, s[30:31] offset:{4*k}")
        a("s_mov_b64 exec, -1")
    sX, sK, sV, sWQ, sWO, sW1, sW3, sW2, sOUT, sDBG, sWS = 8, 10, 12, 14, 16, 20, 22, 24, 26, 28, 30
    sH, sB, sC, sBH = 32, 33, 34, 35
    SRD_K, SRD_V, SRD_W = 36, 40, 44
    sSUB = 48
    sLB = 54
    sM0 = 56
    sCUR, sNXT = 64, 65
    sHW, sK8, sFIRST = 66, 67, 81
    sT0 = 68
    sWV = 3

    a.label(NAME)
    a(f"s_cmp_ge_u32 s2, 256")
    a(f"s_cbranch_scc1 L_end")
    a(f"s_load_dwordx16 s[8:23], s[0:1], 0")
    a(f"s_load_dwordx8 s[24:31], s[0:1], 64")
    a(f"v_lshrrev_b32 v1, 6, v0")
    a(f"v_and_b32 v0, 63, v0")
    a(f"v_readfirstlane_b32 s{sWV}, v1")
    if p.wmap == 0:
        a(f"s_and_b32 s{sH}, s2, 31")
        a(f"s_bfe_u32 s{sB}, s2, 0x10005")
        a(f"s_lshr_b32 s{sC}, s2, 6")
    elif p.wmap == 1:
        a(f"s_and_b32 s{sC}, s2, 1")
        a(f"s_lshl_b32 s{sC}, s{sC}, 1")
        a(f"s_bfe_u32 s{sB}, s2, 0x10003")
        a(f"s_or_b32 s{sC}, s{sC}, s{sB}")
        a(f"s_bfe_u32 s{sH}, s2, 0x30004")
        a(f"s_lshl_b32 s{sH}, s{sH}, 2")
        a(f"s_bfe_u32 s{sB}, s2, 0x20001")
        a(f"s_or_b32 s{sH}, s{sH}, s{sB}")
        a(f"s_lshr_b32 s{sB}, s2, 7")
    elif p.wmap == 3:
        a(f"s_bfe_u32 s{sC}, s2, 0x20003")
        a(f"s_and_b32 s{sH}, s2, 3")
        a(f"s_bfe_u32 s{sB}, s2, 0x20005")
        a(f"s_lshl_b32 s{sB}, s{sB}, 2")
        a(f"s_or_b32 s{sH}, s{sH}, s{sB}")
        a(f"s_bfe_u32 s{sB}, s2, 0x10002")
        a(f"s_lshl_b32 s{sB}, s{sB}, 4")
        a(f"s_or_b32 s{sH}, s{sH}, s{sB}")
        a(f"s_lshr_b32 s{sB}, s2, 7")
    elif p.wmap == 2:
        a(f"s_and_b32 s{sC}, s2, 3")
        a(f"s_bfe_u32 s{sH}, s2, 0x50002")
        a(f"s_lshr_b32 s{sB}, s2, 7")
    elif p.wmap == 5:
        a(f"s_bfe_u32 s{sC}, s2, 0x20003")
        a(f"s_bfe_u32 s{sH}, s2, 0x30005")
        a(f"s_and_b32 s{sB}, s2, 3")
        a(f"s_lshl_b32 s{sB}, s{sB}, 3")
        a(f"s_or_b32 s{sH}, s{sH}, s{sB}")
        a(f"s_bfe_u32 s{sB}, s2, 0x10002")
    a(f"s_lshl_b32 s{sBH}, s{sB}, 5")
    a(f"s_add_u32 s{sBH}, s{sBH}, s{sH}")
    a(f"v_and_b32 v2, 15, v0")
    a(f"v_lshrrev_b32 v3, 4, v0")
    stamp(0); stamp(0, "S")
    a(f"s_cmp_ge_u32 s{sWV}, 4")
    a(f"s_cbranch_scc1 L_helper")

    vKO0, vKO1, vVO0, vVO1 = 4, 5, 6, 7
    vSA, vSR, vMR, vL = 8, 9, 10, 11
    vX0, vX1, vMN, vA, vE0, vE1, vMW, vPG = 12, 13, 14, 15, 16, 17, 18, 19
    vD, vD2, vSEL = 20, 24, 28
    vBQ = 32
    vBT, vS0, vS1, vP = 32, 36, 44, 52
    vPA = 56
    vLB = 1
    vT = 56
    vSL = 64

    t0, t1, t2 = vX0, vX1, vMN
    a(f"v_lshrrev_b32 v{t0}, 2, v2")
    a(f"v_and_b32 v{t1}, 3, v2")
    a(f"v_lshlrev_b32 v{t0}, 8, v{t0}")
    a(f"v_lshlrev_b32 v{t1}, 4, v{t1}")
    a(f"v_lshlrev_b32 v{t2}, 6, v3")
    a(f"v_add3_u32 v{vKO0}, v{t0}, v{t1}, v{t2}")
    a(f"s_lshl_b32 s{sT0}, s{sWV}, 13")
    a(f"s_lshl_b32 s{sT0+1}, s{sBH}, 2")
    a(f"s_add_u32 s{sT0+1}, s{sT0+1}, s{sC}")
    a(f"s_lshl_b32 s{sT0+1}, s{sT0+1}, 20")
    a(f"v_add_u32 v{vKO0}, s{sT0}, v{vKO0}")
    a(f"v_add_u32 v{vKO1}, 0x1000, v{vKO0}")
    a(f"s_mov_b32 s{SRD_K+2}, 0x100000")
    a(f"s_mov_b32 s{SRD_K+3}, 0x00020000")
    a(f"s_mov_b32 s{sCUR}, 0")
    a(f"s_waitcnt lgkmcnt(0)")
    stamp(1, "S")
    a(f"s_add_u32 s{SRD_K}, s{sK}, s{sT0+1}")
    a(f"s_addc_u32 s{SRD_K+1}, s{sK+1}, 0")

    G0K = (NS + 16) // 8
    assert NS % 16 == 0 and NR >= 32 and NL % 8 == 0
    def slot(i):
        if i < NR: return vSL + 4 * i
        if i < NS: return vSL + 4 * (16 + ((i - NR) % 16))
        if i < 8 * G0K: return vSL + 4 * (i % 16)
        return vSL + 4 * (i % 8)
    def kimm(i):
        ii = i & 7
        return (vKO1 if ii >= 4 else vKO0), (ii & 3) * 1024
    def kload(i, soff):
        vo, imm = kimm(i)
        if NR <= i < NS:
            c = (i - NR) * 1024 - imm
            a(f"s_add_u32 m0, s{sLB}, {c & 0xffffffff:#x}")
            a("s_nop 0")
            a(f"buffer_load_dwordx4 v{vo}, {sr(SRD_K,4)}, {soff} offen offset:{imm} {p.kvflags} lds")
        else:
            a(f"buffer_load_dwordx4 {vr(slot(i))}, v{vo}, {sr(SRD_K,4)}, {soff} offen offset:{imm} {p.kvflags}")
    def vload(i, soff):
        ii = i & 7
        vo = vVO1 if ii >= 4 else vVO0
        imm = (ii & 3) * 1024
        a(f"buffer_load_dwordx4 {vr(vSL + 4*ii)}, v{vo}, {sr(SRD_V,4)}, {soff} offen offset:{imm} {p.kvflags}")
    cur_grp = [0]
    def kload_u(i):
        g = i >> 3
        if g != cur_grp[0]:
            assert g == cur_grp[0] + 1
            a(f"s_add_u32 s{sCUR}, s{sCUR}, 32768")
            cur_grp[0] = g
        kload(i, f"s{sCUR}")

    def setup1():
        a(f"s_add_u32 s{SRD_V}, s{sV}, s{sT0+1}")
        a(f"s_addc_u32 s{SRD_V+1}, s{sV+1}, 0")
        a(f"s_mov_b32 s{SRD_V+2}, 0x100000")
        a(f"s_mov_b32 s{SRD_V+3}, 0x00020000")
        a(f"v_lshlrev_b32 v{vVO0}, 4, v0")
        a(f"v_add_u32 v{vVO0}, s{sT0}, v{vVO0}")
        a(f"v_add_u32 v{vVO1}, 0x1000, v{vVO0}")
        a(f"s_mul_i32 s{sLB}, s{sWV}, {NL*1024}")
        a(f"s_add_u32 s{sLB}, s{sLB}, {L_KB}")
        for k in range(1, 4):
            mk = 0x11111111 << k
            a(f"s_mov_b32 s{sSUB+2*(k-1)}, {mk:#x}"); a(f"s_mov_b32 s{sSUB+2*(k-1)+1}, {mk:#x}")
        for m in range(4):
            mk = 0x000f000f << (4 * m)
            a(f"s_mov_b32 s{sM0+2*m}, {mk:#x}"); a(f"s_mov_b32 s{sM0+2*m+1}, {mk:#x}")
    def setup2():
        a(f"s_mul_i32 s{sT0}, s{sWV}, {4*RS}")
        a(f"v_mul_u32_u24 v{vSR}, {RS}, v3")
        a(f"v_add_u32 v{vSR}, s{sT0}, v{vSR}")
        a(f"v_lshrrev_b32 v{t1}, 2, v2")
        a(f"v_lshl_add_u32 v{vSA}, v{t1}, 2, v{vSR}")
        a(f"v_mov_b32 v{vMR}, 0xff7fffff")
        a(f"v_mov_b32 v{vL}, 0")
        a(f"v_and_b32 v1, 3, v2")
        a(f"v_lshlrev_b32 v1, 5, v1")
        a(f"v_lshl_add_u32 v1, v3, 7, v1")
    def setup3():
        emit_selectors(a, vSEL, t0)
    qa, qb = vD, vX0
    bchunks = []
    def b_read(hw):
        def f():
            dst = qa if hw == 0 else qb
            for hf in range(2):
                a(f"ds_read_b128 {vr(dst + 4*hf)}, v1 offset:{L_QP + hw*512 + hf*16}")
        return f
    def b_add():
        a("s_waitcnt lgkmcnt(0)")
        for e in range(8):
            a(f"v_add_f32 v{qa+e}, v{qa+e}, v{qb+e}")
    def b_scale():
        a(f"s_mov_b32 s{sT0}, {f32bits(SCALE):#x}")
        for e in range(8):
            a(f"v_mul_f32 v{qa+e}, s{sT0}, v{qa+e}")
    def b_split(r):
        def f():
            q0, q1 = qa + 2*r, qa + 2*r + 1
            H, h0, h1, Lp = qb, qb+1, qb+2, qb+3
            a(f"v_cvt_pk_bf16_f32 v{H}, v{q0}, v{q1}")
            a(f"v_lshlrev_b32 v{h0}, 16, v{H}")
            a(f"v_and_b32 v{h1}, 0xffff0000, v{H}")
            a(f"v_sub_f32 v{h0}, v{q0}, v{h0}")
            a(f"v_sub_f32 v{h1}, v{q1}, v{h1}")
            a(f"v_cvt_pk_bf16_f32 v{Lp}, v{h0}, v{h1}")
            for m in range(4):
                a(f"v_cndmask_b32 v{vBQ + (m*2+0)*4 + r}, 0, v{H}, {sr(sM0+2*m)}")
                a(f"v_cndmask_b32 v{vBQ + (m*2+1)*4 + r}, 0, v{Lp}, {sr(sM0+2*m)}")
        return f
    def seq(*fs):
        def f():
            for g_ in fs: g_()
        return f
    bchunks = [seq(b_read(0), b_read(1)), seq(b_add, b_read(2)), seq(b_add, b_read(3)), seq(b_add, b_scale),
               b_split(0), b_split(1), b_split(2), b_split(3)]

    for i in range(NS):
        if i == NB:
            stamp(1); stamp(5, "S")
            a("s_barrier")
            stamp(2); stamp(6, "S")
        if i >= p.dA:
            a(f"s_waitcnt vmcnt({p.dA-1})")
        if i == p.dA: stamp(3, "S")
        if i == 16: stamp(4, "S")
        kload_u(i)
        if i == p.dA - 1: stamp(2, "S"); setup1()
        if i == p.dA: setup2()
        if i == p.dA + 1: setup3()
        if i >= NB and bchunks:
            bchunks.pop(0)()
    if NB >= NS:
        stamp(1); stamp(5, "S")
        a("s_barrier")
        stamp(2); stamp(6, "S")
    while bchunks:
        bchunks.pop(0)()
    a(f"v_lshlrev_b32 v{vLB}, 4, v0")
    a(f"v_add_u32 v{vLB}, s{sLB}, v{vLB}")
    stamp(3); stamp(7, "S")

    def kconsume(i):
        ii = i & 7
        m = ii & 3
        D = vD if ii < 4 else vD2
        for hl in range(2):
            b = vBQ + (m*2+hl)*4
            c = "0" if (m == 0 and hl == 0) else vr(D)
            a(f"v_mfma_f32_16x16x32_bf16 {vr(D)}, {vr(slot(i))}, {vr(b)}, {c}")
    def kpost():
        a("s_nop 7")
        for X_, D in ((vX0, vD), (vX1, vD2)):
            a(f"v_cndmask_b32 v{X_}, v{D}, v{D+1}, {sr(sSUB)}")
            a(f"v_cndmask_b32 v{X_}, v{X_}, v{D+2}, {sr(sSUB+2)}")
            a(f"v_cndmask_b32 v{X_}, v{X_}, v{D+3}, {sr(sSUB+4)}")
        a("s_nop 0")
        a(f"v_add_f32_dpp v{vX0}, v{vX0}, v{vX0} quad_perm:[1,0,3,2] row_mask:0xf bank_mask:0xf")
        a(f"v_add_f32_dpp v{vX1}, v{vX1}, v{vX1} quad_perm:[1,0,3,2] row_mask:0xf bank_mask:0xf")
        a("s_nop 1")
        a(f"v_add_f32_dpp v{vX0}, v{vX0}, v{vX0} quad_perm:[2,3,0,1] row_mask:0xf bank_mask:0xf")
        a(f"v_add_f32_dpp v{vX1}, v{vX1}, v{vX1} quad_perm:[2,3,0,1] row_mask:0xf bank_mask:0xf")
        a(f"v_max3_f32 v{vMN}, v{vMR}, v{vX0}, v{vX1}")
        a(f"ds_write_b32 v{vSA}, v{vX0} offset:{L_ST}")
        a(f"ds_write_b32 v{vSA}, v{vX1} offset:{L_ST+16}")
        a(f"v_sub_f32 v{vA}, v{vMR}, v{vMN}")
        a(f"v_sub_f32 v{vE0}, v{vX0}, v{vMN}")
        a(f"v_sub_f32 v{vE1}, v{vX1}, v{vMN}")
        a(f"v_exp_f32 v{vA}, v{vA}")
        a(f"v_exp_f32 v{vE0}, v{vE0}")
        a(f"v_exp_f32 v{vE1}, v{vE1}")
        a(f"v_mov_b32 v{vMR}, v{vMN}")
        a(f"v_add_u32 v{vSA}, 32, v{vSA}")
        a(f"v_fma_f32 v{vL}, v{vL}, v{vA}, v{vE0}")
        a(f"v_add_f32 v{vL}, v{vL}, v{vE1}")

    issued = NS
    def lds_fetch(grp):
        for ii in range(8):
            i = grp * 8 + ii
            a(f"ds_read_b128 {vr(slot(i))}, v{vLB} offset:{(i-NR)*1024}")
    for grp in range(G0K):
        nxt = grp + 1
        is_lds = NR <= grp * 8 < NS
        if is_lds:
            a("s_waitcnt lgkmcnt(0)")
        if NR <= nxt * 8 < NS and nxt * 8 + 7 < issued:
            a(f"s_waitcnt vmcnt({min(issued - 1 - (nxt*8+7), 63)})")
            lds_fetch(nxt)
        for ii in range(8):
            i = grp * 8 + ii
            if not is_lds:
                oa = issued - 1 - i
                if oa < p.dA + d + 12:
                    a(f"s_waitcnt vmcnt({min(oa, 63)})")
            if i >= NS and i + d >= issued:
                a(f"s_waitcnt vmcnt({min(d-1, issued - 1 - i)})")
                kload_u(issued); issued += 1
            kconsume(i)
        kpost()
        if grp * 8 + 7 < NS:
            a(f"s_waitcnt vmcnt({d-1})")
            kload_u(issued); issued += 1
    assert issued == 8 * G0K + d, (issued, 8 * G0K + d)
    a(f"s_lshl_b32 s{sT0}, s{sWV}, 2")
    a(f"v_mov_b32 v{vA}, s{sT0}")
    a(f"v_mov_b32 v{vE0}, 1")
    a(f"ds_write_b32 v{vA}, v{vE0} offset:{L_PB}")
    stamp(4)
    ngA = G0K
    a(f"s_mov_b32 s{sCUR}, {ngA*32768}")
    a(f"s_mov_b32 s{sNXT}, {(ngA+1)*32768}")
    a.label("L_kloop")
    for ii in range(8):
        a(f"s_waitcnt vmcnt({d-1})")
        n = ii + d
        kload(8*G0K + 8 + (n & 7), f"s{sCUR}" if n < 8 else f"s{sNXT}")
        kconsume(8*G0K + ii)
    kpost()
    a(f"s_mov_b32 s{sCUR}, s{sNXT}")
    a(f"s_add_u32 s{sNXT}, s{sNXT}, 32768")
    a(f"s_cmp_lt_u32 s{sCUR}, {31*32768}")
    a(f"s_cbranch_scc1 L_kloop")
    for ii in range(8):
        a(f"s_waitcnt vmcnt({d-1})")
        n = ii + d
        if n < 8:
            kload(8*G0K + n, f"s{sCUR}")
        else:
            vload(n & 7, "0")
        kconsume(8*G0K + ii)
    kpost()
    a("s_nop 1")
    a(f"v_max_f32_dpp v{vMN}, v{vMR}, v{vMR} row_half_mirror row_mask:0xf bank_mask:0xf")
    a("s_nop 1")
    a(f"v_max_f32_dpp v{vMN}, v{vMN}, v{vMN} row_mirror row_mask:0xf bank_mask:0xf")
    a("s_nop 1")
    for k in range(4):
        a(f"v_readlane_b32 s{sT0+k}, v{vMN}, {16*k}")
    a("s_nop 1")
    a(f"v_mov_b32 v{vMW}, s{sT0}")
    a(f"v_max_f32 v{vMW}, s{sT0+1}, v{vMW}")
    a(f"v_max_f32 v{vMW}, s{sT0+2}, v{vMW}")
    a(f"v_max_f32 v{vMW}, s{sT0+3}, v{vMW}")
    a(f"v_sub_f32 v{vA}, v{vMR}, v{vMW}")
    a(f"v_exp_f32 v{vA}, v{vA}")
    a("s_nop 0")
    a(f"v_mul_f32 v{vL}, v{vL}, v{vA}")
    a("s_nop 1")
    a(f"v_add_f32_dpp v{vL}, v{vL}, v{vL} row_half_mirror row_mask:0xf bank_mask:0xf")
    a("s_nop 1")
    a(f"v_add_f32_dpp v{vL}, v{vL}, v{vL} row_mirror row_mask:0xf bank_mask:0xf")
    a("s_nop 1")
    for k in range(4):
        a(f"v_readlane_b32 s{sT0+k}, v{vL}, {16*k}")
    a("s_nop 1")
    a(f"v_mov_b32 v{vL}, s{sT0}")
    a(f"v_add_f32 v{vL}, s{sT0+1}, v{vL}")
    a(f"v_add_f32 v{vL}, s{sT0+2}, v{vL}")
    a(f"v_add_f32 v{vL}, s{sT0+3}, v{vL}")
    a(f"s_lshl_b32 s{sT0}, s{sWV}, 3")
    a(f"v_mov_b32 v{vT}, s{sT0}")
    a(f"v_mov_b32 v{vT+2}, v{vMW}")
    a(f"v_mov_b32 v{vT+3}, v{vL}")
    a(f"ds_write_b64 v{vT}, v[{vT+2}:{vT+3}] offset:{L_ML}")
    a(f"s_lshl_b32 s{sT0}, s{sWV}, 2")
    a(f"v_mov_b32 v{vPA}, s{sT0}")
    a(f"v_mov_b32 v{vT+4}, 1")
    a("s_waitcnt lgkmcnt(0)")
    a(f"ds_write_b32 v{vPA}, v{vT+4} offset:{L_KF}")
    stamp(5)
    for r in range(4):
        a(f"v_mov_b32 v{vD+r}, 0")
        a(f"v_mov_b32 v{vD2+r}, 0")
    a(f"v_mov_b32 v{vPG}, 0")
    a(f"ds_read_b128 {vr(vS0)}, v{vSR} offset:{L_ST}")
    a(f"ds_read_b128 {vr(vS0+4)}, v{vSR} offset:{L_ST+16}")
    a(f"v_add_u32 v{vSR}, 32, v{vSR}")
    def vconsume(ii, S):
        t, hi, lo, Pk = vP, vP+1, vP+2, vP+3
        a(f"v_sub_f32 v{t}, v{S+ii}, v{vMW}")
        a(f"v_exp_f32 v{t}, v{t}")
        a("s_nop 0")
        a(f"v_and_b32 v{hi}, 0xffff0000, v{t}")
        a(f"v_sub_f32 v{lo}, v{t}, v{hi}")
        a(f"v_cvt_pk_bf16_f32 v{Pk}, v{hi}, v{lo}")
        for r in range(4):
            a(f"v_perm_b32 v{vBT+r}, v{Pk}, v{Pk}, v{vSEL+r}")
        a("s_nop 1")
        D = vD if (ii & 1) == 0 else vD2
        a(f"v_mfma_f32_16x16x32_bf16 {vr(D)}, {vr(vSL+4*ii)}, {vr(vBT)}, {vr(D)}")
    def vgroup(S, Sn, dc, dprev=None):
        a("s_waitcnt lgkmcnt(0)")
        a(f"ds_read_b128 {vr(Sn)}, v{vSR} offset:{L_ST}")
        a(f"ds_read_b128 {vr(Sn+4)}, v{vSR} offset:{L_ST+16}")
        a(f"v_add_u32 v{vSR}, 32, v{vSR}")
        for ii in range(8):
            if dprev is not None and dprev < dc and ii == 0:
                a(f"s_waitcnt vmcnt({dprev-1})")
                for n in range(dprev, dc + 1):
                    vload(n & 7, f"s{sCUR}" if n < 8 else f"s{sNXT}")
            elif dprev is not None and dprev > dc and ii + dc < dprev:
                a(f"s_waitcnt vmcnt({dprev-1-ii})")
            else:
                n = ii + dc
                a(f"s_waitcnt vmcnt({dc-1})")
                vload(n & 7, f"s{sCUR}" if n < 8 else f"s{sNXT}")
            vconsume(ii, S)
    def adv():
        a(f"s_mov_b32 s{sCUR}, s{sNXT}")
        a(f"s_add_u32 s{sNXT}, s{sNXT}, 32768")
    a(f"s_mov_b32 s{sCUR}, 0")
    a(f"s_mov_b32 s{sNXT}, 32768")
    dE, GE = p.dE, p.GE
    assert GE % 2 == 0 and GE >= 4
    G0 = 32 - GE
    vMD = vT + 1; vZ = vT + 2
    a(f"v_mov_b32 v{vZ}, 0")
    def vpair(d1, dprev, tag):
        a(f"v_add_u32 v{vPG}, 2, v{vPG}")
        a(f"ds_write_b32 v{vPA}, v{vPG} offset:{L_VP}")
        if p.ctl: a(f"ds_read_b32 v{vMD}, v{vZ} offset:{L_MD}")
        vgroup(vS0, vS1, d1, dprev); adv()
        vgroup(vS1, vS0, d1); adv()
        if p.ctl: a(f"v_readfirstlane_b32 s{sT0}, v{vMD}")
        a(f"s_cmp_ge_u32 s{sCUR}, {G0*32768}")
        a(f"s_cbranch_scc1 L_vend_{'L' if d1 == d else 'H'}")
    if p.ctl:
        assert dE > d
        a.label("L_vL")
        vpair(d, None, "LL")
        a(f"s_cmp_eq_u32 s{sT0}, 0")
        a(f"s_cbranch_scc1 L_vL")
        a.label("L_vLH")
        vpair(dE, d, "LH")
        a(f"s_cmp_eq_u32 s{sT0}, 0")
        a(f"s_cbranch_scc1 L_vHL")
        a.label("L_vH")
        vpair(dE, None, "HH")
        a(f"s_cmp_lg_u32 s{sT0}, 0")
        a(f"s_cbranch_scc1 L_vH")
        a.label("L_vHL")
        vpair(d, dE, "HL")
        a(f"s_cmp_eq_u32 s{sT0}, 0")
        a(f"s_cbranch_scc1 L_vL")
        a(f"s_branch L_vLH")
        a.label("L_vend_H")
        vgroup(vS0, vS1, dE); adv()
        vgroup(vS1, vS0, dE); adv()
        a("s_branch L_vend_J")
    else:
        a.label("L_vL")
        vpair(d, None, "LL")
        a(f"s_branch L_vL")
    a.label("L_vend_L")
    vgroup(vS0, vS1, dE, d); adv()
    vgroup(vS1, vS0, dE); adv()
    a.label("L_vend_J")
    if GE > 4:
        a.label("L_vloop2")
        for half in range(2):
            vgroup(vS0 if half == 0 else vS1, vS1 if half == 0 else vS0, dE)
            adv()
        a(f"s_cmp_lt_u32 s{sCUR}, {30*32768}")
        a(f"s_cbranch_scc1 L_vloop2")
    vgroup(vS0, vS1, dE)
    a(f"s_mov_b32 s{sCUR}, s{sNXT}")
    a("s_waitcnt lgkmcnt(0)")
    for ii in range(8):
        n = ii + dE
        issued_before = min(ii + dE, 8)
        a(f"s_waitcnt vmcnt({issued_before - 1 - ii})")
        if n < 8:
            vload(n, f"s{sCUR}")
        vconsume(ii, vS1)
    stamp(6)
    a(f"v_mov_b32 v{vT}, 0")
    a.label("L_fr_poll")
    a(f"ds_read_b32 v{vT+1}, v{vT} offset:{L_FR}")
    a(f"s_lshl_b32 s{sT0}, s{sWV}, 2")
    a(f"v_mov_b32 v{vT+2}, s{sT0}")
    a(f"ds_read_b32 v{vT+3}, v{vT+2} offset:{L_F}")
    a("s_waitcnt lgkmcnt(0)")
    a(f"v_cmp_eq_u32 vcc, 0, v{vT+1}")
    a(f"s_cbranch_vccnz L_fr_poll")
    a(f"v_and_b32 v{vT}, 7, v2")
    a(f"v_lshlrev_b32 v{vT}, 1, v{vT}")
    a(f"v_lshl_add_u32 v{vT}, v3, 6, v{vT}")
    a(f"v_lshrrev_b32 v{vT+1}, 3, v2")
    a(f"v_lshl_add_u32 v{vT}, v{vT+1}, 8, v{vT}")
    a(f"s_lshl_b32 s{sT0}, s{sWV}, 9")
    a(f"v_add_u32 v{vT}, s{sT0}, v{vT}")
    a(f"s_mov_b32 s{sT0+2}, 0xff00ff00"); a(f"s_mov_b32 s{sT0+3}, 0xff00ff00")
    for r in range(4):
        a(f"v_add_f32 v{vD+r}, v{vD+r}, v{vD2+r}")
    a("s_nop 1")
    for r in range(4):
        a(f"v_add_f32_dpp v{vD+r}, v{vD+r}, v{vD+r} row_ror:8 row_mask:0xf bank_mask:0xf")
    for r in range(4):
        a(f"v_mul_f32 v{vD+r}, v{vD+r}, v{vT+3}")
    for r in range(4):
        H, hf_, lo = vD2, vD2+1, vD2+2
        a(f"v_cvt_pk_bf16_f32 v{H}, v{vD+r}, v{vD+r}")
        a(f"v_and_b32 v{hf_}, 0xffff0000, v{H}")
        a(f"v_sub_f32 v{lo}, v{vD+r}, v{hf_}")
        a(f"v_cvt_pk_bf16_f32 v{lo}, v{lo}, v{lo}")
        a(f"v_cndmask_b32 v{lo}, v{H}, v{lo}, {sr(sT0+2)}")
        a(f"ds_write_b16 v{vT}, v{lo} offset:{L_OA + r*16}")
    a("s_waitcnt lgkmcnt(0)")
    a("s_barrier")
    stamp(7)
    dump_stamps(8, vT)
    a("s_endpgm")

    a.label("L_helper")
    hSEL = 4
    hB = 8
    hD = 12
    hP = 16
    hT = 48
    hVO = 96
    hDA = 98
    hG = 100
    hW = 128
    a(f"s_sub_u32 s{sHW}, s{sWV}, 4")
    a(f"v_lshlrev_b32 v{hT}, 4, v0")
    a(f"s_lshl_b32 s{sT0}, s{sB}, 10")
    a(f"s_mov_b32 s{SRD_W+2}, 0x400000"); a(f"s_mov_b32 s{SRD_W+3}, 0x00020000")
    a(f"v_lshlrev_b32 v{hVO}, 18, v3")
    a(f"v_lshl_add_u32 v{hVO}, v2, 4, v{hVO}")
    if p.wmap == 0:
        a(f"s_lshr_b32 s{sK8}, s2, 5")
    elif p.wmap == 5:
        a(f"s_lshl_b32 s{sK8}, s{sC}, 1")
    elif p.wmap == 3:
        a(f"s_lshl_b32 s{sK8}, s{sB}, 2")
        a(f"s_add_u32 s{sK8}, s{sK8}, s{sC}")
    else:
        a(f"s_lshl_b32 s{sK8}, s{sB}, 2")
        a(f"s_and_b32 s{sT0+1}, s{sC}, 1")
        a(f"s_lshl_b32 s{sT0+1}, s{sT0+1}, 1")
        a(f"s_add_u32 s{sK8}, s{sK8}, s{sT0+1}")
        a(f"s_lshr_b32 s{sT0+1}, s{sC}, 1")
        a(f"s_add_u32 s{sK8}, s{sK8}, s{sT0+1}")
    a("s_waitcnt lgkmcnt(0)")
    stamp(1, "S")
    a(f"s_add_u32 s{sT0+2}, s{sX}, s{sT0}")
    a(f"s_addc_u32 s{sT0+3}, s{sX+1}, 0")
    a(f"global_load_dwordx4 {vr(hT+4)}, v{hT}, {sr(sT0+2)}")
    a(f"s_mov_b32 s{SRD_W}, s{sWQ}"); a(f"s_mov_b32 s{SRD_W+1}, s{sWQ+1}")
    a(f"s_lshl_b32 s{sT0}, s{sHW}, 20")
    a(f"s_lshl_b32 s{sT0+1}, s{sH}, 8")
    a(f"s_add_u32 s{sT0}, s{sT0}, s{sT0+1}")

    def gemv_step(W, Pk, first, D=hD):
        for r in range(4):
            a(f"v_perm_b32 v{hB+r}, v{Pk}, v{Pk}, v{hSEL+r}")
        a("s_nop 1")
        a(f"v_mfma_f32_16x16x32_bf16 {vr(D)}, {vr(W)}, {vr(hB)}, {'0' if first else vr(D)}")

    X, S, Q = hT + 8, hT + 16, hT + 24
    sR = sT0 + 4
    chunks = []
    def chunk(f): chunks.append(f)
    def c_sel():
        emit_selectors(a, hSEL, hT+8)
    def c_clear():
        a(f"s_cmp_lg_u32 s{sHW}, 0")
        a(f"s_cbranch_scc1 L_h_noclr")
        for r in range(4): a(f"v_mov_b32 v{hT+8+r}, 0")
        a(f"ds_write_b128 v{hT}, {vr(hT+8)} offset:{L_Z}")
        a(f"ds_write_b128 v{hT}, {vr(hT+8)} offset:{L_Z+1024}")
        a.label("L_h_noclr")
        a(f"v_and_b32 v{hDA}, 7, v2")
        a(f"v_lshlrev_b32 v{hDA}, 2, v{hDA}")
        a(f"v_lshl_add_u32 v{hDA}, v3, 7, v{hDA}")
    def c_ln1():
        for r in range(4):
            a(f"v_lshlrev_b32 v{X+2*r}, 16, v{hT+4+r}")
            a(f"v_and_b32 v{X+2*r+1}, 0xffff0000, v{hT+4+r}")
        a(f"v_add_f32 v{S}, v{X}, v{X+1}")
        for e in range(2, 8):
            a(f"v_add_f32 v{S}, v{S}, v{X+e}")
    def c_ln2():
        wave_allreduce_add(a, S, sR)
    def c_ln3():
        a(f"v_mul_f32 v{S}, {f32bits(1.0/512):#x}, v{S}")
        for e in range(8):
            a(f"v_sub_f32 v{X+e}, v{X+e}, v{S}")
        a(f"v_mul_f32 v{S+1}, v{X}, v{X}")
        for e in range(1, 8):
            a(f"v_fmac_f32 v{S+1}, v{X+e}, v{X+e}")
    def c_ln4():
        wave_allreduce_add(a, S + 1, sR)
    def c_ln5():
        a(f"v_mov_b32 v{S+2}, {f32bits(1e-5):#x}")
        a(f"v_fmac_f32 v{S+2}, {f32bits(1.0/512):#x}, v{S+1}")
        a(f"v_sqrt_f32 v{S+2}, v{S+2}")
        a("s_nop 0")
        a(f"v_rcp_f32 v{S+2}, v{S+2}")
        a("s_nop 0")
        for e in range(8):
            a(f"v_mul_f32 v{X+e}, v{X+e}, v{S+2}")
    def c_ln6(lo, hi):
        def f():
            for e in range(lo, hi):
                a(f"v_cvt_pk_bf16_f32 v{S+3}, v{X+e}, v{X+e}")
                a(f"v_and_b32 v{S+3}, 0xffff0000, v{S+3}")
                a(f"v_sub_f32 v{S+4}, v{X+e}, v{S+3}")
                a(f"v_cvt_pk_bf16_f32 v{Q+e}, v{S+3}, v{S+4}")
        return f
    def c_ln7():
        a(f"s_lshl_b32 s{sR}, s{sHW}, 11")
        a(f"v_lshlrev_b32 v{hT+1}, 5, v0")
        a(f"v_add_u32 v{hT+1}, s{sR}, v{hT+1}")
        a(f"ds_write_b128 v{hT+1}, {vr(Q)} offset:{L_XP}")
        a(f"ds_write_b128 v{hT+1}, {vr(Q+4)} offset:{L_XP+16}")
        a(f"s_mul_i32 s{sR}, s{sHW}, {2048+512}")
        a(f"v_lshlrev_b32 v{hT+1}, 7, v3")
        a(f"v_add_u32 v{hT+1}, s{sR}, v{hT+1}")
    def c_ln8():
        a("s_waitcnt lgkmcnt(0)")
        for i in range(8):
            a(f"s_add_u32 s{sR}, s{sK8}, {i}")
            a(f"s_and_b32 s{sR}, s{sR}, 7")
            a(f"s_lshl_b32 s{sR}, s{sR}, 4")
            a(f"v_add_u32 v{hT+2}, s{sR}, v{hT+1}")
            a(f"ds_read_b128 {vr(hP+4*i)}, v{hT+2} offset:{L_XP}")
    def c_ln9():
        a("s_waitcnt lgkmcnt(0)")
        stamp(4, "S")
    pre = [c_sel, c_clear]
    post = [c_ln1, c_ln2, c_ln3, c_ln4, c_ln5, c_ln6(0, 4), c_ln6(4, 8), c_ln7, c_ln8, c_ln9]
    dQ = p.dQ
    next_gemv = 0
    for n in range(32):
        i, r = n >> 2, n & 3
        if n >= dQ:
            a(f"s_waitcnt vmcnt({dQ-1})")
            if n == dQ: stamp(3, "S")
        if r == 0:
            a(f"s_add_u32 s{sT0+1}, s{sK8}, {i}")
            a(f"s_and_b32 s{sT0+1}, s{sT0+1}, 7")
            a(f"s_lshl_b32 s{sT0+1}, s{sT0+1}, 15")
            a(f"s_add_u32 s{sT0+1}, s{sT0+1}, s{sT0}")
        else:
            a(f"s_add_u32 s{sT0+1}, s{sT0+1}, 8192")
        a(f"buffer_load_dwordx4 {vr(hW+4*n)}, v{hVO}, {sr(SRD_W,4)}, s{sT0+1} offen {p.wflags}")
        if pre:
            pre.pop(0)()
        elif n >= dQ and post:
            post.pop(0)()
        elif n >= dQ:
            landed = n - dQ
            k = 0
            while next_gemv <= landed and k < 3:
                gemv_step(hW+4*next_gemv, hP+next_gemv, next_gemv == 0); next_gemv += 1; k += 1
    stamp(2, "S")
    assert not post
    while next_gemv < 32:
        a(f"s_waitcnt vmcnt({31-next_gemv})")
        gemv_step(hW+4*next_gemv, hP+next_gemv, next_gemv == 0); next_gemv += 1
    stamp(6, "S")
    a(f"s_lshl_b32 s{sT0}, s{sHW}, 9")
    a(f"v_add_u32 v{hT}, s{sT0}, v{hDA}")
    a("s_nop 7")
    for r in range(4):
        a(f"v_add_f32_dpp v{hD+r}, v{hD+r}, v{hD+r} row_ror:8 row_mask:0xf bank_mask:0xf")
    for r in range(4):
        a(f"ds_write_b32 v{hT}, v{hD+r} offset:{L_QP + r*32}")
    a("s_waitcnt lgkmcnt(0)")
    stamp(2); stamp(7, "S")
    a("s_barrier")

    def paced_gemv(stride, first, D, dF):
        def ld(n):
            a(f"buffer_load_dwordx4 {vr(hW+4*n)}, v{hVO}, {sr(SRD_W,4)}, s{sT0} offen {p.wflags}")
            a(f"s_add_u32 s{sT0}, s{sT0}, {stride}")
        for n in range(dF): ld(n)
        a("s_waitcnt lgkmcnt(0)")
        for n in range(32):
            a(f"s_waitcnt vmcnt({min(dF-1, 31-n)})")
            if n + dF < 32: ld(n + dF)
            gemv_step(hW+4*n, hP+n, first and n == 0, D)

    a(f"s_cmp_lg_u32 s{sHW}, 1")
    a(f"s_cbranch_scc1 L_h_noinit")
    a(f"v_mov_b32 v{hT}, 0")
    a(f"v_mov_b32 v{hT+1}, 1")
    a(f"s_mov_b64 exec, 1")
    a(f"global_atomic_add v{hT+2}, v{hT}, v{hT+1}, {sr(sDBG)} sc0")
    a("s_waitcnt vmcnt(0)")
    a(f"v_readfirstlane_b32 s{sT0}, v{hT+2}")
    a(f"s_mov_b64 exec, -1")
    a(f"s_cmp_lg_u32 s{sT0}, 0")
    a(f"s_cbranch_scc1 L_h_noinit")
    a(f"v_mov_b32 v{hT}, 0")
    a(f"v_mov_b32 v{hT+1}, 1")
    a(f"ds_write_b32 v{hT}, v{hT+1} offset:{L_FI}")
    for r in range(4):
        a(f"v_mov_b32 v{hT+4+r}, 0")
    a(f"v_lshlrev_b32 v{hT}, 4, v0")
    for k in range(ZERO_BYTES // 1024):
        a(f"global_store_dwordx4 v{hT}, {vr(hT+4)}, {sr(sWS)} sc0 sc1")
        a(f"v_add_u32 v{hT}, 1024, v{hT}")
    a("s_waitcnt vmcnt(0)")
    a(f"v_mov_b32 v{hT}, 0")
    a(f"v_mov_b32 v{hT+1}, 1")
    a(f"s_mov_b64 exec, 1")
    a(f"global_atomic_add v{hT}, v{hT+1}, {sr(sDBG)} offset:4")
    a(f"s_mov_b64 exec, -1")
    a.label("L_h_noinit")

    if p.noffn: a("s_branch L_h_noffn")
    a(f"s_cmp_lg_u32 s{sC}, 1")
    a(f"s_cbranch_scc1 L_h_noffn")
    a(f"s_cmp_ge_u32 s{sH}, 14")
    a(f"s_cbranch_scc1 L_h_noffn")
    a(f"v_mul_u32_u24 v{hVO}, {32*3584}, v3")
    a(f"v_lshl_add_u32 v{hVO}, v2, 4, v{hVO}")
    a(f"s_mul_i32 s{sT0}, s{sHW}, {2048+512}")
    a(f"v_lshlrev_b32 v{hT+1}, 7, v3")
    a(f"v_add_u32 v{hT+1}, s{sT0}, v{hT+1}")
    for i in range(8):
        a(f"ds_read_b128 {vr(hP+4*i)}, v{hT+1} offset:{L_XP+16*i}")
    for mat, (sP, Lacc) in enumerate([(sW1, L_GA), (sW3, L_UA)]):
        a(f"s_mov_b32 s{SRD_W}, s{sP}"); a(f"s_mov_b32 s{SRD_W+1}, s{sP+1}")
        a(f"s_mov_b32 s{SRD_W+2}, {512*3584}")
        a(f"s_mul_i32 s{sT0}, s{sHW}, {128*3584}")
        a(f"s_lshl_b32 s{sT0+1}, s{sH}, 8")
        a(f"s_add_u32 s{sT0}, s{sT0}, s{sT0+1}")
        paced_gemv(3584, True, hD, p.dF)
        a("s_nop 7")
        for r in range(4):
            a(f"v_add_f32_dpp v{hD+r}, v{hD+r}, v{hD+r} row_ror:8 row_mask:0xf bank_mask:0xf")
        a(f"s_mov_b32 s{sT0+6}, 0x00ff00ff"); a(f"s_mov_b32 s{sT0+7}, 0x00ff00ff")
        a(f"s_mov_b64 exec, {sr(sT0+6)}")
        for r in range(4):
            a(f"ds_add_f32 v{hDA}, v{hD+r} offset:{Lacc + r*32}")
        a(f"s_mov_b64 exec, -1")
    a("s_waitcnt lgkmcnt(0)")
    a(f"v_mov_b32 v{hT}, 0")
    a(f"v_mov_b32 v{hT+1}, 1")
    a(f"s_mov_b64 exec, 1")
    a(f"ds_add_u32 v{hT}, v{hT+1} offset:{L_FC}")
    a(f"s_mov_b64 exec, -1")
    a.label("L_ffn_sync")
    a("s_sleep 4")
    a(f"ds_read_b32 v{hT+1}, v{hT} offset:{L_FC}")
    a("s_waitcnt lgkmcnt(0)")
    a(f"v_cmp_ne_u32 vcc, 4, v{hT+1}")
    a(f"s_cbranch_vccnz L_ffn_sync")
    a(f"v_lshlrev_b32 v{hT+1}, 7, v3")
    U = hT + 8
    for i in range(8):
        a(f"ds_read_b128 {vr(hP+4*i)}, v{hT+1} offset:{L_GA+16*i}")
        a(f"ds_read_b128 {vr(U+4*i)}, v{hT+1} offset:{L_UA+16*i}")
    a(f"s_mov_b32 s{sT0}, {f32bits(-math.log2(math.e)):#x}")
    a("s_waitcnt lgkmcnt(0)")
    for n in range(32):
        g_, u_ = hP + n, U + n
        a(f"v_mul_f32 v{hT}, s{sT0}, v{g_}")
        a(f"v_exp_f32 v{hT}, v{hT}")
        a("s_nop 0")
        a(f"v_add_f32 v{hT}, 1.0, v{hT}")
        a(f"v_rcp_f32 v{hT}, v{hT}")
        a("s_nop 0")
        a(f"v_mul_f32 v{hT}, v{hT}, v{g_}")
        a(f"v_mul_f32 v{hT}, v{hT}, v{u_}")
        a(f"v_cvt_pk_bf16_f32 v{hT+1}, v{hT}, v{hT}")
        a(f"v_and_b32 v{hT+1}, 0xffff0000, v{hT+1}")
        a(f"v_sub_f32 v{hT+2}, v{hT}, v{hT+1}")
        a(f"v_cvt_pk_bf16_f32 v{g_}, v{hT+1}, v{hT+2}")
    a(f"s_mov_b32 s{SRD_W}, s{sW2}"); a(f"s_mov_b32 s{SRD_W+1}, s{sW2+1}")
    a(f"s_mov_b32 s{SRD_W+2}, {1792*1024}")
    a(f"v_lshlrev_b32 v{hVO}, 15, v3")
    a(f"v_lshl_add_u32 v{hVO}, v2, 4, v{hVO}")
    a(f"s_lshl_b32 s{sT0}, s{sH}, 17")
    a(f"s_lshl_b32 s{sT0+2}, s{sHW}, 8")
    a(f"s_add_u32 s{sT0}, s{sT0}, s{sT0+2}")
    paced_gemv(1024, True, hD, p.dF)
    a("s_nop 7")
    for r in range(4):
        a(f"v_add_f32_dpp v{hD+r}, v{hD+r}, v{hD+r} row_ror:8 row_mask:0xf bank_mask:0xf")
    emit_wait_flag(a, "ffn", sDBG, hT)
    emit_y_addr(a, hT+4, hDA, sT0+4, sB, sHW)
    emit_atomic_y(a, hD, hT+4, sWS, sT0+6)
    a.label("L_h_noffn")
    stamp(3)

    a(f"s_lshl_b32 s{sT0}, s{sHW}, 2")
    a(f"v_mov_b32 v{hT}, s{sT0}")
    a.label("L_pb_poll")
    a("s_sleep 16")
    a(f"ds_read_b32 v{hT+1}, v{hT} offset:{L_PB}")
    a("s_waitcnt lgkmcnt(0)")
    a(f"v_cmp_eq_u32 vcc, 0, v{hT+1}")
    a(f"s_cbranch_vccnz L_pb_poll")
    a(f"s_mov_b32 s{SRD_W}, s{sWO}"); a(f"s_mov_b32 s{SRD_W+1}, s{sWO+1}")
    a(f"s_mov_b32 s{SRD_W+2}, 0x400000")
    a(f"v_lshlrev_b32 v{hVO}, 10, v3")
    a(f"v_lshl_add_u32 v{hVO}, v2, 4, v{hVO}")
    a(f"s_lshl_b32 s{sT0}, s{sH}, 17")
    a(f"s_lshl_b32 s{sT0+2}, s{sHW}, 8")
    a(f"s_add_u32 s{sT0}, s{sT0}, s{sT0+2}")
    a(f"s_lshl_b32 s{sT0+3}, s{sHW}, 15")
    a(f"s_add_u32 s{sT0+3}, s{sT0+3}, {L_KB}")
    for n in range(0 if p.nowo else 32):
        if n >= p.dW:
            a(f"s_waitcnt vmcnt({p.dW-1})")
        a(f"s_add_u32 m0, s{sT0+3}, {n*1024}")
        a("s_nop 0")
        a(f"buffer_load_dwordx4 v{hVO}, {sr(SRD_W,4)}, s{sT0} offen {p.wflags} lds")
        a(f"s_add_u32 s{sT0}, s{sT0}, 4096")
    a(f"v_lshrrev_b32 v{hT}, 2, v2")
    a(f"v_lshlrev_b32 v{hT}, 8, v{hT}")
    a(f"v_and_b32 v{hT+1}, 3, v2")
    a(f"v_lshl_add_u32 v{hT}, v{hT+1}, 3, v{hT}")
    a(f"v_lshl_add_u32 v{hT}, v3, 11, v{hT}")
    a(f"v_add_u32 v{hT}, s{sT0+3}, v{hT}")
    a("s_waitcnt vmcnt(0)")
    for ct in range(8):
        for ks in range(4):
            for hf in range(2):
                a(f"ds_read_b64_tr_b16 v[{hW + (ct*4+ks)*4 + 2*hf}:{hW + (ct*4+ks)*4 + 2*hf + 1}], v{hT} offset:{(32*ks + 4*hf)*256 + ct*32}")
        a("s_waitcnt lgkmcnt(0)")
    stamp(4)

    if p.ctl:
        a(f"s_cmp_lg_u32 s{sHW}, 2")
        a(f"s_cbranch_scc1 L_h_noctl")
        emit_wait_flag(a, "ctl", sDBG, hT)
        a(f"s_lshl_b32 s{sT0}, s2, 2")
        a(f"s_add_u32 s{sT0}, s{sT0}, {W_PR}")
        a(f"v_mov_b32 v{hT+2}, s{sT0}")
        a(f"s_and_b32 s{sT0+1}, s{sT0}, 0xffffffe0")
        a(f"v_and_b32 v{hT+3}, 7, v0")
        a(f"v_lshlrev_b32 v{hT+3}, 2, v{hT+3}")
        a(f"v_add_u32 v{hT+3}, s{sT0+1}, v{hT+3}")
        a(f"v_mov_b32 v{hT}, 0")
        a.label("L_ctl_loop")
        a(f"s_sleep {p.csleep}")
        a(f"ds_read_b32 v{hT+4}, v{hT} offset:{L_VP}")
        a("s_waitcnt lgkmcnt(0)")
        a(f"v_add_u32 v{hT+5}, 1, v{hT+4}")
        a(f"s_mov_b64 exec, 1")
        a(f"global_store_dword v{hT+2}, v{hT+5}, {sr(sWS)} sc0 sc1")
        a(f"s_mov_b64 exec, -1")
        a(f"global_load_dword v{hT+6}, v{hT+3}, {sr(sWS)} sc0 sc1")
        a("s_waitcnt vmcnt(0)")
        a(f"v_cmp_ne_u32 vcc, 0, v{hT+6}")
        a(f"v_mov_b32 v{hT+7}, 0")
        a(f"v_add_u32 v{hT+8}, {p.cdelta}, v{hT+5}")
        a(f"v_cndmask_b32 v{hT+7}, v{hT+7}, v{hT+8}, vcc")
        a(f"v_sub_u32 v{hT+6}, v{hT+6}, v{hT+7}")
        for ctrl in ("quad_perm:[1,0,3,2]", "quad_perm:[2,3,0,1]", "row_half_mirror"):
            a("s_nop 1")
            a(f"v_add_u32_dpp v{hT+6}, v{hT+6}, v{hT+6} {ctrl} row_mask:0xf bank_mask:0xf")
        a(f"v_cmp_lt_i32 vcc, 0, v{hT+6}")
        a(f"v_mov_b32 v{hT+7}, 0")
        a("s_nop 0")
        a(f"v_cndmask_b32 v{hT+7}, v{hT+7}, 1, vcc")
        a(f"ds_write_b32 v{hT}, v{hT+7} offset:{L_MD}")
        a(f"v_cmp_gt_u32 vcc, {32 - p.GE}, v{hT+4}")
        a(f"s_cbranch_vccnz L_ctl_loop")
        a.label("L_h_noctl")

    if p.noml: a("s_branch L_h_noml")
    a(f"s_cmp_lg_u32 s{sHW}, 0")
    a(f"s_cbranch_scc1 L_h_noml")
    a(f"v_mov_b32 v{hT}, 0")
    a.label("L_ml_poll")
    a("s_sleep 16")
    a(f"ds_read_b128 {vr(hT+4)}, v{hT} offset:{L_KF}")
    a("s_waitcnt lgkmcnt(0)")
    a(f"v_and_b32 v{hT+4}, v{hT+4}, v{hT+5}")
    a(f"v_and_b32 v{hT+6}, v{hT+6}, v{hT+7}")
    a(f"v_and_b32 v{hT+4}, v{hT+4}, v{hT+6}")
    a(f"v_cmp_eq_u32 vcc, 1, v{hT+4}")
    a(f"s_cbranch_vccz L_ml_poll")
    a(f"ds_read_b128 {vr(hT+4)}, v{hT} offset:{L_ML}")
    a(f"ds_read_b128 {vr(hT+8)}, v{hT} offset:{L_ML+16}")
    a("s_waitcnt lgkmcnt(0)")
    m = [hT+4, hT+6, hT+8, hT+10]; l = [hT+5, hT+7, hT+9, hT+11]
    MC, LC = hT+12, hT+13
    a(f"v_max_f32 v{MC}, v{m[0]}, v{m[1]}")
    a(f"v_max3_f32 v{MC}, v{MC}, v{m[2]}, v{m[3]}")
    for k in range(4):
        a(f"v_sub_f32 v{hT+16+k}, v{m[k]}, v{MC}")
    for k in range(4):
        a(f"v_exp_f32 v{hT+16+k}, v{hT+16+k}")
    a("s_nop 0")
    a(f"v_mul_f32 v{LC}, v{l[0]}, v{hT+16}")
    for k in range(1, 4):
        a(f"v_fmac_f32 v{LC}, v{l[k]}, v{hT+16+k}")
    a(f"s_lshl_b32 s{sT0}, s{sBH}, 5")
    a(f"s_lshl_b32 s{sT0+1}, s{sC}, 3")
    a(f"s_add_u32 s{sT0+1}, s{sT0+1}, s{sT0}")
    a(f"s_add_u32 s{sT0+1}, s{sT0+1}, {W_ML}")
    a(f"v_mov_b32 v{hT+20}, s{sT0+1}")
    a(f"s_lshr_b32 s{sT0+2}, s{sBH}, 3")
    a(f"s_lshl_b32 s{sT0+2}, s{sT0+2}, 2")
    a(f"s_add_u32 s{sT0+2}, s{sT0+2}, 32")
    a(f"s_and_b32 s{sT0+3}, s{sBH}, 7")
    a(f"s_lshl_b32 s{sT0+3}, s{sT0+3}, 2")
    a(f"s_lshl_b32 s{sT0+4}, 1, s{sT0+3}")
    a(f"v_mov_b32 v{hT+21}, s{sT0+2}")
    a(f"v_mov_b32 v{hT+22}, s{sT0+4}")
    a(f"s_mov_b64 exec, 1")
    a(f"global_store_dwordx2 v{hT+20}, v[{MC}:{LC}], {sr(sWS)} sc0 sc1")
    a("s_waitcnt vmcnt(0)")
    a(f"global_atomic_add v{hT+21}, v{hT+22}, {sr(sDBG)}")
    a(f"s_mov_b64 exec, -1")
    a.label("L_vp_poll")
    a("s_sleep 32")
    a(f"ds_read_b32 v{hT+23}, v{hT} offset:{L_VP}")
    a("s_waitcnt lgkmcnt(0)")
    a(f"v_cmp_gt_u32 vcc, {p.vsig}, v{hT+23}")
    a(f"s_cbranch_vccnz L_vp_poll")
    a.label("L_grp_poll")
    a(f"global_load_dword v{hT+23}, v{hT+21}, {sr(sDBG)} sc0 sc1")
    a("s_waitcnt vmcnt(0)")
    a(f"v_lshrrev_b32 v{hT+23}, s{sT0+3}, v{hT+23}")
    a(f"v_and_b32 v{hT+23}, 15, v{hT+23}")
    a(f"v_cmp_eq_u32 vcc, 4, v{hT+23}")
    a(f"s_cbranch_vccnz L_grp_done")
    a("s_sleep 64")
    a("s_branch L_grp_poll")
    a.label("L_grp_done")
    a(f"v_and_b32 v{hT+24}, 3, v0")
    a(f"v_lshlrev_b32 v{hT+24}, 3, v{hT+24}")
    a(f"s_add_u32 s{sT0}, s{sT0}, {W_ML}")
    a(f"v_add_u32 v{hT+24}, s{sT0}, v{hT+24}")
    a(f"global_load_dwordx2 v[{hT+26}:{hT+27}], v{hT+24}, {sr(sWS)} sc0 sc1")
    a("s_waitcnt vmcnt(0)")
    GM, GL = hT+28, hT+29
    a(f"v_max_f32_dpp v{GM}, v{hT+26}, v{hT+26} quad_perm:[1,0,3,2] row_mask:0xf bank_mask:0xf")
    a("s_nop 1")
    a(f"v_max_f32_dpp v{GM}, v{GM}, v{GM} quad_perm:[2,3,0,1] row_mask:0xf bank_mask:0xf")
    a("s_nop 1")
    a(f"v_sub_f32 v{GL}, v{hT+26}, v{GM}")
    a(f"v_exp_f32 v{GL}, v{GL}")
    a("s_nop 0")
    a(f"v_mul_f32 v{GL}, v{GL}, v{hT+27}")
    a("s_nop 1")
    a(f"v_add_f32_dpp v{GL}, v{GL}, v{GL} quad_perm:[1,0,3,2] row_mask:0xf bank_mask:0xf")
    a("s_nop 1")
    a(f"v_add_f32_dpp v{GL}, v{GL}, v{GL} quad_perm:[2,3,0,1] row_mask:0xf bank_mask:0xf")
    a("s_nop 1")
    a(f"v_rcp_f32 v{GL}, v{GL}")
    for k in range(4):
        a(f"v_sub_f32 v{hT+16+k}, v{m[k]}, v{GM}")
    for k in range(4):
        a(f"v_exp_f32 v{hT+16+k}, v{hT+16+k}")
    a("s_nop 0")
    for k in range(4):
        a(f"v_mul_f32 v{hT+16+k}, v{hT+16+k}, v{GL}")
    emit_wait_flag(a, "ml", sDBG, hT+30)
    a(f"ds_write_b128 v{hT}, {vr(hT+16)} offset:{L_F}")
    a(f"v_mov_b32 v{hT+30}, 1")
    a("s_waitcnt lgkmcnt(0)")
    a(f"ds_write_b32 v{hT}, v{hT+30} offset:{L_FR}")
    a.label("L_h_noml")
    a(f"s_and_b32 s{sT0+4}, s2, {NREP-1}")
    a(f"s_lshl_b32 s{sT0+4}, s{sT0+4}, 12")
    a(f"s_lshl_b32 s{sT0+5}, s{sB}, 11")
    a(f"s_add_u32 s{sT0+4}, s{sT0+4}, s{sT0+5}")
    a(f"s_lshl_b32 s{sT0+5}, s{sHW}, 9")
    a(f"s_add_u32 s{sT0+4}, s{sT0+4}, s{sT0+5}")
    a(f"v_lshrrev_b32 v{hT+40}, 1, v3")
    a(f"v_lshlrev_b32 v{hT+40}, 6, v{hT+40}")
    a(f"v_lshl_add_u32 v{hT+40}, v2, 2, v{hT+40}")
    a(f"v_add_u32 v{hT+40}, s{sT0+4}, v{hT+40}")
    a(f"v_and_b32 v{hT+41}, 7, v2")
    a(f"v_lshlrev_b32 v{hT+41}, 8, v{hT+41}")
    a(f"v_lshl_add_u32 v{hT+41}, v3, 4, v{hT+41}")
    a(f"s_mov_b32 s{sT0+6}, 0"); a(f"s_mov_b32 s{sT0+7}, -1")
    a(f"v_mov_b32 v{hT+42}, 0")
    a("s_waitcnt vmcnt(0) lgkmcnt(0)")
    stamp(5)
    a("s_barrier")
    stamp(6)
    AF = hP
    for ks in range(4):
        a(f"ds_read_b128 {vr(AF+4*ks)}, v{hT+41} offset:{L_OA + ks*64}")
    a(f"ds_read_b32 v{hT+43}, v{hT+42} offset:{L_FI}")
    DD = hT
    for ks in range(4):
        a(f"s_waitcnt lgkmcnt({4-ks})")
        for ct in range(8):
            a(f"v_mfma_f32_16x16x32_bf16 {vr(DD+4*ct)}, {vr(AF+4*ks)}, {vr(hW+(ct*4+ks)*4)}, {'0' if ks == 0 else vr(DD+4*ct)}")
    a("s_waitcnt lgkmcnt(0)")
    a(f"v_readfirstlane_b32 s{sFIRST}, v{hT+43}")
    for ct in range(8):
        if ct == 0: a("s_nop 3")
        a(f"v_add_f32 v{DD+4*ct}, v{DD+4*ct}, v{DD+4*ct+1}")
        a(f"v_add_f32 v{DD+4*ct+2}, v{DD+4*ct+2}, v{DD+4*ct+3}")
    for ct in range(8):
        a(f"v_add_f32 v{DD+4*ct}, v{DD+4*ct}, v{DD+4*ct+2}")
    for pr in range(4):
        a(f"v_cndmask_b32 v{DD+8*pr}, v{DD+8*pr}, v{DD+8*pr+4}, {sr(sT0+6)}")
        a(f"global_atomic_add_f32 v{hT+40}, v{DD+8*pr}, {sr(sWS)} offset:{pr*128}")
    a("s_waitcnt vmcnt(0)")
    stamp(7)
    a("s_barrier")
    a(f"s_cmp_lg_u32 s{sHW}, 0")
    a(f"s_cbranch_scc1 L_h_noarr")
    a(f"s_lshr_b32 s{sT0}, s2, 4")
    a(f"s_lshl_b32 s{sT0}, s{sT0}, 8")
    a(f"s_add_u32 s{sT0}, s{sT0}, {W_CNT}")
    a(f"v_mov_b32 v{hT}, s{sT0}")
    a(f"v_mov_b32 v{hT+1}, 1")
    a(f"s_mov_b64 exec, 1")
    a(f"global_atomic_add v{hT}, v{hT+1}, {sr(sWS)}")
    a(f"s_mov_b64 exec, -1")
    a.label("L_h_noarr")
    a(f"s_cmp_eq_u32 s{sFIRST}, 0")
    a(f"s_cbranch_scc1 L_hend")
    a(f"v_and_b32 v{hT}, {NCNT-1}, v0")
    a(f"v_lshlrev_b32 v{hT}, 8, v{hT}")
    a(f"v_add_u32 v{hT}, {W_CNT}, v{hT}")
    a(f"s_lshl_b32 s{sT0}, s{sHW}, 9")
    a(f"v_lshlrev_b32 v{hT+1}, 3, v0")
    a(f"v_add_u32 v{hT+1}, s{sT0}, v{hT+1}")
    a(f"global_load_dwordx2 v[{hT+4}:{hT+5}], v{hT+1}, {sr(sX)}")
    a(f"v_lshlrev_b32 v{hT+3}, 1, v{hT+1}")
    a.label("L_fin_poll")
    a(f"global_load_dword v{hT+2}, v{hT}, {sr(sWS)} sc0 sc1")
    a("s_waitcnt vmcnt(0)")
    a(f"v_cmp_ne_u32 vcc, {256//NCNT}, v{hT+2}")
    a(f"s_cbranch_vccnz L_fin_poll")
    stamp(8)
    for rep in range(NREP):
        a(f"global_load_dwordx4 {vr(hW + rep*4)}, v{hT+3}, {sr(sWS)} sc0 sc1")
        a(f"v_add_u32 v{hT+3}, 4096, v{hT+3}")
    a(f"v_lshlrev_b32 v{hT+8}, 16, v{hT+4}")
    a(f"v_and_b32 v{hT+9}, 0xffff0000, v{hT+4}")
    a(f"v_lshlrev_b32 v{hT+10}, 16, v{hT+5}")
    a(f"v_and_b32 v{hT+11}, 0xffff0000, v{hT+5}")
    for rep in range(NREP):
        a(f"s_waitcnt vmcnt({NREP-1-rep})")
        for e in range(4):
            a(f"v_add_f32 v{hT+8+e}, v{hT+8+e}, v{hW+rep*4+e}")
    a(f"v_cvt_pk_bf16_f32 v{hT+12}, v{hT+8}, v{hT+9}")
    a(f"v_cvt_pk_bf16_f32 v{hT+13}, v{hT+10}, v{hT+11}")
    a(f"global_store_dwordx2 v{hT+1}, v[{hT+12}:{hT+13}], {sr(sOUT)}")
    a.label("L_hend")
    stamp(9)
    dump_stamps(10, hT)
    a.label("L_end")
    a("s_endpgm")

    kd = f""".section .rodata,"a"
.p2align 6
.amdhsa_kernel {NAME}
  .amdhsa_next_free_vgpr 256
  .amdhsa_next_free_sgpr 102
  .amdhsa_accum_offset 256
  .amdhsa_group_segment_fixed_size 0
  .amdhsa_kernarg_size 96
  .amdhsa_user_sgpr_count 2
  .amdhsa_user_sgpr_kernarg_segment_ptr 1
  .amdhsa_system_sgpr_workgroup_id_x 1
.end_amdhsa_kernel
"""
    txt = HEADER + f"; @launch grid=(256,1,1) block=(512,1,1) lds={lds_bytes(p.NL)}\n"
    txt += f'.amdgcn_target "amdgcn-amd-amdhsa--gfx950"\n.text\n.globl {NAME}\n.p2align 8\n.type {NAME},@function\n'
    txt += a.text() + kd
    return txt

def emit_selectors(a, vSEL, vT):
    a(f"v_lshrrev_b32 v{vT}, 3, v2")
    a(f"v_mul_u32_u24 v{vT}, 0x0202, v{vT}")
    a(f"v_add_u32 v{vT}, 0x0100, v{vT}")
    a(f"v_lshlrev_b32 v{vT+1}, 16, v{vT}")
    a(f"v_or_b32 v{vT+1}, 0x0c0c, v{vT+1}")
    a(f"v_or_b32 v{vT}, 0x0c0c0000, v{vT}")
    a(f"v_and_b32 v{vT+2}, 1, v2")
    a(f"v_cmp_eq_u32 vcc, 1, v{vT+2}")
    a("s_nop 1")
    a(f"v_cndmask_b32 v{vT}, v{vT}, v{vT+1}, vcc")
    a(f"v_bfe_u32 v{vT+2}, v2, 1, 2")
    a(f"v_mov_b32 v{vT+1}, 0x0c0c0c0c")
    for r in range(4):
        a(f"v_cmp_eq_u32 vcc, {r}, v{vT+2}")
        a("s_nop 1")
        a(f"v_cndmask_b32 v{vSEL+r}, v{vT+1}, v{vT}, vcc")

def wave_allreduce_add(a, v, sT):
    a("s_nop 1")
    a(f"v_add_f32_dpp v{v}, v{v}, v{v} quad_perm:[1,0,3,2] row_mask:0xf bank_mask:0xf")
    a("s_nop 1")
    a(f"v_add_f32_dpp v{v}, v{v}, v{v} quad_perm:[2,3,0,1] row_mask:0xf bank_mask:0xf")
    a("s_nop 1")
    a(f"v_add_f32_dpp v{v}, v{v}, v{v} row_half_mirror row_mask:0xf bank_mask:0xf")
    a("s_nop 1")
    a(f"v_add_f32_dpp v{v}, v{v}, v{v} row_mirror row_mask:0xf bank_mask:0xf")
    a("s_nop 1")
    for k in range(4):
        a(f"v_readlane_b32 s{sT+k}, v{v}, {16*k}")
    a("s_nop 1")
    a(f"v_mov_b32 v{v}, s{sT}")
    a(f"v_add_f32 v{v}, s{sT+1}, v{v}")
    a(f"v_add_f32 v{v}, s{sT+2}, v{v}")
    a(f"v_add_f32 v{v}, s{sT+3}, v{v}")

def emit_wait_flag(a, tag, sDBG, vT):
    a(f"v_mov_b32 v{vT}, 0")
    a.label(f"L_flag_{tag}")
    a(f"global_load_dword v{vT+1}, v{vT}, s[{sDBG}:{sDBG+1}] offset:4 sc0 sc1")
    a("s_waitcnt vmcnt(0)")
    a(f"v_cmp_eq_u32 vcc, 0, v{vT+1}")
    a(f"s_cbranch_vccnz L_flag_{tag}")

def emit_y_addr(a, vaddr, hDA, sT, sB, sHW):
    a(f"s_and_b32 s{sT}, s2, {NREP-1}")
    a(f"s_lshl_b32 s{sT}, s{sT}, 12")
    a(f"s_lshl_b32 s{sT+1}, s{sB}, 11")
    a(f"s_add_u32 s{sT}, s{sT}, s{sT+1}")
    a(f"s_lshl_b32 s{sT+1}, s{sHW}, 9")
    a(f"s_add_u32 s{sT}, s{sT}, s{sT+1}")
    a(f"v_add_u32 v{vaddr}, s{sT}, v{hDA}")

def emit_atomic_y(a, D, vaddr, sWS, sTmp):
    a(f"s_mov_b32 s{sTmp}, 0x00ff00ff"); a(f"s_mov_b32 s{sTmp+1}, 0x00ff00ff")
    a(f"s_mov_b64 exec, s[{sTmp}:{sTmp+1}]")
    for r in range(4):
        a(f"global_atomic_add_f32 v{vaddr}, v{D+r}, s[{sWS}:{sWS+1}] offset:{r*32}")
    a(f"s_mov_b64 exec, -1")

if __name__ == "__main__":
    out = sys.argv[1] if len(sys.argv) > 1 else OUT
    if out == "-": out = OUT
    for kv in sys.argv[2:]:
        k, v = kv.split("=", 1)
        cur = getattr(P, k)
        setattr(P, k, (v == "1") if isinstance(cur, bool) else type(cur)(v))
    open(out, "w").write(gen())
    print("wrote", out)
```

```python
import sys, subprocess
from gen_stream import HDR, META, KMETA

PERMS = [
  [3,4,0,1,5,2,6,7],
  [3,4,0,1,5,6,2,7],
  [3,4,0,5,6,1,2,7],
  [3,4,5,0,6,1,2,7],
  [3,0,1,2,4,5,6,7],
  [3,4,0,1,2,5,6,7],
  [5,6,0,1,3,2,4,7],
  [4,5,0,1,3,2,6,7],
]
def gen(name, NW, NWG, U, d, pattern, flags, G=1, rot=0, wimap='il1', rmap=0, desync=0):
    per = (256 << 20) // NWG
    region = per * G
    tile = NW * U * 1024
    NT = per // tile
    assert NT & (NT - 1) == 0 and d <= U
    L = []
    A = L.append
    A(f".globl {name}\n.p2align 8\n.type {name},@function\n{name}:")
    A(f"s_cmp_ge_u32 s2, {NWG}")
    A("s_cbranch_scc1 L_end_%s" % name)
    A("s_load_dwordx4 s[4:7], s[0:1], 8")
    A("s_load_dwordx2 s[8:9], s[0:1], 80")
    A("s_load_dwordx2 s[44:45], s[0:1], 88")
    A("s_memrealtime s[40:41]")
    A("v_lshrrev_b32 v1, 6, v0")
    A("v_and_b32 v2, 63, v0")
    A("s_nop 0")
    A("v_readfirstlane_b32 s10, v1")
    if pattern == 'lin':
        A("v_lshlrev_b32 v3, 4, v2")
    elif pattern == 'perm':
        A("v_and_b32 v4, 15, v2")
        A("v_lshrrev_b32 v5, 4, v2")
        A("v_lshlrev_b32 v4, 6, v4")
        A("v_lshlrev_b32 v5, 4, v5")
        A("v_add_u32 v3, v4, v5")
    elif pattern == 'p128':
        A("v_and_b32 v4, 15, v2")
        A("v_lshrrev_b32 v5, 4, v2")
        A("v_lshrrev_b32 v6, 1, v4")
        A("v_and_b32 v7, 1, v4")
        A("v_lshlrev_b32 v6, 8, v6")
        A("v_lshlrev_b32 v7, 6, v7")
        A("v_lshlrev_b32 v5, 4, v5")
        A("v_add_u32 v3, v6, v7")
        A("v_add_u32 v3, v3, v5")
    elif pattern == 'q64':
        A("v_and_b32 v4, 15, v2")
        A("v_lshrrev_b32 v5, 4, v2")
        A("v_lshrrev_b32 v6, 2, v4")
        A("v_and_b32 v7, 3, v4")
        A("v_lshlrev_b32 v6, 8, v6")
        A("v_lshlrev_b32 v7, 4, v7")
        A("v_lshlrev_b32 v5, 6, v5")
        A("v_add_u32 v3, v6, v7")
        A("v_add_u32 v3, v3, v5")
    A("s_waitcnt lgkmcnt(0)")
    lg = G.bit_length() - 1
    if rmap == 1:
        A("s_and_b32 s24, s2, 63")
        A("s_lshl_b32 s24, s24, 2")
        A("s_lshr_b32 s25, s2, 6")
        A("s_or_b32 s24, s24, s25")
        A("s_mov_b32 s25, 0")
    elif rmap >= 100:
        perm = PERMS[rmap - 100]
        A("s_mov_b32 s24, 0")
        for j, src in enumerate(perm):
            A(f"s_bfe_u32 s25, s2, {(1<<16)|src:#x}")
            A(f"s_lshl_b32 s25, s25, {j}")
            A("s_or_b32 s24, s24, s25")
        A("s_mov_b32 s25, 0")
    elif rmap >= 10:
        k = rmap - 10
        A("s_and_b32 s24, s2, 7")
        A(f"s_lshl_b32 s24, s24, {k}")
        A("s_lshr_b32 s25, s2, 3")
        A(f"s_and_b32 s47, s25, {(1<<k)-1}")
        A("s_or_b32 s24, s24, s47")
        A(f"s_lshr_b32 s25, s25, {k}")
        A(f"s_lshl_b32 s25, s25, {k+3}")
        A("s_or_b32 s24, s24, s25")
        A("s_mov_b32 s25, 0")
    elif rmap == 2:
        A("s_and_b32 s24, s2, 7")
        A("s_lshl_b32 s24, s24, 2")
        A("s_bfe_u32 s25, s2, 0x20003")
        A("s_or_b32 s24, s24, s25")
        A("s_and_b32 s25, s2, 32")
        A("s_or_b32 s24, s24, s25")
        A("s_lshl_b32 s24, s24, 2")
        A("s_lshr_b32 s25, s2, 6")
        A("s_or_b32 s24, s24, s25")
        A("s_mov_b32 s25, 0")
    else:
        A(f"s_lshr_b32 s24, s2, {lg}")
        A(f"s_and_b32 s25, s2, {G-1}")
    A(f"s_mul_i32 s11, s24, {region}")
    A(f"s_mul_hi_u32 s12, s24, {region}")
    A("s_add_u32 s4, s4, s11"); A("s_addc_u32 s5, s5, s12")
    A("s_add_u32 s6, s6, s11"); A("s_addc_u32 s7, s7, s12")
    if wimap == 'il1':
        wave_off = 1024
        def loff(i): return i * NW * 1024
    else:
        wave_off = U * 1024
        def loff(i): return i * 1024
    if pattern == 'p128':
        assert wimap != 'il1'
        def loff(i): return (i // 2) * 2048 + (i % 2) * 128
    A(f"s_mul_i32 s13, s10, {wave_off}")
    A(f"s_mul_i32 s14, s25, {tile}")
    A("s_add_u32 s13, s13, s14")
    A("v_add_u32 v3, s13, v3")
    A(f"s_mul_i32 s26, s2, {rot}")
    A(f"s_and_b32 s26, s26, {NT-1}")
    def setsrd(base, off, step):
        A(f"s_add_u32 s27, s26, s{step}")
        A(f"s_and_b32 s27, s27, {NT-1}")
        A(f"s_mul_i32 s{off}, s27, {tile*G}")
        A(f"s_cmp_ge_u32 s{step}, {NT}")
        A(f"s_cselect_b32 s{base}, s6, s4"); A(f"s_cselect_b32 s{base+1}, s7, s5")
        A(f"s_cmp_ge_u32 s{step}, {2*NT}")
        A(f"s_cselect_b32 s{base+2}, 0, {region}")
        A(f"s_mov_b32 s{base+3}, 0x00020000")
    if desync:
        A("s_mul_i32 s47, s2, 0x9e37")
        A("s_lshr_b32 s47, s47, 5")
        A("s_and_b32 s47, s47, 15")
        A("L_ds_%s:" % name)
        A("s_cmp_eq_u32 s47, 0")
        A("s_cbranch_scc1 L_dsd_%s" % name)
        A(f"s_sleep {desync}")
        A("s_sub_u32 s47, s47, 1")
        A("s_branch L_ds_%s" % name)
        A("L_dsd_%s:" % name)
    A("s_mov_b32 s21, 0")
    A("s_mov_b32 s22, 1")
    setsrd(16, 20, 21)
    setsrd(28, 32, 22)
    for r in range(4): A(f"v_mov_b32 v{8+r}, 0")
    B0 = 16
    vo = {}
    nextv = B0 + 4 * U
    for i in range(U):
        off = loff(i)
        hi = off & ~4095
        if hi not in vo:
            if hi == 0: vo[hi] = 3
            else:
                vo[hi] = nextv; A(f"v_add_u32 v{nextv}, {hi}, v3"); nextv += 1
    def load(i, nxt):
        off = loff(i); hi = off & ~4095; lo = off & 4095
        srd, so = ("s[28:31]", "s32") if nxt else ("s[16:19]", "s20")
        return f"buffer_load_dwordx4 v[{B0+4*i}:{B0+4*i+3}], v{vo[hi]}, {srd}, {so} offen offset:{lo} {flags}"
    for i in range(d): A(load(i, False))
    A(f"L_loop_{name}:")
    for i in range(U):
        A(f"s_waitcnt vmcnt({d-1})")
        for r in range(4): A(f"v_xor_b32 v{8+r}, v{8+r}, v{B0+4*i+r}")
        j = i + d
        A(load(j % U, j >= U))
    A("s_add_u32 s21, s21, 1")
    A("s_add_u32 s22, s22, 1")
    A("s_mov_b32 s16, s28"); A("s_mov_b32 s17, s29"); A("s_mov_b32 s18, s30"); A("s_mov_b32 s20, s32")
    setsrd(28, 32, 22)
    A(f"s_cmp_lt_u32 s21, {2*NT}")
    A(f"s_cbranch_scc1 L_loop_{name}")
    A("s_waitcnt vmcnt(0)")
    A("s_memrealtime s[42:43]")
    A("s_waitcnt lgkmcnt(0)")
    A(f"s_mul_i32 s46, s2, {NW}")
    A("s_add_u32 s46, s46, s10")
    A("s_lshl_b32 s46, s46, 3")
    A("v_mov_b32 v12, s46")
    A("v_mov_b32 v14, s40")
    A("v_mov_b32 v15, s42")
    A("s_mov_b64 exec, 1")
    A("global_store_dwordx2 v12, v[14:15], s[44:45]")
    A("s_mov_b64 exec, -1")
    A("v_xor_b32 v8, v8, v9"); A("v_xor_b32 v8, v8, v10"); A("v_xor_b32 v8, v8, v11")
    A("v_cmp_eq_u32 vcc, 0x12345678, v8")
    A("s_and_saveexec_b64 s[34:35], vcc")
    A(f"s_cbranch_execz L_end_{name}")
    A("v_mov_b32 v9, 0")
    A("global_store_dword v9, v8, s[8:9]")
    A(f"L_end_{name}:")
    A("s_endpgm")
    nv = max(nextv, 16)
    kd = f""".section .rodata,"a"
.p2align 6
.amdhsa_kernel {name}
  .amdhsa_next_free_vgpr {nv}
  .amdhsa_next_free_sgpr 48
  .amdhsa_accum_offset {(nv+3)//4*4}
  .amdhsa_group_segment_fixed_size 0
  .amdhsa_kernarg_size 96
  .amdhsa_user_sgpr_count 2
  .amdhsa_user_sgpr_kernarg_segment_ptr 1
  .amdhsa_system_sgpr_workgroup_id_x 1
.end_amdhsa_kernel
.text
"""
    return "\n".join(L) + "\n" + kd, KMETA.format(name=name, vgpr=nv)

class Set:
    def __init__(self, fname):
        self.fname = fname; self.ks = []; self.specs = []
    def add(self, NW, NWG, U, d, pattern='lin', flags='nt', G=1, rot=0, wimap='il1', lds=0, rmap=0, desync=0):
        name = f"k_{NW}w_{NWG}g_U{U}_d{d}_{pattern}_{flags.replace(' ','') or 'def'}_G{G}_r{rot}_{wimap}_m{rmap}_s{desync}"
        self.ks.append(dict(name=name, NW=NW, NWG=NWG, U=U, d=d, pattern=pattern, flags=flags, G=G, rot=rot, wimap=wimap, rmap=rmap, desync=desync))
        self.specs.append(f"{self.fname}.co:{name}:{NWG}:{NW*64}:{lds}")
    def build(self):
        body = HDR; meta = ""
        for k in self.ks:
            b, m = gen(**k); body += b; meta += m
        body += META.format(kern=meta)
        open(self.fname + ".s", "w").write(body)
        subprocess.check_call(["clang", "-x", "assembler", "-target", "amdgcn-amd-amdhsa", "-mcpu=gfx950", self.fname + ".s", "-o", self.fname + ".co"])
        open(self.fname + ".specs", "w").write(" ".join(self.specs))
```

```python
import sys, os, math, struct

NAME = "parallel_sum__mha_block_cached__glu_gated_swiglu__decode_kernel"
OUT = "parallel_sum__mha_block_cached__glu_gated_swiglu__decode.s"

HEADER = """; Kernarg layout for this problem (96 bytes, ptrs only, base s[0:1]):
"""

class P:
    d = 5
    dA = 5
    NR = 48
    NL = 32
    NB = 64
    dQ = 3
    dF = 2
    dW = 4
    kvflags = "nt"
    wflags = ""
    stamps = False
    stampset = 'A'
    noffn = False
    nowo = False
    noml = False
    dE = 7
    dA0 = 5
    nA0 = 0
    fsleep = 120
    ctl = False
    cdelta = 1
    csleep = 64
    wmap = 3
    GE = 8
    vsig = 22

class Asm:
    def __init__(self):
        self.L = []
    def __call__(self, s):
        self.L.append("    " + s)
    def label(self, s):
        self.L.append(s + ":")
    def c(self, s):
        self.L.append("    ; " + s)
    def text(self):
        return "\n".join(self.L) + "\n"

def vr(b, n=4):
    return f"v[{b}:{b+n-1}]"
def sr(b, n=2):
    return f"s[{b}:{b+n-1}]"
def f32bits(x):
    return struct.unpack("<I", struct.pack("<f", x))[0]

RS = 1040
L_ST = 0
L_XP = 16640
L_QP = L_XP + 8192
L_Z = L_QP + 2048
L_ML = L_Z
L_KF = L_Z + 32
L_F = L_Z + 64
L_VP = L_Z + 80
L_FC = L_Z + 96
L_FR = L_Z + 100
L_FI = L_Z + 104
L_PB = L_Z + 112
L_FG = L_Z + 132
L_FS = L_Z + 136
L_MD = L_Z + 128
L_GA = L_Z + 512
L_UA = L_Z + 1024
L_OA = L_Z + 2048
L_KB = L_OA + 2048
def lds_bytes(NL): return (L_KB + 4 * NL * 1024 + 255) // 256 * 256

W_ACC = 0
NREP = 8
W_CNT = 32768
NCNT = 16
W_FF = 40960
W_ML = W_FF + 28*4096
W_PR = 32768 + 4096
W_FFC = 32768 + 4096
ZERO_BYTES = 32768 + 4096 + 2048

SCALE = (128 ** -0.5) * math.log2(math.e)

def gen(p=P):
    a = Asm()
    d = p.d
    NR, NL, NB = p.NR, p.NL, p.NB
    NS = NR + NL
    def stamp(k, which="A"):
        if p.stamps and p.stampset == which:
            a(f"s_memrealtime s[{82+2*k}:{83+2*k}]")
    def dump_stamps(n, vtmp):
        if not p.stamps: return
        a("s_waitcnt lgkmcnt(0)")
        a(f"s_lshl_b32 s81, s2, 3")
        a(f"s_add_u32 s81, s81, s3")
        a(f"s_lshl_b32 s81, s81, 6")
        a(f"s_add_u32 s81, s81, 0x100000")
        a(f"v_mov_b32 v{vtmp}, s81")
        a("s_mov_b64 exec, 1")
        for k in range(n):
            a(f"v_mov_b32 v{vtmp+1}, s{82+2*k}")
            a(f"global_store_dword v{vtmp}, v{vtmp+1}, s[30:31] offset:{4*k}")
        a("s_mov_b64 exec, -1")
    sX, sK, sV, sWQ, sWO, sW1, sW3, sW2, sOUT, sDBG, sWS = 8, 10, 12, 14, 16, 20, 22, 24, 26, 28, 30
    sH, sB, sC, sBH = 32, 33, 34, 35
    SRD_K, SRD_V, SRD_W = 36, 40, 44
    sSUB = 48
    sLB = 54
    sM0 = 56
    sCUR, sNXT = 64, 65
    sHW, sK8, sFIRST = 66, 67, 81
    sT0 = 68
    sWV = 3

    a.label(NAME)
    a(f"s_cmp_ge_u32 s2, 256")
    a(f"s_cbranch_scc1 L_end")
    a(f"s_load_dwordx16 s[8:23], s[0:1], 0")
    a(f"s_load_dwordx8 s[24:31], s[0:1], 64")
    a(f"v_lshrrev_b32 v1, 6, v0")
    a(f"v_and_b32 v0, 63, v0")
    a(f"v_readfirstlane_b32 s{sWV}, v1")
    if p.wmap == 0:
        a(f"s_and_b32 s{sH}, s2, 31")
        a(f"s_bfe_u32 s{sB}, s2, 0x10005")
        a(f"s_lshr_b32 s{sC}, s2, 6")
    elif p.wmap == 1:
        a(f"s_and_b32 s{sC}, s2, 1")
        a(f"s_lshl_b32 s{sC}, s{sC}, 1")
        a(f"s_bfe_u32 s{sB}, s2, 0x10003")
        a(f"s_or_b32 s{sC}, s{sC}, s{sB}")
        a(f"s_bfe_u32 s{sH}, s2, 0x30004")
        a(f"s_lshl_b32 s{sH}, s{sH}, 2")
        a(f"s_bfe_u32 s{sB}, s2, 0x20001")
        a(f"s_or_b32 s{sH}, s{sH}, s{sB}")
        a(f"s_lshr_b32 s{sB}, s2, 7")
    elif p.wmap == 3:
        a(f"s_bfe_u32 s{sC}, s2, 0x20003")
        a(f"s_and_b32 s{sH}, s2, 3")
        a(f"s_bfe_u32 s{sB}, s2, 0x20005")
        a(f"s_lshl_b32 s{sB}, s{sB}, 2")
        a(f"s_or_b32 s{sH}, s{sH}, s{sB}")
        a(f"s_bfe_u32 s{sB}, s2, 0x10002")
        a(f"s_lshl_b32 s{sB}, s{sB}, 4")
        a(f"s_or_b32 s{sH}, s{sH}, s{sB}")
        a(f"s_lshr_b32 s{sB}, s2, 7")
    elif p.wmap == 2:
        a(f"s_and_b32 s{sC}, s2, 3")
        a(f"s_bfe_u32 s{sH}, s2, 0x50002")
        a(f"s_lshr_b32 s{sB}, s2, 7")
    elif p.wmap == 5:
        a(f"s_bfe_u32 s{sC}, s2, 0x20003")
        a(f"s_bfe_u32 s{sH}, s2, 0x30005")
        a(f"s_and_b32 s{sB}, s2, 3")
        a(f"s_lshl_b32 s{sB}, s{sB}, 3")
        a(f"s_or_b32 s{sH}, s{sH}, s{sB}")
        a(f"s_bfe_u32 s{sB}, s2, 0x10002")
    a(f"s_lshl_b32 s{sBH}, s{sB}, 5")
    a(f"s_add_u32 s{sBH}, s{sBH}, s{sH}")
    a(f"v_and_b32 v2, 15, v0")
    a(f"v_lshrrev_b32 v3, 4, v0")
    stamp(0); stamp(0, "S")
    a(f"s_cmp_ge_u32 s{sWV}, 4")
    a(f"s_cbranch_scc1 L_helper")

    vKO0, vKO1, vVO0, vVO1 = 4, 5, 6, 7
    vSA, vSR, vMR, vL = 8, 9, 10, 11
    vX0, vX1, vMN, vA, vE0, vE1, vMW, vPG = 12, 13, 14, 15, 16, 17, 18, 19
    vD, vD2, vSEL = 20, 24, 28
    vBQ = 32
    vBT, vS0, vS1, vP = 32, 36, 44, 52
    vPA = 56
    vLB = 1
    vT = 56
    vSL = 64

    t0, t1, t2 = vX0, vX1, vMN
    a(f"v_lshrrev_b32 v{t0}, 2, v2")
    a(f"v_and_b32 v{t1}, 3, v2")
    a(f"v_lshlrev_b32 v{t0}, 8, v{t0}")
    a(f"v_lshlrev_b32 v{t1}, 4, v{t1}")
    a(f"v_lshlrev_b32 v{t2}, 6, v3")
    a(f"v_add3_u32 v{vKO0}, v{t0}, v{t1}, v{t2}")
    a(f"s_lshl_b32 s{sT0}, s{sWV}, 13")
    a(f"s_lshl_b32 s{sT0+1}, s{sBH}, 2")
    a(f"s_add_u32 s{sT0+1}, s{sT0+1}, s{sC}")
    a(f"s_lshl_b32 s{sT0+1}, s{sT0+1}, 20")
    a(f"v_add_u32 v{vKO0}, s{sT0}, v{vKO0}")
    a(f"v_add_u32 v{vKO1}, 0x1000, v{vKO0}")
    a(f"s_mov_b32 s{SRD_K+2}, 0x100000")
    a(f"s_mov_b32 s{SRD_K+3}, 0x00020000")
    a(f"s_mov_b32 s{sCUR}, 0")
    a(f"s_waitcnt lgkmcnt(0)")
    stamp(1, "S")
    a(f"s_add_u32 s{SRD_K}, s{sK}, s{sT0+1}")
    a(f"s_addc_u32 s{SRD_K+1}, s{sK+1}, 0")

    G0K = (NS + 16) // 8
    assert NS % 16 == 0 and NR >= 32 and NL % 8 == 0
    def slot(i):
        if i < NR: return vSL + 4 * i
        if i < NS: return vSL + 4 * (16 + ((i - NR) % 16))
        if i < 8 * G0K: return vSL + 4 * (i % 16)
        return vSL + 4 * (i % 8)
    def kimm(i):
        ii = i & 7
        return (vKO1 if ii >= 4 else vKO0), (ii & 3) * 1024
    def kload(i, soff):
        vo, imm = kimm(i)
        if NR <= i < NS:
            c = (i - NR) * 1024 - imm
            a(f"s_add_u32 m0, s{sLB}, {c & 0xffffffff:#x}")
            a("s_nop 0")
            a(f"buffer_load_dwordx4 v{vo}, {sr(SRD_K,4)}, {soff} offen offset:{imm} {p.kvflags} lds")
        else:
            a(f"buffer_load_dwordx4 {vr(slot(i))}, v{vo}, {sr(SRD_K,4)}, {soff} offen offset:{imm} {p.kvflags}")
    def vload(i, soff):
        ii = i & 7
        vo = vVO1 if ii >= 4 else vVO0
        imm = (ii & 3) * 1024
        a(f"buffer_load_dwordx4 {vr(vSL + 4*ii)}, v{vo}, {sr(SRD_V,4)}, {soff} offen offset:{imm} {p.kvflags}")
    cur_grp = [0]
    def kload_u(i):
        g = i >> 3
        if g != cur_grp[0]:
            assert g == cur_grp[0] + 1
            a(f"s_add_u32 s{sCUR}, s{sCUR}, 32768")
            cur_grp[0] = g
        kload(i, f"s{sCUR}")

    def setup1():
        a(f"s_add_u32 s{SRD_V}, s{sV}, s{sT0+1}")
        a(f"s_addc_u32 s{SRD_V+1}, s{sV+1}, 0")
        a(f"s_mov_b32 s{SRD_V+2}, 0x100000")
        a(f"s_mov_b32 s{SRD_V+3}, 0x00020000")
        a(f"v_lshlrev_b32 v{vVO0}, 4, v0")
        a(f"v_add_u32 v{vVO0}, s{sT0}, v{vVO0}")
        a(f"v_add_u32 v{vVO1}, 0x1000, v{vVO0}")
        a(f"s_mul_i32 s{sLB}, s{sWV}, {NL*1024}")
        a(f"s_add_u32 s{sLB}, s{sLB}, {L_KB}")
        for k in range(1, 4):
            mk = 0x11111111 << k
            a(f"s_mov_b32 s{sSUB+2*(k-1)}, {mk:#x}"); a(f"s_mov_b32 s{sSUB+2*(k-1)+1}, {mk:#x}")
        for m in range(4):
            mk = 0x000f000f << (4 * m)
            a(f"s_mov_b32 s{sM0+2*m}, {mk:#x}"); a(f"s_mov_b32 s{sM0+2*m+1}, {mk:#x}")
    def setup2():
        a(f"s_mul_i32 s{sT0}, s{sWV}, {4*RS}")
        a(f"v_mul_u32_u24 v{vSR}, {RS}, v3")
        a(f"v_add_u32 v{vSR}, s{sT0}, v{vSR}")
        a(f"v_lshrrev_b32 v{t1}, 2, v2")
        a(f"v_lshl_add_u32 v{vSA}, v{t1}, 2, v{vSR}")
        a(f"v_mov_b32 v{vMR}, 0xff7fffff")
        a(f"v_mov_b32 v{vL}, 0")
        a(f"v_and_b32 v1, 3, v2")
        a(f"v_lshlrev_b32 v1, 5, v1")
        a(f"v_lshl_add_u32 v1, v3, 7, v1")
    def setup3():
        emit_selectors(a, vSEL, t0)
    qa, qb = vD, vX0
    bchunks = []
    def b_read(hw):
        def f():
            dst = qa if hw == 0 else qb
            for hf in range(2):
                a(f"ds_read_b128 {vr(dst + 4*hf)}, v1 offset:{L_QP + hw*512 + hf*16}")
        return f
    def b_add():
        a("s_waitcnt lgkmcnt(0)")
        for e in range(8):
            a(f"v_add_f32 v{qa+e}, v{qa+e}, v{qb+e}")
    def b_scale():
        a(f"s_mov_b32 s{sT0}, {f32bits(SCALE):#x}")
        for e in range(8):
            a(f"v_mul_f32 v{qa+e}, s{sT0}, v{qa+e}")
    def b_split(r):
        def f():
            q0, q1 = qa + 2*r, qa + 2*r + 1
            H, h0, h1, Lp = qb, qb+1, qb+2, qb+3
            a(f"v_cvt_pk_bf16_f32 v{H}, v{q0}, v{q1}")
            a(f"v_lshlrev_b32 v{h0}, 16, v{H}")
            a(f"v_and_b32 v{h1}, 0xffff0000, v{H}")
            a(f"v_sub_f32 v{h0}, v{q0}, v{h0}")
            a(f"v_sub_f32 v{h1}, v{q1}, v{h1}")
            a(f"v_cvt_pk_bf16_f32 v{Lp}, v{h0}, v{h1}")
            for m in range(4):
                a(f"v_cndmask_b32 v{vBQ + (m*2+0)*4 + r}, 0, v{H}, {sr(sM0+2*m)}")
                a(f"v_cndmask_b32 v{vBQ + (m*2+1)*4 + r}, 0, v{Lp}, {sr(sM0+2*m)}")
        return f
    def seq(*fs):
        def f():
            for g_ in fs: g_()
        return f
    bchunks = [seq(b_read(0), b_read(1)), seq(b_add, b_read(2)), seq(b_add, b_read(3)), seq(b_add, b_scale),
               b_split(0), b_split(1), b_split(2), b_split(3)]

    for i in range(NS):
        if i == NB:
            stamp(1); stamp(5, "S")
            a("s_barrier")
            stamp(2); stamp(6, "S")
        dcur = p.dA0 if i < p.nA0 else p.dA
        if i >= dcur:
            a(f"s_waitcnt vmcnt({dcur-1})")
        if i == p.dA: stamp(3, "S")
        if i == 16: stamp(4, "S")
        kload_u(i)
        if i == p.dA - 1: stamp(2, "S"); setup1()
        if i == p.dA: setup2()
        if i == p.dA + 1: setup3()
        if i >= NB and bchunks:
            bchunks.pop(0)()
    if NB >= NS:
        stamp(1); stamp(5, "S")
        a("s_barrier")
        stamp(2); stamp(6, "S")
    while bchunks:
        bchunks.pop(0)()
    a(f"v_lshlrev_b32 v{vLB}, 4, v0")
    a(f"v_add_u32 v{vLB}, s{sLB}, v{vLB}")
    stamp(3); stamp(7, "S")

    def kconsume(i):
        ii = i & 7
        m = ii & 3
        D = vD if ii < 4 else vD2
        for hl in range(2):
            b = vBQ + (m*2+hl)*4
            c = "0" if (m == 0 and hl == 0) else vr(D)
            a(f"v_mfma_f32_16x16x32_bf16 {vr(D)}, {vr(slot(i))}, {vr(b)}, {c}")
    def kpost():
        a("s_nop 7")
        for X_, D in ((vX0, vD), (vX1, vD2)):
            a(f"v_cndmask_b32 v{X_}, v{D}, v{D+1}, {sr(sSUB)}")
            a(f"v_cndmask_b32 v{X_}, v{X_}, v{D+2}, {sr(sSUB+2)}")
            a(f"v_cndmask_b32 v{X_}, v{X_}, v{D+3}, {sr(sSUB+4)}")
        a("s_nop 0")
        a(f"v_add_f32_dpp v{vX0}, v{vX0}, v{vX0} quad_perm:[1,0,3,2] row_mask:0xf bank_mask:0xf")
        a(f"v_add_f32_dpp v{vX1}, v{vX1}, v{vX1} quad_perm:[1,0,3,2] row_mask:0xf bank_mask:0xf")
        a("s_nop 1")
        a(f"v_add_f32_dpp v{vX0}, v{vX0}, v{vX0} quad_perm:[2,3,0,1] row_mask:0xf bank_mask:0xf")
        a(f"v_add_f32_dpp v{vX1}, v{vX1}, v{vX1} quad_perm:[2,3,0,1] row_mask:0xf bank_mask:0xf")
        a(f"v_max3_f32 v{vMN}, v{vMR}, v{vX0}, v{vX1}")
        a(f"ds_write_b32 v{vSA}, v{vX0} offset:{L_ST}")
        a(f"ds_write_b32 v{vSA}, v{vX1} offset:{L_ST+16}")
        a(f"v_sub_f32 v{vA}, v{vMR}, v{vMN}")
        a(f"v_sub_f32 v{vE0}, v{vX0}, v{vMN}")
        a(f"v_sub_f32 v{vE1}, v{vX1}, v{vMN}")
        a(f"v_exp_f32 v{vA}, v{vA}")
        a(f"v_exp_f32 v{vE0}, v{vE0}")
        a(f"v_exp_f32 v{vE1}, v{vE1}")
        a(f"v_mov_b32 v{vMR}, v{vMN}")
        a(f"v_add_u32 v{vSA}, 32, v{vSA}")
        a(f"v_fma_f32 v{vL}, v{vL}, v{vA}, v{vE0}")
        a(f"v_add_f32 v{vL}, v{vL}, v{vE1}")

    issued = NS
    def lds_fetch(grp):
        for ii in range(8):
            i = grp * 8 + ii
            a(f"ds_read_b128 {vr(slot(i))}, v{vLB} offset:{(i-NR)*1024}")
    for grp in range(G0K):
        nxt = grp + 1
        is_lds = NR <= grp * 8 < NS
        if is_lds:
            a("s_waitcnt lgkmcnt(0)")
        if NR <= nxt * 8 < NS and nxt * 8 + 7 < issued:
            a(f"s_waitcnt vmcnt({min(issued - 1 - (nxt*8+7), 63)})")
            lds_fetch(nxt)
        for ii in range(8):
            i = grp * 8 + ii
            if not is_lds:
                oa = issued - 1 - i
                if oa < p.dA + d + 12:
                    a(f"s_waitcnt vmcnt({min(oa, 63)})")
            if i >= NS and i + d >= issued:
                a(f"s_waitcnt vmcnt({min(d-1, issued - 1 - i)})")
                kload_u(issued); issued += 1
            kconsume(i)
        kpost()
        if grp * 8 + 7 < NS:
            a(f"s_waitcnt vmcnt({d-1})")
            kload_u(issued); issued += 1
    assert issued == 8 * G0K + d, (issued, 8 * G0K + d)
    a(f"s_lshl_b32 s{sT0}, s{sWV}, 2")
    a(f"v_mov_b32 v{vA}, s{sT0}")
    a(f"v_mov_b32 v{vE0}, 1")
    a(f"ds_write_b32 v{vA}, v{vE0} offset:{L_PB}")
    stamp(4)
    ngA = G0K
    a(f"s_mov_b32 s{sCUR}, {ngA*32768}")
    a(f"s_mov_b32 s{sNXT}, {(ngA+1)*32768}")
    a.label("L_kloop")
    for ii in range(8):
        a(f"s_waitcnt vmcnt({d-1})")
        n = ii + d
        kload(8*G0K + 8 + (n & 7), f"s{sCUR}" if n < 8 else f"s{sNXT}")
        kconsume(8*G0K + ii)
    kpost()
    a(f"s_mov_b32 s{sCUR}, s{sNXT}")
    a(f"s_add_u32 s{sNXT}, s{sNXT}, 32768")
    a(f"s_cmp_lt_u32 s{sCUR}, {31*32768}")
    a(f"s_cbranch_scc1 L_kloop")
    for ii in range(8):
        a(f"s_waitcnt vmcnt({d-1})")
        n = ii + d
        if n < 8:
            kload(8*G0K + n, f"s{sCUR}")
        else:
            vload(n & 7, "0")
        kconsume(8*G0K + ii)
    kpost()
    a("s_nop 1")
    a(f"v_max_f32_dpp v{vMN}, v{vMR}, v{vMR} row_half_mirror row_mask:0xf bank_mask:0xf")
    a("s_nop 1")
    a(f"v_max_f32_dpp v{vMN}, v{vMN}, v{vMN} row_mirror row_mask:0xf bank_mask:0xf")
    a("s_nop 1")
    for k in range(4):
        a(f"v_readlane_b32 s{sT0+k}, v{vMN}, {16*k}")
    a("s_nop 1")
    a(f"v_mov_b32 v{vMW}, s{sT0}")
    a(f"v_max_f32 v{vMW}, s{sT0+1}, v{vMW}")
    a(f"v_max_f32 v{vMW}, s{sT0+2}, v{vMW}")
    a(f"v_max_f32 v{vMW}, s{sT0+3}, v{vMW}")
    a(f"v_sub_f32 v{vA}, v{vMR}, v{vMW}")
    a(f"v_exp_f32 v{vA}, v{vA}")
    a("s_nop 0")
    a(f"v_mul_f32 v{vL}, v{vL}, v{vA}")
    a("s_nop 1")
    a(f"v_add_f32_dpp v{vL}, v{vL}, v{vL} row_half_mirror row_mask:0xf bank_mask:0xf")
    a("s_nop 1")
    a(f"v_add_f32_dpp v{vL}, v{vL}, v{vL} row_mirror row_mask:0xf bank_mask:0xf")
    a("s_nop 1")
    for k in range(4):
        a(f"v_readlane_b32 s{sT0+k}, v{vL}, {16*k}")
    a("s_nop 1")
    a(f"v_mov_b32 v{vL}, s{sT0}")
    a(f"v_add_f32 v{vL}, s{sT0+1}, v{vL}")
    a(f"v_add_f32 v{vL}, s{sT0+2}, v{vL}")
    a(f"v_add_f32 v{vL}, s{sT0+3}, v{vL}")
    a(f"s_lshl_b32 s{sT0}, s{sWV}, 3")
    a(f"v_mov_b32 v{vT}, s{sT0}")
    a(f"v_mov_b32 v{vT+2}, v{vMW}")
    a(f"v_mov_b32 v{vT+3}, v{vL}")
    a(f"ds_write_b64 v{vT}, v[{vT+2}:{vT+3}] offset:{L_ML}")
    a(f"s_lshl_b32 s{sT0}, s{sWV}, 2")
    a(f"v_mov_b32 v{vPA}, s{sT0}")
    a(f"v_mov_b32 v{vT+4}, 1")
    a("s_waitcnt lgkmcnt(0)")
    a(f"ds_write_b32 v{vPA}, v{vT+4} offset:{L_KF}")
    stamp(5)
    for r in range(4):
        a(f"v_mov_b32 v{vD+r}, 0")
        a(f"v_mov_b32 v{vD2+r}, 0")
    a(f"v_mov_b32 v{vPG}, 0")
    a(f"ds_read_b128 {vr(vS0)}, v{vSR} offset:{L_ST}")
    a(f"ds_read_b128 {vr(vS0+4)}, v{vSR} offset:{L_ST+16}")
    a(f"v_add_u32 v{vSR}, 32, v{vSR}")
    def vconsume(ii, S):
        t, hi, lo, Pk = vP, vP+1, vP+2, vP+3
        a(f"v_sub_f32 v{t}, v{S+ii}, v{vMW}")
        a(f"v_exp_f32 v{t}, v{t}")
        a("s_nop 0")
        a(f"v_and_b32 v{hi}, 0xffff0000, v{t}")
        a(f"v_sub_f32 v{lo}, v{t}, v{hi}")
        a(f"v_cvt_pk_bf16_f32 v{Pk}, v{hi}, v{lo}")
        for r in range(4):
            a(f"v_perm_b32 v{vBT+r}, v{Pk}, v{Pk}, v{vSEL+r}")
        a("s_nop 1")
        D = vD if (ii & 1) == 0 else vD2
        a(f"v_mfma_f32_16x16x32_bf16 {vr(D)}, {vr(vSL+4*ii)}, {vr(vBT)}, {vr(D)}")
    def vgroup(S, Sn, dc, dprev=None):
        a("s_waitcnt lgkmcnt(0)")
        a(f"ds_read_b128 {vr(Sn)}, v{vSR} offset:{L_ST}")
        a(f"ds_read_b128 {vr(Sn+4)}, v{vSR} offset:{L_ST+16}")
        a(f"v_add_u32 v{vSR}, 32, v{vSR}")
        for ii in range(8):
            if dprev is not None and dprev < dc and ii == 0:
                a(f"s_waitcnt vmcnt({dprev-1})")
                for n in range(dprev, dc + 1):
                    vload(n & 7, f"s{sCUR}" if n < 8 else f"s{sNXT}")
            elif dprev is not None and dprev > dc and ii + dc < dprev:
                a(f"s_waitcnt vmcnt({dprev-1-ii})")
            else:
                n = ii + dc
                a(f"s_waitcnt vmcnt({dc-1})")
                vload(n & 7, f"s{sCUR}" if n < 8 else f"s{sNXT}")
            vconsume(ii, S)
    def adv():
        a(f"s_mov_b32 s{sCUR}, s{sNXT}")
        a(f"s_add_u32 s{sNXT}, s{sNXT}, 32768")
    a(f"s_mov_b32 s{sCUR}, 0")
    a(f"s_mov_b32 s{sNXT}, 32768")
    dE, GE = p.dE, p.GE
    assert GE % 2 == 0 and GE >= 4
    G0 = 32 - GE
    vMD = vT + 1; vZ = vT + 2
    a(f"v_mov_b32 v{vZ}, 0")
    def vpair(d1, dprev, tag):
        a(f"v_add_u32 v{vPG}, 2, v{vPG}")
        a(f"ds_write_b32 v{vPA}, v{vPG} offset:{L_VP}")
        if p.ctl: a(f"ds_read_b32 v{vMD}, v{vZ} offset:{L_MD}")
        vgroup(vS0, vS1, d1, dprev); adv()
        vgroup(vS1, vS0, d1); adv()
        if p.ctl: a(f"v_readfirstlane_b32 s{sT0}, v{vMD}")
        a(f"s_cmp_ge_u32 s{sCUR}, {G0*32768}")
        a(f"s_cbranch_scc1 L_vend_{'L' if d1 == d else 'H'}")
    if p.ctl:
        assert dE > d
        a.label("L_vL")
        vpair(d, None, "LL")
        a(f"s_cmp_eq_u32 s{sT0}, 0")
        a(f"s_cbranch_scc1 L_vL")
        a.label("L_vLH")
        vpair(dE, d, "LH")
        a(f"s_cmp_eq_u32 s{sT0}, 0")
        a(f"s_cbranch_scc1 L_vHL")
        a.label("L_vH")
        vpair(dE, None, "HH")
        a(f"s_cmp_lg_u32 s{sT0}, 0")
        a(f"s_cbranch_scc1 L_vH")
        a.label("L_vHL")
        vpair(d, dE, "HL")
        a(f"s_cmp_eq_u32 s{sT0}, 0")
        a(f"s_cbranch_scc1 L_vL")
        a(f"s_branch L_vLH")
        a.label("L_vend_H")
        vgroup(vS0, vS1, dE); adv()
        vgroup(vS1, vS0, dE); adv()
        a("s_branch L_vend_J")
    else:
        a.label("L_vL")
        vpair(d, None, "LL")
        a(f"s_branch L_vL")
    a.label("L_vend_L")
    vgroup(vS0, vS1, dE, d); adv()
    vgroup(vS1, vS0, dE); adv()
    a.label("L_vend_J")
    if GE > 4:
        a.label("L_vloop2")
        for half in range(2):
            vgroup(vS0 if half == 0 else vS1, vS1 if half == 0 else vS0, dE)
            adv()
        a(f"s_cmp_lt_u32 s{sCUR}, {30*32768}")
        a(f"s_cbranch_scc1 L_vloop2")
    vgroup(vS0, vS1, dE)
    a(f"s_mov_b32 s{sCUR}, s{sNXT}")
    a("s_waitcnt lgkmcnt(0)")
    for ii in range(8):
        n = ii + dE
        issued_before = min(ii + dE, 8)
        a(f"s_waitcnt vmcnt({issued_before - 1 - ii})")
        if n < 8:
            vload(n, f"s{sCUR}")
        vconsume(ii, vS1)
    stamp(6)
    a(f"v_mov_b32 v{vT}, 0")
    a.label("L_fr_poll")
    a(f"ds_read_b32 v{vT+1}, v{vT} offset:{L_FR}")
    a(f"s_lshl_b32 s{sT0}, s{sWV}, 2")
    a(f"v_mov_b32 v{vT+2}, s{sT0}")
    a(f"ds_read_b32 v{vT+3}, v{vT+2} offset:{L_F}")
    a("s_waitcnt lgkmcnt(0)")
    a(f"v_cmp_eq_u32 vcc, 0, v{vT+1}")
    a(f"s_cbranch_vccnz L_fr_poll")
    a(f"v_and_b32 v{vT}, 7, v2")
    a(f"v_lshlrev_b32 v{vT}, 1, v{vT}")
    a(f"v_lshl_add_u32 v{vT}, v3, 6, v{vT}")
    a(f"v_lshrrev_b32 v{vT+1}, 3, v2")
    a(f"v_lshl_add_u32 v{vT}, v{vT+1}, 8, v{vT}")
    a(f"s_lshl_b32 s{sT0}, s{sWV}, 9")
    a(f"v_add_u32 v{vT}, s{sT0}, v{vT}")
    a(f"s_mov_b32 s{sT0+2}, 0xff00ff00"); a(f"s_mov_b32 s{sT0+3}, 0xff00ff00")
    for r in range(4):
        a(f"v_add_f32 v{vD+r}, v{vD+r}, v{vD2+r}")
    a("s_nop 1")
    for r in range(4):
        a(f"v_add_f32_dpp v{vD+r}, v{vD+r}, v{vD+r} row_ror:8 row_mask:0xf bank_mask:0xf")
    for r in range(4):
        a(f"v_mul_f32 v{vD+r}, v{vD+r}, v{vT+3}")
    for r in range(4):
        H, hf_, lo = vD2, vD2+1, vD2+2
        a(f"v_cvt_pk_bf16_f32 v{H}, v{vD+r}, v{vD+r}")
        a(f"v_and_b32 v{hf_}, 0xffff0000, v{H}")
        a(f"v_sub_f32 v{lo}, v{vD+r}, v{hf_}")
        a(f"v_cvt_pk_bf16_f32 v{lo}, v{lo}, v{lo}")
        a(f"v_cndmask_b32 v{lo}, v{H}, v{lo}, {sr(sT0+2)}")
        a(f"ds_write_b16 v{vT}, v{lo} offset:{L_OA + r*16}")
    a("s_waitcnt lgkmcnt(0)")
    a("s_barrier")
    stamp(7)
    dump_stamps(8, vT)
    a("s_endpgm")

    a.label("L_helper")
    hSEL = 4
    hB = 8
    hD = 12
    hP = 16
    hT = 48
    hVO = 96
    hDA = 98
    hG = 100
    hW = 128
    a(f"s_sub_u32 s{sHW}, s{sWV}, 4")
    a(f"v_lshlrev_b32 v{hT}, 4, v0")
    a(f"s_lshl_b32 s{sT0}, s{sB}, 10")
    a(f"s_mov_b32 s{SRD_W+2}, 0x400000"); a(f"s_mov_b32 s{SRD_W+3}, 0x00020000")
    a(f"v_lshlrev_b32 v{hVO}, 18, v3")
    a(f"v_lshl_add_u32 v{hVO}, v2, 4, v{hVO}")
    if p.wmap == 0:
        a(f"s_lshr_b32 s{sK8}, s2, 5")
    elif p.wmap == 5:
        a(f"s_lshl_b32 s{sK8}, s{sC}, 1")
    elif p.wmap == 3:
        a(f"s_lshl_b32 s{sK8}, s{sB}, 2")
        a(f"s_add_u32 s{sK8}, s{sK8}, s{sC}")
    else:
        a(f"s_lshl_b32 s{sK8}, s{sB}, 2")
        a(f"s_and_b32 s{sT0+1}, s{sC}, 1")
        a(f"s_lshl_b32 s{sT0+1}, s{sT0+1}, 1")
        a(f"s_add_u32 s{sK8}, s{sK8}, s{sT0+1}")
        a(f"s_lshr_b32 s{sT0+1}, s{sC}, 1")
        a(f"s_add_u32 s{sK8}, s{sK8}, s{sT0+1}")
    a("s_waitcnt lgkmcnt(0)")
    stamp(1, "S")
    a(f"s_add_u32 s{sT0+2}, s{sX}, s{sT0}")
    a(f"s_addc_u32 s{sT0+3}, s{sX+1}, 0")
    a(f"global_load_dwordx4 {vr(hT+4)}, v{hT}, {sr(sT0+2)}")
    a(f"s_mov_b32 s{SRD_W}, s{sWQ}"); a(f"s_mov_b32 s{SRD_W+1}, s{sWQ+1}")
    a(f"s_lshl_b32 s{sT0}, s{sHW}, 20")
    a(f"s_lshl_b32 s{sT0+1}, s{sH}, 8")
    a(f"s_add_u32 s{sT0}, s{sT0}, s{sT0+1}")

    def gemv_step(W, Pk, first, D=hD):
        for r in range(4):
            a(f"v_perm_b32 v{hB+r}, v{Pk}, v{Pk}, v{hSEL+r}")
        a("s_nop 1")
        a(f"v_mfma_f32_16x16x32_bf16 {vr(D)}, {vr(W)}, {vr(hB)}, {'0' if first else vr(D)}")

    X, S, Q = hT + 8, hT + 16, hT + 24
    sR = sT0 + 4
    chunks = []
    def chunk(f): chunks.append(f)
    def c_sel():
        emit_selectors(a, hSEL, hT+8)
    def c_clear():
        a(f"s_cmp_lg_u32 s{sHW}, 0")
        a(f"s_cbranch_scc1 L_h_noclr")
        for r in range(4): a(f"v_mov_b32 v{hT+8+r}, 0")
        a(f"ds_write_b128 v{hT}, {vr(hT+8)} offset:{L_Z}")
        a(f"ds_write_b128 v{hT}, {vr(hT+8)} offset:{L_Z+1024}")
        a.label("L_h_noclr")
        a(f"v_and_b32 v{hDA}, 7, v2")
        a(f"v_lshlrev_b32 v{hDA}, 2, v{hDA}")
        a(f"v_lshl_add_u32 v{hDA}, v3, 7, v{hDA}")
    def c_ln1():
        for r in range(4):
            a(f"v_lshlrev_b32 v{X+2*r}, 16, v{hT+4+r}")
            a(f"v_and_b32 v{X+2*r+1}, 0xffff0000, v{hT+4+r}")
        a(f"v_add_f32 v{S}, v{X}, v{X+1}")
        for e in range(2, 8):
            a(f"v_add_f32 v{S}, v{S}, v{X+e}")
    def c_ln2():
        wave_allreduce_add(a, S, sR)
    def c_ln3():
        a(f"v_mul_f32 v{S}, {f32bits(1.0/512):#x}, v{S}")
        for e in range(8):
            a(f"v_sub_f32 v{X+e}, v{X+e}, v{S}")
        a(f"v_mul_f32 v{S+1}, v{X}, v{X}")
        for e in range(1, 8):
            a(f"v_fmac_f32 v{S+1}, v{X+e}, v{X+e}")
    def c_ln4():
        wave_allreduce_add(a, S + 1, sR)
    def c_ln5():
        a(f"v_mov_b32 v{S+2}, {f32bits(1e-5):#x}")
        a(f"v_fmac_f32 v{S+2}, {f32bits(1.0/512):#x}, v{S+1}")
        a(f"v_sqrt_f32 v{S+2}, v{S+2}")
        a("s_nop 0")
        a(f"v_rcp_f32 v{S+2}, v{S+2}")
        a("s_nop 0")
        for e in range(8):
            a(f"v_mul_f32 v{X+e}, v{X+e}, v{S+2}")
    def c_ln6(lo, hi):
        def f():
            for e in range(lo, hi):
                a(f"v_cvt_pk_bf16_f32 v{S+3}, v{X+e}, v{X+e}")
                a(f"v_and_b32 v{S+3}, 0xffff0000, v{S+3}")
                a(f"v_sub_f32 v{S+4}, v{X+e}, v{S+3}")
                a(f"v_cvt_pk_bf16_f32 v{Q+e}, v{S+3}, v{S+4}")
        return f
    def c_ln7():
        a(f"s_lshl_b32 s{sR}, s{sHW}, 11")
        a(f"v_lshlrev_b32 v{hT+1}, 5, v0")
        a(f"v_add_u32 v{hT+1}, s{sR}, v{hT+1}")
        a(f"ds_write_b128 v{hT+1}, {vr(Q)} offset:{L_XP}")
        a(f"ds_write_b128 v{hT+1}, {vr(Q+4)} offset:{L_XP+16}")
        a(f"s_mul_i32 s{sR}, s{sHW}, {2048+512}")
        a(f"v_lshlrev_b32 v{hT+1}, 7, v3")
        a(f"v_add_u32 v{hT+1}, s{sR}, v{hT+1}")
    def c_ln8():
        a("s_waitcnt lgkmcnt(0)")
        for i in range(8):
            a(f"s_add_u32 s{sR}, s{sK8}, {i}")
            a(f"s_and_b32 s{sR}, s{sR}, 7")
            a(f"s_lshl_b32 s{sR}, s{sR}, 4")
            a(f"v_add_u32 v{hT+2}, s{sR}, v{hT+1}")
            a(f"ds_read_b128 {vr(hP+4*i)}, v{hT+2} offset:{L_XP}")
    def c_ln9():
        a("s_waitcnt lgkmcnt(0)")
        stamp(4, "S")
    pre = [c_sel, c_clear]
    post = [c_ln1, c_ln2, c_ln3, c_ln4, c_ln5, c_ln6(0, 4), c_ln6(4, 8), c_ln7, c_ln8, c_ln9]
    dQ = p.dQ
    next_gemv = 0
    for n in range(32):
        i, r = n >> 2, n & 3
        if n >= dQ:
            a(f"s_waitcnt vmcnt({dQ-1})")
            if n == dQ: stamp(3, "S")
        if r == 0:
            a(f"s_add_u32 s{sT0+1}, s{sK8}, {i}")
            a(f"s_and_b32 s{sT0+1}, s{sT0+1}, 7")
            a(f"s_lshl_b32 s{sT0+1}, s{sT0+1}, 15")
            a(f"s_add_u32 s{sT0+1}, s{sT0+1}, s{sT0}")
        else:
            a(f"s_add_u32 s{sT0+1}, s{sT0+1}, 8192")
        a(f"buffer_load_dwordx4 {vr(hW+4*n)}, v{hVO}, {sr(SRD_W,4)}, s{sT0+1} offen {p.wflags}")
        if pre:
            pre.pop(0)()
        elif n >= dQ and post:
            post.pop(0)()
        elif n >= dQ:
            landed = n - dQ
            k = 0
            while next_gemv <= landed and k < 3:
                gemv_step(hW+4*next_gemv, hP+next_gemv, next_gemv == 0); next_gemv += 1; k += 1
    stamp(2, "S")
    assert not post
    while next_gemv < 32:
        a(f"s_waitcnt vmcnt({31-next_gemv})")
        gemv_step(hW+4*next_gemv, hP+next_gemv, next_gemv == 0); next_gemv += 1
    stamp(6, "S")
    a(f"s_lshl_b32 s{sT0}, s{sHW}, 9")
    a(f"v_add_u32 v{hT}, s{sT0}, v{hDA}")
    a("s_nop 7")
    for r in range(4):
        a(f"v_add_f32_dpp v{hD+r}, v{hD+r}, v{hD+r} row_ror:8 row_mask:0xf bank_mask:0xf")
    for r in range(4):
        a(f"ds_write_b32 v{hT}, v{hD+r} offset:{L_QP + r*32}")
    a("s_waitcnt lgkmcnt(0)")
    stamp(2); stamp(7, "S")
    a("s_barrier")

    def paced_gemv(stride, first, D, dF, cnt=32, Wb=None):
        Wb = hW if Wb is None else Wb
        def ld(n):
            a(f"buffer_load_dwordx4 {vr(Wb+4*n)}, v{hVO}, {sr(SRD_W,4)}, s{sT0} offen {p.wflags}")
            a(f"s_add_u32 s{sT0}, s{sT0}, {stride}")
        for n in range(min(dF, cnt)): ld(n)
        a("s_waitcnt lgkmcnt(0)")
        for n in range(cnt):
            a(f"s_waitcnt vmcnt({min(dF-1, cnt-1-n)})")
            if n + dF < cnt: ld(n + dF)
            gemv_step(Wb+4*n, hP+n, first and n == 0, D)

    a(f"s_cmp_lg_u32 s{sHW}, 1")
    a(f"s_cbranch_scc1 L_h_noinit")
    a(f"s_cmp_lg_u32 s2, 0")
    a(f"s_cbranch_scc1 L_h_noinit")
    for r in range(4):
        a(f"v_mov_b32 v{hT+4+r}, 0")
    a(f"v_lshlrev_b32 v{hT}, 4, v0")
    assert ZERO_BYTES % 2048 == 0
    a(f"s_mov_b32 s{sT0}, {ZERO_BYTES // 2048}")
    a.label("L_zero")
    a(f"global_store_dwordx4 v{hT}, {vr(hT+4)}, {sr(sWS)} sc0 sc1")
    a(f"global_store_dwordx4 v{hT}, {vr(hT+4)}, {sr(sWS)} offset:1024 sc0 sc1")
    a(f"v_add_u32 v{hT}, 2048, v{hT}")
    a(f"s_sub_u32 s{sT0}, s{sT0}, 1")
    a(f"s_cmp_lg_u32 s{sT0}, 0")
    a(f"s_cbranch_scc1 L_zero")
    a("s_waitcnt vmcnt(0)")
    a(f"v_lshlrev_b32 v{hT}, 2, v0")
    a(f"v_add_u32 v{hT}, 32, v{hT}")
    a(f"v_mov_b32 v{hT+1}, 8")
    a(f"v_mov_b32 v{hT+2}, 1")
    a(f"v_cmp_lt_u32 vcc, 7, v0")
    a("s_nop 1")
    a(f"v_cndmask_b32 v{hT+1}, v{hT+1}, v{hT+2}, vcc")
    a(f"s_mov_b64 exec, 0x1ff")
    a(f"global_atomic_add v{hT}, v{hT+1}, {sr(sDBG)}")
    a(f"s_mov_b64 exec, -1")
    a.label("L_h_noinit")

    if p.noffn: a("s_branch L_h_noffn")
    a(f"s_cmp_ge_u32 s{sH}, 14")
    a(f"s_cbranch_scc1 L_h_noffn")
    a(f"v_mul_u32_u24 v{hVO}, {8*3584}, v3")
    a(f"v_lshl_add_u32 v{hVO}, v2, 4, v{hVO}")
    a(f"s_lshl_b32 s{sT0+8}, s{sC}, 2")
    a(f"s_add_u32 s{sT0+8}, s{sT0+8}, s{sHW}")
    a(f"s_lshl_b32 s{sT0}, s{sHW}, 11")
    a(f"s_lshl_b32 s{sT0+1}, s{sT0+8}, 7")
    a(f"s_add_u32 s{sT0}, s{sT0}, s{sT0+1}")
    a(f"v_lshlrev_b32 v{hT+1}, 5, v3")
    a(f"v_add_u32 v{hT+1}, s{sT0}, v{hT+1}")
    for i in range(2):
        a(f"ds_read_b128 {vr(hP+4*i)}, v{hT+1} offset:{L_XP+16*i}")
    for mat, (sP, Lacc) in enumerate([(sW1, L_GA), (sW3, L_UA)]):
        a(f"s_mov_b32 s{SRD_W}, s{sP}"); a(f"s_mov_b32 s{SRD_W+1}, s{sP+1}")
        a(f"s_mov_b32 s{SRD_W+2}, {512*3584}")
        a(f"s_mul_i32 s{sT0}, s{sT0+8}, {32*3584}")
        a(f"s_lshl_b32 s{sT0+1}, s{sH}, 8")
        a(f"s_add_u32 s{sT0}, s{sT0}, s{sT0+1}")
        paced_gemv(3584, True, hD, p.dF, 8)
        a("s_nop 7")
        for r in range(4):
            a(f"v_add_f32_dpp v{hD+r}, v{hD+r}, v{hD+r} row_ror:8 row_mask:0xf bank_mask:0xf")
        a(f"s_mov_b32 s{sT0+6}, 0x00ff00ff"); a(f"s_mov_b32 s{sT0+7}, 0x00ff00ff")
        a(f"s_mov_b64 exec, {sr(sT0+6)}")
        for r in range(4):
            a(f"ds_add_f32 v{hDA}, v{hD+r} offset:{Lacc + r*32}")
        a(f"s_mov_b64 exec, -1")
    a("s_waitcnt lgkmcnt(0)")
    a(f"v_mov_b32 v{hT}, 0")
    a(f"v_mov_b32 v{hT+1}, 1")
    a(f"s_mov_b64 exec, 1")
    a(f"ds_add_u32 v{hT}, v{hT+1} offset:{L_FC}")
    a(f"s_mov_b64 exec, -1")
    a.label("L_ffn_sync")
    a("s_sleep 4")
    a(f"ds_read_b32 v{hT+1}, v{hT} offset:{L_FC}")
    a("s_waitcnt lgkmcnt(0)")
    a(f"v_cmp_ne_u32 vcc, 4, v{hT+1}")
    a(f"s_cbranch_vccnz L_ffn_sync")
    a(f"s_lshl_b32 s{sT0}, s{sHW}, 8")
    a(f"v_lshlrev_b32 v{hT+2}, 2, v0")
    a(f"v_add_u32 v{hT+2}, s{sT0}, v{hT+2}")
    a(f"ds_read_b32 v{hT+3}, v{hT+2} offset:{L_GA}")
    a(f"s_mul_i32 s{sT0+9}, s{sB}, 14")
    a(f"s_add_u32 s{sT0+9}, s{sT0+9}, s{sH}")
    a(f"s_lshl_b32 s{sT0+1}, s{sT0+9}, 12")
    a(f"s_add_u32 s{sT0+1}, s{sT0+1}, {W_FF}")
    a(f"s_lshl_b32 s{sT0+2}, s{sC}, 10")
    a(f"s_add_u32 s{sT0+2}, s{sT0+2}, s{sT0+1}")
    a(f"v_add_u32 v{hT+2}, s{sT0+2}, v{hT+2}")
    a("s_waitcnt lgkmcnt(0)")
    a(f"global_store_dword v{hT+2}, v{hT+3}, {sr(sWS)} sc0 sc1")
    a(f"v_mov_b32 v{hT+4}, 0")
    a(f"v_mov_b32 v{hT+1}, 1")
    a("s_waitcnt vmcnt(0)")
    a(f"s_mov_b64 exec, 1")
    a(f"ds_add_u32 v{hT+4}, v{hT+1} offset:{L_FS}")
    a(f"s_mov_b64 exec, -1")
    a(f"s_cmp_lg_u32 s{sHW}, 0")
    a(f"s_cbranch_scc1 L_ffn_wait")
    a.label("L_ffn_st")
    a("s_sleep 4")
    a(f"ds_read_b32 v{hT+1}, v{hT+4} offset:{L_FS}")
    a("s_waitcnt lgkmcnt(0)")
    a(f"v_cmp_ne_u32 vcc, 4, v{hT+1}")
    a(f"s_cbranch_vccnz L_ffn_st")
    a(f"s_branch L_ffn_z1")
    a.label("L_ffn_z")
    a("s_sleep 64")
    a.label("L_ffn_z1")
    a(f"global_load_dword v{hT+1}, v{hT+4}, {sr(sDBG)} offset:64 sc0 sc1")
    a("s_waitcnt vmcnt(0)")
    a(f"v_cmp_eq_u32 vcc, 0, v{hT+1}")
    a(f"s_cbranch_vccnz L_ffn_z")
    a(f"s_lshl_b32 s{sT0+2}, s{sT0+9}, 6")
    a(f"s_add_u32 s{sT0+2}, s{sT0+2}, {W_FFC}")
    a(f"v_mov_b32 v{hT}, s{sT0+2}")
    a(f"v_mov_b32 v{hT+1}, 1")
    a(f"s_mov_b64 exec, 1")
    a(f"global_atomic_add v{hT}, v{hT+1}, {sr(sWS)}")
    a(f"s_mov_b64 exec, -1")
    a.label("L_ffn_poll")
    a(f"s_sleep {p.fsleep}")
    a(f"global_load_dword v{hT+1}, v{hT}, {sr(sWS)} sc0 sc1")
    a("s_waitcnt vmcnt(0)")
    a(f"v_cmp_ne_u32 vcc, 4, v{hT+1}")
    a(f"s_cbranch_vccnz L_ffn_poll")
    a(f"v_mov_b32 v{hT+1}, 1")
    a(f"ds_write_b32 v{hT+4}, v{hT+1} offset:{L_FG}")
    a.label("L_ffn_wait")
    a("s_sleep 8")
    a(f"ds_read_b32 v{hT+1}, v{hT+4} offset:{L_FG}")
    a("s_waitcnt lgkmcnt(0)")
    a(f"v_cmp_eq_u32 vcc, 0, v{hT+1}")
    a(f"s_cbranch_vccnz L_ffn_wait")
    a(f"s_lshl_b32 s{sT0}, s{sHW}, 7")
    a(f"s_add_u32 s{sT0}, s{sT0}, s{sT0+1}")
    a(f"v_lshlrev_b32 v{hT+2}, 5, v3")
    a(f"v_add_u32 v{hT+2}, s{sT0}, v{hT+2}")
    U = hT + 8
    for cc in range(4):
        G_ = hP if cc == 0 else hP + 8
        U_ = U if cc == 0 else U + 8
        for i in range(2):
            a(f"global_load_dwordx4 {vr(G_+4*i)}, v{hT+2}, {sr(sWS)} offset:{cc*1024+16*i} sc0 sc1")
            a(f"global_load_dwordx4 {vr(U_+4*i)}, v{hT+2}, {sr(sWS)} offset:{cc*1024+512+16*i} sc0 sc1")
        if cc > 0:
            a("s_waitcnt vmcnt(0)")
            for e in range(8):
                a(f"v_add_f32 v{hP+e}, v{hP+e}, v{hP+8+e}")
                a(f"v_add_f32 v{U+e}, v{U+e}, v{U+8+e}")
    a(f"s_mov_b32 s{sT0}, {f32bits(-math.log2(math.e)):#x}")
    a("s_waitcnt vmcnt(0)")
    for n in range(8):
        g_, u_ = hP + n, U + n
        a(f"v_mul_f32 v{hT}, s{sT0}, v{g_}")
        a(f"v_exp_f32 v{hT}, v{hT}")
        a("s_nop 0")
        a(f"v_add_f32 v{hT}, 1.0, v{hT}")
        a(f"v_rcp_f32 v{hT}, v{hT}")
        a("s_nop 0")
        a(f"v_mul_f32 v{hT}, v{hT}, v{g_}")
        a(f"v_mul_f32 v{hT}, v{hT}, v{u_}")
        a(f"v_cvt_pk_bf16_f32 v{hT+1}, v{hT}, v{hT}")
        a(f"v_and_b32 v{hT+1}, 0xffff0000, v{hT+1}")
        a(f"v_sub_f32 v{hT+2}, v{hT}, v{hT+1}")
        a(f"v_cvt_pk_bf16_f32 v{g_}, v{hT+1}, v{hT+2}")
    a(f"s_mov_b32 s{SRD_W}, s{sW2}"); a(f"s_mov_b32 s{SRD_W+1}, s{sW2+1}")
    a(f"s_mov_b32 s{SRD_W+2}, {1792*1024}")
    a(f"v_lshlrev_b32 v{hVO}, 13, v3")
    a(f"v_lshl_add_u32 v{hVO}, v2, 4, v{hVO}")
    a(f"s_lshl_b32 s{sT0}, s{sH}, 17")
    a(f"s_lshl_b32 s{sT0+2}, s{sHW}, 15")
    a(f"s_add_u32 s{sT0}, s{sT0}, s{sT0+2}")
    a(f"s_lshl_b32 s{sT0+2}, s{sC}, 8")
    a(f"s_add_u32 s{sT0}, s{sT0}, s{sT0+2}")
    paced_gemv(1024, True, hD, p.dF, 8)
    a("s_nop 7")
    for r in range(4):
        a(f"v_add_f32_dpp v{hD+r}, v{hD+r}, v{hD+r} row_ror:8 row_mask:0xf bank_mask:0xf")
    emit_y_addr(a, hT+4, hDA, sT0+4, sB, sC)
    emit_atomic_y(a, hD, hT+4, sWS, sT0+6)
    a.label("L_h_noffn")
    stamp(3)

    a(f"s_lshl_b32 s{sT0}, s{sHW}, 2")
    a(f"v_mov_b32 v{hT}, s{sT0}")
    a.label("L_pb_poll")
    a("s_sleep 16")
    a(f"ds_read_b32 v{hT+1}, v{hT} offset:{L_PB}")
    a("s_waitcnt lgkmcnt(0)")
    a(f"v_cmp_eq_u32 vcc, 0, v{hT+1}")
    a(f"s_cbranch_vccnz L_pb_poll")
    a(f"s_mov_b32 s{SRD_W}, s{sWO}"); a(f"s_mov_b32 s{SRD_W+1}, s{sWO+1}")
    a(f"s_mov_b32 s{SRD_W+2}, 0x400000")
    a(f"v_lshlrev_b32 v{hVO}, 10, v3")
    a(f"v_lshl_add_u32 v{hVO}, v2, 4, v{hVO}")
    a(f"s_lshl_b32 s{sT0}, s{sH}, 17")
    a(f"s_lshl_b32 s{sT0+2}, s{sHW}, 8")
    a(f"s_add_u32 s{sT0}, s{sT0}, s{sT0+2}")
    a(f"s_lshl_b32 s{sT0+3}, s{sHW}, 15")
    a(f"s_add_u32 s{sT0+3}, s{sT0+3}, {L_KB}")
    for n in range(0 if p.nowo else 32):
        if n >= p.dW:
            a(f"s_waitcnt vmcnt({p.dW-1})")
        a(f"s_add_u32 m0, s{sT0+3}, {n*1024}")
        a("s_nop 0")
        a(f"buffer_load_dwordx4 v{hVO}, {sr(SRD_W,4)}, s{sT0} offen {p.wflags} lds")
        a(f"s_add_u32 s{sT0}, s{sT0}, 4096")
    a(f"v_lshrrev_b32 v{hT}, 2, v2")
    a(f"v_lshlrev_b32 v{hT}, 8, v{hT}")
    a(f"v_and_b32 v{hT+1}, 3, v2")
    a(f"v_lshl_add_u32 v{hT}, v{hT+1}, 3, v{hT}")
    a(f"v_lshl_add_u32 v{hT}, v3, 11, v{hT}")
    a(f"v_add_u32 v{hT}, s{sT0+3}, v{hT}")
    a("s_waitcnt vmcnt(0)")
    for ct in range(8):
        for ks in range(4):
            for hf in range(2):
                a(f"ds_read_b64_tr_b16 v[{hW + (ct*4+ks)*4 + 2*hf}:{hW + (ct*4+ks)*4 + 2*hf + 1}], v{hT} offset:{(32*ks + 4*hf)*256 + ct*32}")
        a("s_waitcnt lgkmcnt(0)")
    stamp(4)

    if p.ctl:
        a(f"s_cmp_lg_u32 s{sHW}, 2")
        a(f"s_cbranch_scc1 L_h_noctl")
        emit_wait_flag(a, "ctl", sDBG, hT)
        a(f"s_lshl_b32 s{sT0}, s2, 2")
        a(f"s_add_u32 s{sT0}, s{sT0}, {W_PR}")
        a(f"v_mov_b32 v{hT+2}, s{sT0}")
        a(f"s_and_b32 s{sT0+1}, s{sT0}, 0xffffffe0")
        a(f"v_and_b32 v{hT+3}, 7, v0")
        a(f"v_lshlrev_b32 v{hT+3}, 2, v{hT+3}")
        a(f"v_add_u32 v{hT+3}, s{sT0+1}, v{hT+3}")
        a(f"v_mov_b32 v{hT}, 0")
        a.label("L_ctl_loop")
        a(f"s_sleep {p.csleep}")
        a(f"ds_read_b32 v{hT+4}, v{hT} offset:{L_VP}")
        a("s_waitcnt lgkmcnt(0)")
        a(f"v_add_u32 v{hT+5}, 1, v{hT+4}")
        a(f"s_mov_b64 exec, 1")
        a(f"global_store_dword v{hT+2}, v{hT+5}, {sr(sWS)} sc0 sc1")
        a(f"s_mov_b64 exec, -1")
        a(f"global_load_dword v{hT+6}, v{hT+3}, {sr(sWS)} sc0 sc1")
        a("s_waitcnt vmcnt(0)")
        a(f"v_cmp_ne_u32 vcc, 0, v{hT+6}")
        a(f"v_mov_b32 v{hT+7}, 0")
        a(f"v_add_u32 v{hT+8}, {p.cdelta}, v{hT+5}")
        a(f"v_cndmask_b32 v{hT+7}, v{hT+7}, v{hT+8}, vcc")
        a(f"v_sub_u32 v{hT+6}, v{hT+6}, v{hT+7}")
        for ctrl in ("quad_perm:[1,0,3,2]", "quad_perm:[2,3,0,1]", "row_half_mirror"):
            a("s_nop 1")
            a(f"v_add_u32_dpp v{hT+6}, v{hT+6}, v{hT+6} {ctrl} row_mask:0xf bank_mask:0xf")
        a(f"v_cmp_lt_i32 vcc, 0, v{hT+6}")
        a(f"v_mov_b32 v{hT+7}, 0")
        a("s_nop 0")
        a(f"v_cndmask_b32 v{hT+7}, v{hT+7}, 1, vcc")
        a(f"ds_write_b32 v{hT}, v{hT+7} offset:{L_MD}")
        a(f"v_cmp_gt_u32 vcc, {32 - p.GE}, v{hT+4}")
        a(f"s_cbranch_vccnz L_ctl_loop")
        a.label("L_h_noctl")

    if p.noml: a("s_branch L_h_noml")
    a(f"s_cmp_lg_u32 s{sHW}, 0")
    a(f"s_cbranch_scc1 L_h_noml")
    a(f"v_mov_b32 v{hT}, 0")
    a.label("L_ml_poll")
    a("s_sleep 16")
    a(f"ds_read_b128 {vr(hT+4)}, v{hT} offset:{L_KF}")
    a("s_waitcnt lgkmcnt(0)")
    a(f"v_and_b32 v{hT+4}, v{hT+4}, v{hT+5}")
    a(f"v_and_b32 v{hT+6}, v{hT+6}, v{hT+7}")
    a(f"v_and_b32 v{hT+4}, v{hT+4}, v{hT+6}")
    a(f"v_cmp_eq_u32 vcc, 1, v{hT+4}")
    a(f"s_cbranch_vccz L_ml_poll")
    a(f"ds_read_b128 {vr(hT+4)}, v{hT} offset:{L_ML}")
    a(f"ds_read_b128 {vr(hT+8)}, v{hT} offset:{L_ML+16}")
    a("s_waitcnt lgkmcnt(0)")
    m = [hT+4, hT+6, hT+8, hT+10]; l = [hT+5, hT+7, hT+9, hT+11]
    MC, LC = hT+12, hT+13
    a(f"v_max_f32 v{MC}, v{m[0]}, v{m[1]}")
    a(f"v_max3_f32 v{MC}, v{MC}, v{m[2]}, v{m[3]}")
    for k in range(4):
        a(f"v_sub_f32 v{hT+16+k}, v{m[k]}, v{MC}")
    for k in range(4):
        a(f"v_exp_f32 v{hT+16+k}, v{hT+16+k}")
    a("s_nop 0")
    a(f"v_mul_f32 v{LC}, v{l[0]}, v{hT+16}")
    for k in range(1, 4):
        a(f"v_fmac_f32 v{LC}, v{l[k]}, v{hT+16+k}")
    a(f"s_lshl_b32 s{sT0}, s{sBH}, 5")
    a(f"s_lshl_b32 s{sT0+1}, s{sC}, 3")
    a(f"s_add_u32 s{sT0+1}, s{sT0+1}, s{sT0}")
    a(f"s_add_u32 s{sT0+1}, s{sT0+1}, {W_ML}")
    a(f"v_mov_b32 v{hT+20}, s{sT0+1}")
    a(f"s_lshr_b32 s{sT0+2}, s{sBH}, 3")
    a(f"s_lshl_b32 s{sT0+2}, s{sT0+2}, 2")
    a(f"s_add_u32 s{sT0+2}, s{sT0+2}, 32")
    a(f"s_and_b32 s{sT0+3}, s{sBH}, 7")
    a(f"s_lshl_b32 s{sT0+3}, s{sT0+3}, 2")
    a(f"s_lshl_b32 s{sT0+4}, 1, s{sT0+3}")
    a(f"v_mov_b32 v{hT+21}, s{sT0+2}")
    a(f"v_mov_b32 v{hT+22}, s{sT0+4}")
    a(f"s_mov_b64 exec, 1")
    a(f"global_store_dwordx2 v{hT+20}, v[{MC}:{LC}], {sr(sWS)} sc0 sc1")
    a("s_waitcnt vmcnt(0)")
    a(f"global_atomic_add v{hT+21}, v{hT+22}, {sr(sDBG)}")
    a(f"s_mov_b64 exec, -1")
    a.label("L_vp_poll")
    a("s_sleep 32")
    a(f"ds_read_b32 v{hT+23}, v{hT} offset:{L_VP}")
    a("s_waitcnt lgkmcnt(0)")
    a(f"v_cmp_gt_u32 vcc, {p.vsig}, v{hT+23}")
    a(f"s_cbranch_vccnz L_vp_poll")
    a.label("L_grp_poll")
    a(f"global_load_dword v{hT+23}, v{hT+21}, {sr(sDBG)} sc0 sc1")
    a("s_waitcnt vmcnt(0)")
    a(f"v_lshrrev_b32 v{hT+25}, s{sT0+3}, v{hT+23}")
    a(f"v_and_b32 v{hT+25}, 7, v{hT+25}")
    a(f"v_and_b32 v{hT+23}, 8, v{hT+23}")
    a(f"v_or_b32 v{hT+23}, v{hT+23}, v{hT+25}")
    a(f"v_cmp_eq_u32 vcc, 12, v{hT+23}")
    a(f"s_cbranch_vccnz L_grp_done")
    a("s_sleep 64")
    a("s_branch L_grp_poll")
    a.label("L_grp_done")
    a(f"v_and_b32 v{hT+24}, 3, v0")
    a(f"v_lshlrev_b32 v{hT+24}, 3, v{hT+24}")
    a(f"s_add_u32 s{sT0}, s{sT0}, {W_ML}")
    a(f"v_add_u32 v{hT+24}, s{sT0}, v{hT+24}")
    a(f"global_load_dwordx2 v[{hT+26}:{hT+27}], v{hT+24}, {sr(sWS)} sc0 sc1")
    a("s_waitcnt vmcnt(0)")
    GM, GL = hT+28, hT+29
    a(f"v_max_f32_dpp v{GM}, v{hT+26}, v{hT+26} quad_perm:[1,0,3,2] row_mask:0xf bank_mask:0xf")
    a("s_nop 1")
    a(f"v_max_f32_dpp v{GM}, v{GM}, v{GM} quad_perm:[2,3,0,1] row_mask:0xf bank_mask:0xf")
    a("s_nop 1")
    a(f"v_sub_f32 v{GL}, v{hT+26}, v{GM}")
    a(f"v_exp_f32 v{GL}, v{GL}")
    a("s_nop 0")
    a(f"v_mul_f32 v{GL}, v{GL}, v{hT+27}")
    a("s_nop 1")
    a(f"v_add_f32_dpp v{GL}, v{GL}, v{GL} quad_perm:[1,0,3,2] row_mask:0xf bank_mask:0xf")
    a("s_nop 1")
    a(f"v_add_f32_dpp v{GL}, v{GL}, v{GL} quad_perm:[2,3,0,1] row_mask:0xf bank_mask:0xf")
    a("s_nop 1")
    a(f"v_rcp_f32 v{GL}, v{GL}")
    for k in range(4):
        a(f"v_sub_f32 v{hT+16+k}, v{m[k]}, v{GM}")
    for k in range(4):
        a(f"v_exp_f32 v{hT+16+k}, v{hT+16+k}")
    a("s_nop 0")
    for k in range(4):
        a(f"v_mul_f32 v{hT+16+k}, v{hT+16+k}, v{GL}")
    a(f"ds_write_b128 v{hT}, {vr(hT+16)} offset:{L_F}")
    a(f"v_mov_b32 v{hT+30}, 1")
    a("s_waitcnt lgkmcnt(0)")
    a(f"ds_write_b32 v{hT}, v{hT+30} offset:{L_FR}")
    a.label("L_h_noml")
    a(f"s_and_b32 s{sT0+4}, s2, {NREP-1}")
    a(f"s_lshl_b32 s{sT0+4}, s{sT0+4}, 12")
    a(f"s_lshl_b32 s{sT0+5}, s{sB}, 11")
    a(f"s_add_u32 s{sT0+4}, s{sT0+4}, s{sT0+5}")
    a(f"s_lshl_b32 s{sT0+5}, s{sHW}, 9")
    a(f"s_add_u32 s{sT0+4}, s{sT0+4}, s{sT0+5}")
    a(f"v_lshrrev_b32 v{hT+40}, 1, v3")
    a(f"v_lshlrev_b32 v{hT+40}, 6, v{hT+40}")
    a(f"v_lshl_add_u32 v{hT+40}, v2, 2, v{hT+40}")
    a(f"v_add_u32 v{hT+40}, s{sT0+4}, v{hT+40}")
    a(f"v_and_b32 v{hT+41}, 7, v2")
    a(f"v_lshlrev_b32 v{hT+41}, 8, v{hT+41}")
    a(f"v_lshl_add_u32 v{hT+41}, v3, 4, v{hT+41}")
    a(f"s_mov_b32 s{sT0+6}, 0"); a(f"s_mov_b32 s{sT0+7}, -1")
    a(f"v_mov_b32 v{hT+42}, 0")
    a("s_waitcnt vmcnt(0) lgkmcnt(0)")
    stamp(5)
    a("s_barrier")
    stamp(6)
    AF = hP
    for ks in range(4):
        a(f"ds_read_b128 {vr(AF+4*ks)}, v{hT+41} offset:{L_OA + ks*64}")
    DD = hT
    for ks in range(4):
        a(f"s_waitcnt lgkmcnt({3-ks})")
        for ct in range(8):
            a(f"v_mfma_f32_16x16x32_bf16 {vr(DD+4*ct)}, {vr(AF+4*ks)}, {vr(hW+(ct*4+ks)*4)}, {'0' if ks == 0 else vr(DD+4*ct)}")
    for ct in range(8):
        if ct == 0: a("s_nop 3")
        a(f"v_add_f32 v{DD+4*ct}, v{DD+4*ct}, v{DD+4*ct+1}")
        a(f"v_add_f32 v{DD+4*ct+2}, v{DD+4*ct+2}, v{DD+4*ct+3}")
    for ct in range(8):
        a(f"v_add_f32 v{DD+4*ct}, v{DD+4*ct}, v{DD+4*ct+2}")
    for pr in range(4):
        a(f"v_cndmask_b32 v{DD+8*pr}, v{DD+8*pr}, v{DD+8*pr+4}, {sr(sT0+6)}")
        a(f"global_atomic_add_f32 v{hT+40}, v{DD+8*pr}, {sr(sWS)} offset:{pr*128}")
    a("s_waitcnt vmcnt(0)")
    stamp(7)
    a("s_barrier")
    a(f"s_cmp_lg_u32 s{sHW}, 0")
    a(f"s_cbranch_scc1 L_h_noarr")
    a(f"s_lshr_b32 s{sT0}, s2, 4")
    a(f"s_lshl_b32 s{sT0}, s{sT0}, 8")
    a(f"s_add_u32 s{sT0}, s{sT0}, {W_CNT}")
    a(f"v_mov_b32 v{hT}, s{sT0}")
    a(f"v_mov_b32 v{hT+1}, 1")
    a(f"s_mov_b64 exec, 1")
    a(f"global_atomic_add v{hT}, v{hT+1}, {sr(sWS)}")
    a(f"s_mov_b64 exec, -1")
    a.label("L_h_noarr")
    a(f"s_cmp_lg_u32 s2, 0")
    a(f"s_cbranch_scc1 L_hend")
    a(f"v_and_b32 v{hT}, {NCNT-1}, v0")
    a(f"v_lshlrev_b32 v{hT}, 8, v{hT}")
    a(f"v_add_u32 v{hT}, {W_CNT}, v{hT}")
    a(f"s_lshl_b32 s{sT0}, s{sHW}, 9")
    a(f"v_lshlrev_b32 v{hT+1}, 3, v0")
    a(f"v_add_u32 v{hT+1}, s{sT0}, v{hT+1}")
    a(f"global_load_dwordx2 v[{hT+4}:{hT+5}], v{hT+1}, {sr(sX)}")
    a(f"v_lshlrev_b32 v{hT+3}, 1, v{hT+1}")
    a.label("L_fin_poll")
    a(f"global_load_dword v{hT+2}, v{hT}, {sr(sWS)} sc0 sc1")
    a("s_waitcnt vmcnt(0)")
    a(f"v_cmp_ne_u32 vcc, {256//NCNT}, v{hT+2}")
    a(f"s_cbranch_vccnz L_fin_poll")
    stamp(8)
    for rep in range(NREP):
        a(f"global_load_dwordx4 {vr(hW + rep*4)}, v{hT+3}, {sr(sWS)} sc0 sc1")
        a(f"v_add_u32 v{hT+3}, 4096, v{hT+3}")
    a(f"v_lshlrev_b32 v{hT+8}, 16, v{hT+4}")
    a(f"v_and_b32 v{hT+9}, 0xffff0000, v{hT+4}")
    a(f"v_lshlrev_b32 v{hT+10}, 16, v{hT+5}")
    a(f"v_and_b32 v{hT+11}, 0xffff0000, v{hT+5}")
    for rep in range(NREP):
        a(f"s_waitcnt vmcnt({NREP-1-rep})")
        for e in range(4):
            a(f"v_add_f32 v{hT+8+e}, v{hT+8+e}, v{hW+rep*4+e}")
    a(f"v_cvt_pk_bf16_f32 v{hT+12}, v{hT+8}, v{hT+9}")
    a(f"v_cvt_pk_bf16_f32 v{hT+13}, v{hT+10}, v{hT+11}")
    a(f"global_store_dwordx2 v{hT+1}, v[{hT+12}:{hT+13}], {sr(sOUT)}")
    a.label("L_hend")
    stamp(9)
    dump_stamps(10, hT)
    a.label("L_end")
    a("s_endpgm")

    kd = f""".section .rodata,"a"
.p2align 6
.amdhsa_kernel {NAME}
  .amdhsa_next_free_vgpr 256
  .amdhsa_next_free_sgpr 102
  .amdhsa_accum_offset 256
  .amdhsa_group_segment_fixed_size 0
  .amdhsa_kernarg_size 96
  .amdhsa_user_sgpr_count 2
  .amdhsa_user_sgpr_kernarg_segment_ptr 1
  .amdhsa_system_sgpr_workgroup_id_x 1
.end_amdhsa_kernel
"""
    txt = HEADER + f"; @launch grid=(256,1,1) block=(512,1,1) lds={lds_bytes(p.NL)}\n"
    txt += f'.amdgcn_target "amdgcn-amd-amdhsa--gfx950"\n.text\n.globl {NAME}\n.p2align 8\n.type {NAME},@function\n'
    txt += a.text() + kd
    return txt

def emit_selectors(a, vSEL, vT):
    a(f"v_lshrrev_b32 v{vT}, 3, v2")
    a(f"v_mul_u32_u24 v{vT}, 0x0202, v{vT}")
    a(f"v_add_u32 v{vT}, 0x0100, v{vT}")
    a(f"v_lshlrev_b32 v{vT+1}, 16, v{vT}")
    a(f"v_or_b32 v{vT+1}, 0x0c0c, v{vT+1}")
    a(f"v_or_b32 v{vT}, 0x0c0c0000, v{vT}")
    a(f"v_and_b32 v{vT+2}, 1, v2")
    a(f"v_cmp_eq_u32 vcc, 1, v{vT+2}")
    a("s_nop 1")
    a(f"v_cndmask_b32 v{vT}, v{vT}, v{vT+1}, vcc")
    a(f"v_bfe_u32 v{vT+2}, v2, 1, 2")
    a(f"v_mov_b32 v{vT+1}, 0x0c0c0c0c")
    for r in range(4):
        a(f"v_cmp_eq_u32 vcc, {r}, v{vT+2}")
        a("s_nop 1")
        a(f"v_cndmask_b32 v{vSEL+r}, v{vT+1}, v{vT}, vcc")

def wave_allreduce_add(a, v, sT):
    a("s_nop 1")
    a(f"v_add_f32_dpp v{v}, v{v}, v{v} quad_perm:[1,0,3,2] row_mask:0xf bank_mask:0xf")
    a("s_nop 1")
    a(f"v_add_f32_dpp v{v}, v{v}, v{v} quad_perm:[2,3,0,1] row_mask:0xf bank_mask:0xf")
    a("s_nop 1")
    a(f"v_add_f32_dpp v{v}, v{v}, v{v} row_half_mirror row_mask:0xf bank_mask:0xf")
    a("s_nop 1")
    a(f"v_add_f32_dpp v{v}, v{v}, v{v} row_mirror row_mask:0xf bank_mask:0xf")
    a("s_nop 1")
    for k in range(4):
        a(f"v_readlane_b32 s{sT+k}, v{v}, {16*k}")
    a("s_nop 1")
    a(f"v_mov_b32 v{v}, s{sT}")
    a(f"v_add_f32 v{v}, s{sT+1}, v{v}")
    a(f"v_add_f32 v{v}, s{sT+2}, v{v}")
    a(f"v_add_f32 v{v}, s{sT+3}, v{v}")

def emit_wait_flag(a, tag, sDBG, vT):
    a(f"v_mov_b32 v{vT}, 0")
    a(f"s_branch L_flag1_{tag}")
    a.label(f"L_flag_{tag}")
    a("s_sleep 48")
    a.label(f"L_flag1_{tag}")
    a(f"global_load_dword v{vT+1}, v{vT}, s[{sDBG}:{sDBG+1}] offset:4 sc0 sc1")
    a("s_waitcnt vmcnt(0)")
    a(f"v_cmp_eq_u32 vcc, 0, v{vT+1}")
    a(f"s_cbranch_vccnz L_flag_{tag}")

def emit_y_addr(a, vaddr, hDA, sT, sB, sHW):
    a(f"s_and_b32 s{sT}, s2, {NREP-1}")
    a(f"s_lshl_b32 s{sT}, s{sT}, 12")
    a(f"s_lshl_b32 s{sT+1}, s{sB}, 11")
    a(f"s_add_u32 s{sT}, s{sT}, s{sT+1}")
    a(f"s_lshl_b32 s{sT+1}, s{sHW}, 9")
    a(f"s_add_u32 s{sT}, s{sT}, s{sT+1}")
    a(f"v_add_u32 v{vaddr}, s{sT}, v{hDA}")

def emit_atomic_y(a, D, vaddr, sWS, sTmp):
    a(f"s_mov_b32 s{sTmp}, 0x00ff00ff"); a(f"s_mov_b32 s{sTmp+1}, 0x00ff00ff")
    a(f"s_mov_b64 exec, s[{sTmp}:{sTmp+1}]")
    for r in range(4):
        a(f"global_atomic_add_f32 v{vaddr}, v{D+r}, s[{sWS}:{sWS+1}] offset:{r*32}")
    a(f"s_mov_b64 exec, -1")

if __name__ == "__main__":
    out = sys.argv[1] if len(sys.argv) > 1 else OUT
    if out == "-": out = OUT
    for kv in sys.argv[2:]:
        k, v = kv.split("=", 1)
        cur = getattr(P, k)
        setattr(P, k, (v == "1") if isinstance(cur, bool) else type(cur)(v))
    open(out, "w").write(gen())
    print("wrote", out)
```

```python
import sys, os, math, struct

NAME = "parallel_sum__mha_block_cached__glu_gated_swiglu__decode_kernel"
OUT = "parallel_sum__mha_block_cached__glu_gated_swiglu__decode.s"

HEADER = """; Kernarg layout for this problem (96 bytes, ptrs only, base s[0:1]):
"""

class P:
    d = 5
    dA = 5
    NR = 48
    NL = 32
    NB = 64
    dQ = 3
    dF = 2
    dW = 4
    kvflags = "nt"
    wflags = ""
    stamps = False
    stampset = 'A'
    noffn = False
    nowo = False
    noml = False
    dE = 7
    f64 = True
    fin_thr = 160
    dA0 = 5
    nA0 = 0
    fsleep = 120
    ctl = False
    cdelta = 1
    csleep = 64
    wmap = 3
    GE = 8
    vsig = 22

class Asm:
    def __init__(self):
        self.L = []
    def __call__(self, s):
        self.L.append("    " + s)
    def label(self, s):
        self.L.append(s + ":")
    def c(self, s):
        self.L.append("    ; " + s)
    def text(self):
        return "\n".join(self.L) + "\n"

def vr(b, n=4):
    return f"v[{b}:{b+n-1}]"
def sr(b, n=2):
    return f"s[{b}:{b+n-1}]"
def f32bits(x):
    return struct.unpack("<I", struct.pack("<f", x))[0]

RS = 1040
L_ST = 0
L_XP = 16640
L_QP = L_XP + 8192
L_Z = L_QP + 2048
L_ML = L_Z
L_KF = L_Z + 32
L_F = L_Z + 64
L_VP = L_Z + 80
L_FC = L_Z + 96
L_FR = L_Z + 100
L_FI = L_Z + 104
L_PB = L_Z + 112
L_FG = L_Z + 132
L_FS = L_Z + 136
L_MD = L_Z + 128
L_GA = L_Z + 512
L_UA = L_Z + 1024
L_OA = L_Z + 2048
L_KB = L_OA + 2048
def lds_bytes(NL): return (L_KB + 4 * NL * 1024 + 255) // 256 * 256

W_ACC = 0
NREP = 8
W_CNT = 32768
NCNT = 16
W_A64 = 40960
W_FF = 81920
W_ML = W_FF + 28*4096
W_PR = 32768 + 4096
W_FFC = 32768 + 4096
ZERO_BYTES = 81920
CBIG = float(1 << 20)
YLIM = 2048.0
def f64pair(x):
    b = struct.unpack('<Q', struct.pack('<d', x))[0]
    return b & 0xffffffff, b >> 32

SCALE = (128 ** -0.5) * math.log2(math.e)

def gen(p=P):
    a = Asm()
    d = p.d
    NR, NL, NB = p.NR, p.NL, p.NB
    NS = NR + NL
    def stamp(k, which="A"):
        if p.stamps and p.stampset == which:
            a(f"s_memrealtime s[{82+2*k}:{83+2*k}]")
    def dump_stamps(n, vtmp):
        if not p.stamps: return
        a("s_waitcnt lgkmcnt(0)")
        a(f"s_lshl_b32 s81, s2, 3")
        a(f"s_add_u32 s81, s81, s3")
        a(f"s_lshl_b32 s81, s81, 6")
        a(f"s_add_u32 s81, s81, 0x100000")
        a(f"v_mov_b32 v{vtmp}, s81")
        a("s_mov_b64 exec, 1")
        for k in range(n):
            a(f"v_mov_b32 v{vtmp+1}, s{82+2*k}")
            a(f"global_store_dword v{vtmp}, v{vtmp+1}, s[30:31] offset:{4*k}")
        a("s_mov_b64 exec, -1")
    sX, sK, sV, sWQ, sWO, sW1, sW3, sW2, sOUT, sDBG, sWS = 8, 10, 12, 14, 16, 20, 22, 24, 26, 28, 30
    sH, sB, sC, sBH = 32, 33, 34, 35
    SRD_K, SRD_V, SRD_W = 36, 40, 44
    sSUB = 48
    sLB = 54
    sM0 = 56
    sCUR, sNXT = 64, 65
    sHW, sK8, sFIRST = 66, 67, 81
    sT0 = 68
    sWV = 3

    a.label(NAME)
    a(f"s_cmp_ge_u32 s2, 256")
    a(f"s_cbranch_scc1 L_end")
    a(f"s_load_dwordx16 s[8:23], s[0:1], 0")
    a(f"s_load_dwordx8 s[24:31], s[0:1], 64")
    a(f"v_lshrrev_b32 v1, 6, v0")
    a(f"v_and_b32 v0, 63, v0")
    a(f"v_readfirstlane_b32 s{sWV}, v1")
    if p.wmap == 0:
        a(f"s_and_b32 s{sH}, s2, 31")
        a(f"s_bfe_u32 s{sB}, s2, 0x10005")
        a(f"s_lshr_b32 s{sC}, s2, 6")
    elif p.wmap == 1:
        a(f"s_and_b32 s{sC}, s2, 1")
        a(f"s_lshl_b32 s{sC}, s{sC}, 1")
        a(f"s_bfe_u32 s{sB}, s2, 0x10003")
        a(f"s_or_b32 s{sC}, s{sC}, s{sB}")
        a(f"s_bfe_u32 s{sH}, s2, 0x30004")
        a(f"s_lshl_b32 s{sH}, s{sH}, 2")
        a(f"s_bfe_u32 s{sB}, s2, 0x20001")
        a(f"s_or_b32 s{sH}, s{sH}, s{sB}")
        a(f"s_lshr_b32 s{sB}, s2, 7")
    elif p.wmap == 3:
        a(f"s_bfe_u32 s{sC}, s2, 0x20003")
        a(f"s_and_b32 s{sH}, s2, 3")
        a(f"s_bfe_u32 s{sB}, s2, 0x20005")
        a(f"s_lshl_b32 s{sB}, s{sB}, 2")
        a(f"s_or_b32 s{sH}, s{sH}, s{sB}")
        a(f"s_bfe_u32 s{sB}, s2, 0x10002")
        a(f"s_lshl_b32 s{sB}, s{sB}, 4")
        a(f"s_or_b32 s{sH}, s{sH}, s{sB}")
        a(f"s_lshr_b32 s{sB}, s2, 7")
    elif p.wmap == 2:
        a(f"s_and_b32 s{sC}, s2, 3")
        a(f"s_bfe_u32 s{sH}, s2, 0x50002")
        a(f"s_lshr_b32 s{sB}, s2, 7")
    elif p.wmap == 5:
        a(f"s_bfe_u32 s{sC}, s2, 0x20003")
        a(f"s_bfe_u32 s{sH}, s2, 0x30005")
        a(f"s_and_b32 s{sB}, s2, 3")
        a(f"s_lshl_b32 s{sB}, s{sB}, 3")
        a(f"s_or_b32 s{sH}, s{sH}, s{sB}")
        a(f"s_bfe_u32 s{sB}, s2, 0x10002")
    a(f"s_lshl_b32 s{sBH}, s{sB}, 5")
    a(f"s_add_u32 s{sBH}, s{sBH}, s{sH}")
    a(f"v_and_b32 v2, 15, v0")
    a(f"v_lshrrev_b32 v3, 4, v0")
    stamp(0); stamp(0, "S")
    a(f"s_cmp_ge_u32 s{sWV}, 4")
    a(f"s_cbranch_scc1 L_helper")

    vKO0, vKO1, vVO0, vVO1 = 4, 5, 6, 7
    vSA, vSR, vMR, vL = 8, 9, 10, 11
    vX0, vX1, vMN, vA, vE0, vE1, vMW, vPG = 12, 13, 14, 15, 16, 17, 18, 19
    vD, vD2, vSEL = 20, 24, 28
    vBQ = 32
    vBT, vS0, vS1, vP = 32, 36, 44, 52
    vPA = 56
    vLB = 1
    vT = 56
    vSL = 64

    t0, t1, t2 = vX0, vX1, vMN
    a(f"v_lshrrev_b32 v{t0}, 2, v2")
    a(f"v_and_b32 v{t1}, 3, v2")
    a(f"v_lshlrev_b32 v{t0}, 8, v{t0}")
    a(f"v_lshlrev_b32 v{t1}, 4, v{t1}")
    a(f"v_lshlrev_b32 v{t2}, 6, v3")
    a(f"v_add3_u32 v{vKO0}, v{t0}, v{t1}, v{t2}")
    a(f"s_lshl_b32 s{sT0}, s{sWV}, 13")
    a(f"s_lshl_b32 s{sT0+1}, s{sBH}, 2")
    a(f"s_add_u32 s{sT0+1}, s{sT0+1}, s{sC}")
    a(f"s_lshl_b32 s{sT0+1}, s{sT0+1}, 20")
    a(f"v_add_u32 v{vKO0}, s{sT0}, v{vKO0}")
    a(f"v_add_u32 v{vKO1}, 0x1000, v{vKO0}")
    a(f"s_mov_b32 s{SRD_K+2}, 0x100000")
    a(f"s_mov_b32 s{SRD_K+3}, 0x00020000")
    a(f"s_mov_b32 s{sCUR}, 0")
    a(f"s_waitcnt lgkmcnt(0)")
    stamp(1, "S")
    a(f"s_add_u32 s{SRD_K}, s{sK}, s{sT0+1}")
    a(f"s_addc_u32 s{SRD_K+1}, s{sK+1}, 0")

    G0K = (NS + 16) // 8
    assert NS % 16 == 0 and NR >= 32 and NL % 8 == 0
    def slot(i):
        if i < NR: return vSL + 4 * i
        if i < NS: return vSL + 4 * (16 + ((i - NR) % 16))
        if i < 8 * G0K: return vSL + 4 * (i % 16)
        return vSL + 4 * (i % 8)
    def kimm(i):
        ii = i & 7
        return (vKO1 if ii >= 4 else vKO0), (ii & 3) * 1024
    def kload(i, soff):
        vo, imm = kimm(i)
        if NR <= i < NS:
            c = (i - NR) * 1024 - imm
            a(f"s_add_u32 m0, s{sLB}, {c & 0xffffffff:#x}")
            a("s_nop 0")
            a(f"buffer_load_dwordx4 v{vo}, {sr(SRD_K,4)}, {soff} offen offset:{imm} {p.kvflags} lds")
        else:
            a(f"buffer_load_dwordx4 {vr(slot(i))}, v{vo}, {sr(SRD_K,4)}, {soff} offen offset:{imm} {p.kvflags}")
    def vload(i, soff):
        ii = i & 7
        vo = vVO1 if ii >= 4 else vVO0
        imm = (ii & 3) * 1024
        a(f"buffer_load_dwordx4 {vr(vSL + 4*ii)}, v{vo}, {sr(SRD_V,4)}, {soff} offen offset:{imm} {p.kvflags}")
    cur_grp = [0]
    def kload_u(i):
        g = i >> 3
        if g != cur_grp[0]:
            assert g == cur_grp[0] + 1
            a(f"s_add_u32 s{sCUR}, s{sCUR}, 32768")
            cur_grp[0] = g
        kload(i, f"s{sCUR}")

    def setup1():
        a(f"s_add_u32 s{SRD_V}, s{sV}, s{sT0+1}")
        a(f"s_addc_u32 s{SRD_V+1}, s{sV+1}, 0")
        a(f"s_mov_b32 s{SRD_V+2}, 0x100000")
        a(f"s_mov_b32 s{SRD_V+3}, 0x00020000")
        a(f"v_lshlrev_b32 v{vVO0}, 4, v0")
        a(f"v_add_u32 v{vVO0}, s{sT0}, v{vVO0}")
        a(f"v_add_u32 v{vVO1}, 0x1000, v{vVO0}")
        a(f"s_mul_i32 s{sLB}, s{sWV}, {NL*1024}")
        a(f"s_add_u32 s{sLB}, s{sLB}, {L_KB}")
        for k in range(1, 4):
            mk = 0x11111111 << k
            a(f"s_mov_b32 s{sSUB+2*(k-1)}, {mk:#x}"); a(f"s_mov_b32 s{sSUB+2*(k-1)+1}, {mk:#x}")
        for m in range(4):
            mk = 0x000f000f << (4 * m)
            a(f"s_mov_b32 s{sM0+2*m}, {mk:#x}"); a(f"s_mov_b32 s{sM0+2*m+1}, {mk:#x}")
    def setup2():
        a(f"s_mul_i32 s{sT0}, s{sWV}, {4*RS}")
        a(f"v_mul_u32_u24 v{vSR}, {RS}, v3")
        a(f"v_add_u32 v{vSR}, s{sT0}, v{vSR}")
        a(f"v_lshrrev_b32 v{t1}, 2, v2")
        a(f"v_lshl_add_u32 v{vSA}, v{t1}, 2, v{vSR}")
        a(f"v_mov_b32 v{vMR}, 0xff7fffff")
        a(f"v_mov_b32 v{vL}, 0")
        a(f"v_and_b32 v1, 3, v2")
        a(f"v_lshlrev_b32 v1, 5, v1")
        a(f"v_lshl_add_u32 v1, v3, 7, v1")
    def setup3():
        emit_selectors(a, vSEL, t0)
    qa, qb = vD, vX0
    bchunks = []
    def b_read(hw):
        def f():
            dst = qa if hw == 0 else qb
            for hf in range(2):
                a(f"ds_read_b128 {vr(dst + 4*hf)}, v1 offset:{L_QP + hw*512 + hf*16}")
        return f
    def b_add():
        a("s_waitcnt lgkmcnt(0)")
        for e in range(8):
            a(f"v_add_f32 v{qa+e}, v{qa+e}, v{qb+e}")
    def b_scale():
        a(f"s_mov_b32 s{sT0}, {f32bits(SCALE):#x}")
        for e in range(8):
            a(f"v_mul_f32 v{qa+e}, s{sT0}, v{qa+e}")
    def b_split(r):
        def f():
            q0, q1 = qa + 2*r, qa + 2*r + 1
            H, h0, h1, Lp = qb, qb+1, qb+2, qb+3
            a(f"v_cvt_pk_bf16_f32 v{H}, v{q0}, v{q1}")
            a(f"v_lshlrev_b32 v{h0}, 16, v{H}")
            a(f"v_and_b32 v{h1}, 0xffff0000, v{H}")
            a(f"v_sub_f32 v{h0}, v{q0}, v{h0}")
            a(f"v_sub_f32 v{h1}, v{q1}, v{h1}")
            a(f"v_cvt_pk_bf16_f32 v{Lp}, v{h0}, v{h1}")
            for m in range(4):
                a(f"v_cndmask_b32 v{vBQ + (m*2+0)*4 + r}, 0, v{H}, {sr(sM0+2*m)}")
                a(f"v_cndmask_b32 v{vBQ + (m*2+1)*4 + r}, 0, v{Lp}, {sr(sM0+2*m)}")
        return f
    def seq(*fs):
        def f():
            for g_ in fs: g_()
        return f
    bchunks = [seq(b_read(0), b_read(1)), seq(b_add, b_read(2)), seq(b_add, b_read(3)), seq(b_add, b_scale),
               b_split(0), b_split(1), b_split(2), b_split(3)]

    for i in range(NS):
        if i == NB:
            stamp(1); stamp(5, "S")
            a("s_barrier")
            stamp(2); stamp(6, "S")
        dcur = p.dA0 if i < p.nA0 else p.dA
        if i >= dcur:
            a(f"s_waitcnt vmcnt({dcur-1})")
        if i == p.dA: stamp(3, "S")
        if i == 16: stamp(4, "S")
        kload_u(i)
        if i == p.dA - 1: stamp(2, "S"); setup1()
        if i == p.dA: setup2()
        if i == p.dA + 1: setup3()
        if i >= NB and bchunks:
            bchunks.pop(0)()
    if NB >= NS:
        stamp(1); stamp(5, "S")
        a("s_barrier")
        stamp(2); stamp(6, "S")
    while bchunks:
        bchunks.pop(0)()
    a(f"v_lshlrev_b32 v{vLB}, 4, v0")
    a(f"v_add_u32 v{vLB}, s{sLB}, v{vLB}")
    stamp(3); stamp(7, "S")

    def kconsume(i):
        ii = i & 7
        m = ii & 3
        D = vD if ii < 4 else vD2
        for hl in range(2):
            b = vBQ + (m*2+hl)*4
            c = "0" if (m == 0 and hl == 0) else vr(D)
            a(f"v_mfma_f32_16x16x32_bf16 {vr(D)}, {vr(slot(i))}, {vr(b)}, {c}")
    def kpost():
        a("s_nop 7")
        for X_, D in ((vX0, vD), (vX1, vD2)):
            a(f"v_cndmask_b32 v{X_}, v{D}, v{D+1}, {sr(sSUB)}")
            a(f"v_cndmask_b32 v{X_}, v{X_}, v{D+2}, {sr(sSUB+2)}")
            a(f"v_cndmask_b32 v{X_}, v{X_}, v{D+3}, {sr(sSUB+4)}")
        a("s_nop 0")
        a(f"v_add_f32_dpp v{vX0}, v{vX0}, v{vX0} quad_perm:[1,0,3,2] row_mask:0xf bank_mask:0xf")
        a(f"v_add_f32_dpp v{vX1}, v{vX1}, v{vX1} quad_perm:[1,0,3,2] row_mask:0xf bank_mask:0xf")
        a("s_nop 1")
        a(f"v_add_f32_dpp v{vX0}, v{vX0}, v{vX0} quad_perm:[2,3,0,1] row_mask:0xf bank_mask:0xf")
        a(f"v_add_f32_dpp v{vX1}, v{vX1}, v{vX1} quad_perm:[2,3,0,1] row_mask:0xf bank_mask:0xf")
        a(f"v_max3_f32 v{vMN}, v{vMR}, v{vX0}, v{vX1}")
        a(f"ds_write_b32 v{vSA}, v{vX0} offset:{L_ST}")
        a(f"ds_write_b32 v{vSA}, v{vX1} offset:{L_ST+16}")
        a(f"v_sub_f32 v{vA}, v{vMR}, v{vMN}")
        a(f"v_sub_f32 v{vE0}, v{vX0}, v{vMN}")
        a(f"v_sub_f32 v{vE1}, v{vX1}, v{vMN}")
        a(f"v_exp_f32 v{vA}, v{vA}")
        a(f"v_exp_f32 v{vE0}, v{vE0}")
        a(f"v_exp_f32 v{vE1}, v{vE1}")
        a(f"v_mov_b32 v{vMR}, v{vMN}")
        a(f"v_add_u32 v{vSA}, 32, v{vSA}")
        a(f"v_fma_f32 v{vL}, v{vL}, v{vA}, v{vE0}")
        a(f"v_add_f32 v{vL}, v{vL}, v{vE1}")

    issued = NS
    def lds_fetch(grp):
        for ii in range(8):
            i = grp * 8 + ii
            a(f"ds_read_b128 {vr(slot(i))}, v{vLB} offset:{(i-NR)*1024}")
    for grp in range(G0K):
        nxt = grp + 1
        is_lds = NR <= grp * 8 < NS
        if is_lds:
            a("s_waitcnt lgkmcnt(0)")
        if NR <= nxt * 8 < NS and nxt * 8 + 7 < issued:
            a(f"s_waitcnt vmcnt({min(issued - 1 - (nxt*8+7), 63)})")
            lds_fetch(nxt)
        for ii in range(8):
            i = grp * 8 + ii
            if not is_lds:
                oa = issued - 1 - i
                if oa < p.dA + d + 12:
                    a(f"s_waitcnt vmcnt({min(oa, 63)})")
            if i >= NS and i + d >= issued:
                a(f"s_waitcnt vmcnt({min(d-1, issued - 1 - i)})")
                kload_u(issued); issued += 1
            kconsume(i)
        kpost()
        if grp * 8 + 7 < NS:
            a(f"s_waitcnt vmcnt({d-1})")
            kload_u(issued); issued += 1
    assert issued == 8 * G0K + d, (issued, 8 * G0K + d)
    a(f"s_lshl_b32 s{sT0}, s{sWV}, 2")
    a(f"v_mov_b32 v{vA}, s{sT0}")
    a(f"v_mov_b32 v{vE0}, 1")
    a(f"ds_write_b32 v{vA}, v{vE0} offset:{L_PB}")
    stamp(4)
    ngA = G0K
    a(f"s_mov_b32 s{sCUR}, {ngA*32768}")
    a(f"s_mov_b32 s{sNXT}, {(ngA+1)*32768}")
    a.label("L_kloop")
    for ii in range(8):
        a(f"s_waitcnt vmcnt({d-1})")
        n = ii + d
        kload(8*G0K + 8 + (n & 7), f"s{sCUR}" if n < 8 else f"s{sNXT}")
        kconsume(8*G0K + ii)
    kpost()
    a(f"s_mov_b32 s{sCUR}, s{sNXT}")
    a(f"s_add_u32 s{sNXT}, s{sNXT}, 32768")
    a(f"s_cmp_lt_u32 s{sCUR}, {31*32768}")
    a(f"s_cbranch_scc1 L_kloop")
    for ii in range(8):
        a(f"s_waitcnt vmcnt({d-1})")
        n = ii + d
        if n < 8:
            kload(8*G0K + n, f"s{sCUR}")
        else:
            vload(n & 7, "0")
        kconsume(8*G0K + ii)
    kpost()
    a("s_nop 1")
    a(f"v_max_f32_dpp v{vMN}, v{vMR}, v{vMR} row_half_mirror row_mask:0xf bank_mask:0xf")
    a("s_nop 1")
    a(f"v_max_f32_dpp v{vMN}, v{vMN}, v{vMN} row_mirror row_mask:0xf bank_mask:0xf")
    a("s_nop 1")
    for k in range(4):
        a(f"v_readlane_b32 s{sT0+k}, v{vMN}, {16*k}")
    a("s_nop 1")
    a(f"v_mov_b32 v{vMW}, s{sT0}")
    a(f"v_max_f32 v{vMW}, s{sT0+1}, v{vMW}")
    a(f"v_max_f32 v{vMW}, s{sT0+2}, v{vMW}")
    a(f"v_max_f32 v{vMW}, s{sT0+3}, v{vMW}")
    a(f"v_sub_f32 v{vA}, v{vMR}, v{vMW}")
    a(f"v_exp_f32 v{vA}, v{vA}")
    a("s_nop 0")
    a(f"v_mul_f32 v{vL}, v{vL}, v{vA}")
    a("s_nop 1")
    a(f"v_add_f32_dpp v{vL}, v{vL}, v{vL} row_half_mirror row_mask:0xf bank_mask:0xf")
    a("s_nop 1")
    a(f"v_add_f32_dpp v{vL}, v{vL}, v{vL} row_mirror row_mask:0xf bank_mask:0xf")
    a("s_nop 1")
    for k in range(4):
        a(f"v_readlane_b32 s{sT0+k}, v{vL}, {16*k}")
    a("s_nop 1")
    a(f"v_mov_b32 v{vL}, s{sT0}")
    a(f"v_add_f32 v{vL}, s{sT0+1}, v{vL}")
    a(f"v_add_f32 v{vL}, s{sT0+2}, v{vL}")
    a(f"v_add_f32 v{vL}, s{sT0+3}, v{vL}")
    a(f"s_lshl_b32 s{sT0}, s{sWV}, 3")
    a(f"v_mov_b32 v{vT}, s{sT0}")
    a(f"v_mov_b32 v{vT+2}, v{vMW}")
    a(f"v_mov_b32 v{vT+3}, v{vL}")
    a(f"ds_write_b64 v{vT}, v[{vT+2}:{vT+3}] offset:{L_ML}")
    a(f"s_lshl_b32 s{sT0}, s{sWV}, 2")
    a(f"v_mov_b32 v{vPA}, s{sT0}")
    a(f"v_mov_b32 v{vT+4}, 1")
    a("s_waitcnt lgkmcnt(0)")
    a(f"ds_write_b32 v{vPA}, v{vT+4} offset:{L_KF}")
    stamp(5)
    for r in range(4):
        a(f"v_mov_b32 v{vD+r}, 0")
        a(f"v_mov_b32 v{vD2+r}, 0")
    a(f"v_mov_b32 v{vPG}, 0")
    a(f"ds_read_b128 {vr(vS0)}, v{vSR} offset:{L_ST}")
    a(f"ds_read_b128 {vr(vS0+4)}, v{vSR} offset:{L_ST+16}")
    a(f"v_add_u32 v{vSR}, 32, v{vSR}")
    def vconsume(ii, S):
        t, hi, lo, Pk = vP, vP+1, vP+2, vP+3
        a(f"v_sub_f32 v{t}, v{S+ii}, v{vMW}")
        a(f"v_exp_f32 v{t}, v{t}")
        a("s_nop 0")
        a(f"v_and_b32 v{hi}, 0xffff0000, v{t}")
        a(f"v_sub_f32 v{lo}, v{t}, v{hi}")
        a(f"v_cvt_pk_bf16_f32 v{Pk}, v{hi}, v{lo}")
        for r in range(4):
            a(f"v_perm_b32 v{vBT+r}, v{Pk}, v{Pk}, v{vSEL+r}")
        a("s_nop 1")
        D = vD if (ii & 1) == 0 else vD2
        a(f"v_mfma_f32_16x16x32_bf16 {vr(D)}, {vr(vSL+4*ii)}, {vr(vBT)}, {vr(D)}")
    def vgroup(S, Sn, dc, dprev=None):
        a("s_waitcnt lgkmcnt(0)")
        a(f"ds_read_b128 {vr(Sn)}, v{vSR} offset:{L_ST}")
        a(f"ds_read_b128 {vr(Sn+4)}, v{vSR} offset:{L_ST+16}")
        a(f"v_add_u32 v{vSR}, 32, v{vSR}")
        for ii in range(8):
            if dprev is not None and dprev < dc and ii == 0:
                a(f"s_waitcnt vmcnt({dprev-1})")
                for n in range(dprev, dc + 1):
                    vload(n & 7, f"s{sCUR}" if n < 8 else f"s{sNXT}")
            elif dprev is not None and dprev > dc and ii + dc < dprev:
                a(f"s_waitcnt vmcnt({dprev-1-ii})")
            else:
                n = ii + dc
                a(f"s_waitcnt vmcnt({dc-1})")
                vload(n & 7, f"s{sCUR}" if n < 8 else f"s{sNXT}")
            vconsume(ii, S)
    def adv():
        a(f"s_mov_b32 s{sCUR}, s{sNXT}")
        a(f"s_add_u32 s{sNXT}, s{sNXT}, 32768")
    a(f"s_mov_b32 s{sCUR}, 0")
    a(f"s_mov_b32 s{sNXT}, 32768")
    dE, GE = p.dE, p.GE
    assert GE % 2 == 0 and GE >= 4
    G0 = 32 - GE
    vMD = vT + 1; vZ = vT + 2
    a(f"v_mov_b32 v{vZ}, 0")
    def vpair(d1, dprev, tag):
        a(f"v_add_u32 v{vPG}, 2, v{vPG}")
        a(f"ds_write_b32 v{vPA}, v{vPG} offset:{L_VP}")
        if p.ctl: a(f"ds_read_b32 v{vMD}, v{vZ} offset:{L_MD}")
        vgroup(vS0, vS1, d1, dprev); adv()
        vgroup(vS1, vS0, d1); adv()
        if p.ctl: a(f"v_readfirstlane_b32 s{sT0}, v{vMD}")
        a(f"s_cmp_ge_u32 s{sCUR}, {G0*32768}")
        a(f"s_cbranch_scc1 L_vend_{'L' if d1 == d else 'H'}")
    if p.ctl:
        assert dE > d
        a.label("L_vL")
        vpair(d, None, "LL")
        a(f"s_cmp_eq_u32 s{sT0}, 0")
        a(f"s_cbranch_scc1 L_vL")
        a.label("L_vLH")
        vpair(dE, d, "LH")
        a(f"s_cmp_eq_u32 s{sT0}, 0")
        a(f"s_cbranch_scc1 L_vHL")
        a.label("L_vH")
        vpair(dE, None, "HH")
        a(f"s_cmp_lg_u32 s{sT0}, 0")
        a(f"s_cbranch_scc1 L_vH")
        a.label("L_vHL")
        vpair(d, dE, "HL")
        a(f"s_cmp_eq_u32 s{sT0}, 0")
        a(f"s_cbranch_scc1 L_vL")
        a(f"s_branch L_vLH")
        a.label("L_vend_H")
        vgroup(vS0, vS1, dE); adv()
        vgroup(vS1, vS0, dE); adv()
        a("s_branch L_vend_J")
    else:
        a.label("L_vL")
        vpair(d, None, "LL")
        a(f"s_branch L_vL")
    a.label("L_vend_L")
    vgroup(vS0, vS1, dE, d); adv()
    vgroup(vS1, vS0, dE); adv()
    a.label("L_vend_J")
    if GE > 4:
        a.label("L_vloop2")
        for half in range(2):
            vgroup(vS0 if half == 0 else vS1, vS1 if half == 0 else vS0, dE)
            adv()
        a(f"s_cmp_lt_u32 s{sCUR}, {30*32768}")
        a(f"s_cbranch_scc1 L_vloop2")
    vgroup(vS0, vS1, dE)
    a(f"s_mov_b32 s{sCUR}, s{sNXT}")
    a("s_waitcnt lgkmcnt(0)")
    for ii in range(8):
        n = ii + dE
        issued_before = min(ii + dE, 8)
        a(f"s_waitcnt vmcnt({issued_before - 1 - ii})")
        if n < 8:
            vload(n, f"s{sCUR}")
        vconsume(ii, vS1)
    stamp(6)
    a(f"v_mov_b32 v{vT}, 0")
    a.label("L_fr_poll")
    a(f"ds_read_b32 v{vT+1}, v{vT} offset:{L_FR}")
    a(f"s_lshl_b32 s{sT0}, s{sWV}, 2")
    a(f"v_mov_b32 v{vT+2}, s{sT0}")
    a(f"ds_read_b32 v{vT+3}, v{vT+2} offset:{L_F}")
    a("s_waitcnt lgkmcnt(0)")
    a(f"v_cmp_eq_u32 vcc, 0, v{vT+1}")
    a(f"s_cbranch_vccnz L_fr_poll")
    a(f"v_and_b32 v{vT}, 7, v2")
    a(f"v_lshlrev_b32 v{vT}, 1, v{vT}")
    a(f"v_lshl_add_u32 v{vT}, v3, 6, v{vT}")
    a(f"v_lshrrev_b32 v{vT+1}, 3, v2")
    a(f"v_lshl_add_u32 v{vT}, v{vT+1}, 8, v{vT}")
    a(f"s_lshl_b32 s{sT0}, s{sWV}, 9")
    a(f"v_add_u32 v{vT}, s{sT0}, v{vT}")
    a(f"s_mov_b32 s{sT0+2}, 0xff00ff00"); a(f"s_mov_b32 s{sT0+3}, 0xff00ff00")
    for r in range(4):
        a(f"v_add_f32 v{vD+r}, v{vD+r}, v{vD2+r}")
    a("s_nop 1")
    for r in range(4):
        a(f"v_add_f32_dpp v{vD+r}, v{vD+r}, v{vD+r} row_ror:8 row_mask:0xf bank_mask:0xf")
    for r in range(4):
        a(f"v_mul_f32 v{vD+r}, v{vD+r}, v{vT+3}")
    for r in range(4):
        H, hf_, lo = vD2, vD2+1, vD2+2
        a(f"v_cvt_pk_bf16_f32 v{H}, v{vD+r}, v{vD+r}")
        a(f"v_and_b32 v{hf_}, 0xffff0000, v{H}")
        a(f"v_sub_f32 v{lo}, v{vD+r}, v{hf_}")
        a(f"v_cvt_pk_bf16_f32 v{lo}, v{lo}, v{lo}")
        a(f"v_cndmask_b32 v{lo}, v{H}, v{lo}, {sr(sT0+2)}")
        a(f"ds_write_b16 v{vT}, v{lo} offset:{L_OA + r*16}")
    a("s_waitcnt lgkmcnt(0)")
    a("s_barrier")
    stamp(7)
    dump_stamps(8, vT)
    a("s_endpgm")

    a.label("L_helper")
    hSEL = 4
    hB = 8
    hD = 12
    hP = 16
    hT = 48
    hVO = 96
    hDA = 98
    hG = 100
    hW = 128
    a(f"s_sub_u32 s{sHW}, s{sWV}, 4")
    a(f"v_lshlrev_b32 v{hT}, 4, v0")
    a(f"s_lshl_b32 s{sT0}, s{sB}, 10")
    a(f"s_mov_b32 s{SRD_W+2}, 0x400000"); a(f"s_mov_b32 s{SRD_W+3}, 0x00020000")
    a(f"v_lshlrev_b32 v{hVO}, 18, v3")
    a(f"v_lshl_add_u32 v{hVO}, v2, 4, v{hVO}")
    if p.wmap == 0:
        a(f"s_lshr_b32 s{sK8}, s2, 5")
    elif p.wmap == 5:
        a(f"s_lshl_b32 s{sK8}, s{sC}, 1")
    elif p.wmap == 3:
        a(f"s_lshl_b32 s{sK8}, s{sB}, 2")
        a(f"s_add_u32 s{sK8}, s{sK8}, s{sC}")
    else:
        a(f"s_lshl_b32 s{sK8}, s{sB}, 2")
        a(f"s_and_b32 s{sT0+1}, s{sC}, 1")
        a(f"s_lshl_b32 s{sT0+1}, s{sT0+1}, 1")
        a(f"s_add_u32 s{sK8}, s{sK8}, s{sT0+1}")
        a(f"s_lshr_b32 s{sT0+1}, s{sC}, 1")
        a(f"s_add_u32 s{sK8}, s{sK8}, s{sT0+1}")
    a("s_waitcnt lgkmcnt(0)")
    stamp(1, "S")
    a(f"s_add_u32 s{sT0+2}, s{sX}, s{sT0}")
    a(f"s_addc_u32 s{sT0+3}, s{sX+1}, 0")
    a(f"global_load_dwordx4 {vr(hT+4)}, v{hT}, {sr(sT0+2)}")
    a(f"s_mov_b32 s{SRD_W}, s{sWQ}"); a(f"s_mov_b32 s{SRD_W+1}, s{sWQ+1}")
    a(f"s_lshl_b32 s{sT0}, s{sHW}, 20")
    a(f"s_lshl_b32 s{sT0+1}, s{sH}, 8")
    a(f"s_add_u32 s{sT0}, s{sT0}, s{sT0+1}")

    def gemv_step(W, Pk, first, D=hD):
        for r in range(4):
            a(f"v_perm_b32 v{hB+r}, v{Pk}, v{Pk}, v{hSEL+r}")
        a("s_nop 1")
        a(f"v_mfma_f32_16x16x32_bf16 {vr(D)}, {vr(W)}, {vr(hB)}, {'0' if first else vr(D)}")

    X, S, Q = hT + 8, hT + 16, hT + 24
    sR = sT0 + 4
    chunks = []
    def chunk(f): chunks.append(f)
    def c_sel():
        emit_selectors(a, hSEL, hT+8)
    def c_clear():
        a(f"s_cmp_lg_u32 s{sHW}, 0")
        a(f"s_cbranch_scc1 L_h_noclr")
        for r in range(4): a(f"v_mov_b32 v{hT+8+r}, 0")
        a(f"ds_write_b128 v{hT}, {vr(hT+8)} offset:{L_Z}")
        a(f"ds_write_b128 v{hT}, {vr(hT+8)} offset:{L_Z+1024}")
        a.label("L_h_noclr")
        a(f"v_and_b32 v{hDA}, 7, v2")
        a(f"v_lshlrev_b32 v{hDA}, 2, v{hDA}")
        a(f"v_lshl_add_u32 v{hDA}, v3, 7, v{hDA}")
    def c_ln1():
        for r in range(4):
            a(f"v_lshlrev_b32 v{X+2*r}, 16, v{hT+4+r}")
            a(f"v_and_b32 v{X+2*r+1}, 0xffff0000, v{hT+4+r}")
        a(f"v_add_f32 v{S}, v{X}, v{X+1}")
        for e in range(2, 8):
            a(f"v_add_f32 v{S}, v{S}, v{X+e}")
    def c_ln2():
        wave_allreduce_add(a, S, sR)
    def c_ln3():
        a(f"v_mul_f32 v{S}, {f32bits(1.0/512):#x}, v{S}")
        for e in range(8):
            a(f"v_sub_f32 v{X+e}, v{X+e}, v{S}")
        a(f"v_mul_f32 v{S+1}, v{X}, v{X}")
        for e in range(1, 8):
            a(f"v_fmac_f32 v{S+1}, v{X+e}, v{X+e}")
    def c_ln4():
        wave_allreduce_add(a, S + 1, sR)
    def c_ln5():
        a(f"v_mov_b32 v{S+2}, {f32bits(1e-5):#x}")
        a(f"v_fmac_f32 v{S+2}, {f32bits(1.0/512):#x}, v{S+1}")
        a(f"v_sqrt_f32 v{S+2}, v{S+2}")
        a("s_nop 0")
        a(f"v_rcp_f32 v{S+2}, v{S+2}")
        a("s_nop 0")
        for e in range(8):
            a(f"v_mul_f32 v{X+e}, v{X+e}, v{S+2}")
    def c_ln6(lo, hi):
        def f():
            for e in range(lo, hi):
                a(f"v_cvt_pk_bf16_f32 v{S+3}, v{X+e}, v{X+e}")
                a(f"v_and_b32 v{S+3}, 0xffff0000, v{S+3}")
                a(f"v_sub_f32 v{S+4}, v{X+e}, v{S+3}")
                a(f"v_cvt_pk_bf16_f32 v{Q+e}, v{S+3}, v{S+4}")
        return f
    def c_ln7():
        a(f"s_lshl_b32 s{sR}, s{sHW}, 11")
        a(f"v_lshlrev_b32 v{hT+1}, 5, v0")
        a(f"v_add_u32 v{hT+1}, s{sR}, v{hT+1}")
        a(f"ds_write_b128 v{hT+1}, {vr(Q)} offset:{L_XP}")
        a(f"ds_write_b128 v{hT+1}, {vr(Q+4)} offset:{L_XP+16}")
        a(f"s_mul_i32 s{sR}, s{sHW}, {2048+512}")
        a(f"v_lshlrev_b32 v{hT+1}, 7, v3")
        a(f"v_add_u32 v{hT+1}, s{sR}, v{hT+1}")
    def c_ln8():
        a("s_waitcnt lgkmcnt(0)")
        for i in range(8):
            a(f"s_add_u32 s{sR}, s{sK8}, {i}")
            a(f"s_and_b32 s{sR}, s{sR}, 7")
            a(f"s_lshl_b32 s{sR}, s{sR}, 4")
            a(f"v_add_u32 v{hT+2}, s{sR}, v{hT+1}")
            a(f"ds_read_b128 {vr(hP+4*i)}, v{hT+2} offset:{L_XP}")
    def c_ln9():
        a("s_waitcnt lgkmcnt(0)")
        stamp(4, "S")
    pre = [c_sel, c_clear]
    post = [c_ln1, c_ln2, c_ln3, c_ln4, c_ln5, c_ln6(0, 4), c_ln6(4, 8), c_ln7, c_ln8, c_ln9]
    dQ = p.dQ
    next_gemv = 0
    for n in range(32):
        i, r = n >> 2, n & 3
        if n >= dQ:
            a(f"s_waitcnt vmcnt({dQ-1})")
            if n == dQ: stamp(3, "S")
        if r == 0:
            a(f"s_add_u32 s{sT0+1}, s{sK8}, {i}")
            a(f"s_and_b32 s{sT0+1}, s{sT0+1}, 7")
            a(f"s_lshl_b32 s{sT0+1}, s{sT0+1}, 15")
            a(f"s_add_u32 s{sT0+1}, s{sT0+1}, s{sT0}")
        else:
            a(f"s_add_u32 s{sT0+1}, s{sT0+1}, 8192")
        a(f"buffer_load_dwordx4 {vr(hW+4*n)}, v{hVO}, {sr(SRD_W,4)}, s{sT0+1} offen {p.wflags}")
        if pre:
            pre.pop(0)()
        elif n >= dQ and post:
            post.pop(0)()
        elif n >= dQ:
            landed = n - dQ
            k = 0
            while next_gemv <= landed and k < 3:
                gemv_step(hW+4*next_gemv, hP+next_gemv, next_gemv == 0); next_gemv += 1; k += 1
    stamp(2, "S")
    assert not post
    while next_gemv < 32:
        a(f"s_waitcnt vmcnt({31-next_gemv})")
        gemv_step(hW+4*next_gemv, hP+next_gemv, next_gemv == 0); next_gemv += 1
    stamp(6, "S")
    a(f"s_lshl_b32 s{sT0}, s{sHW}, 9")
    a(f"v_add_u32 v{hT}, s{sT0}, v{hDA}")
    a("s_nop 7")
    for r in range(4):
        a(f"v_add_f32_dpp v{hD+r}, v{hD+r}, v{hD+r} row_ror:8 row_mask:0xf bank_mask:0xf")
    for r in range(4):
        a(f"ds_write_b32 v{hT}, v{hD+r} offset:{L_QP + r*32}")
    a("s_waitcnt lgkmcnt(0)")
    stamp(2); stamp(7, "S")
    a("s_barrier")

    def paced_gemv(stride, first, D, dF, cnt=32, Wb=None):
        Wb = hW if Wb is None else Wb
        def ld(n):
            a(f"buffer_load_dwordx4 {vr(Wb+4*n)}, v{hVO}, {sr(SRD_W,4)}, s{sT0} offen {p.wflags}")
            a(f"s_add_u32 s{sT0}, s{sT0}, {stride}")
        for n in range(min(dF, cnt)): ld(n)
        a("s_waitcnt lgkmcnt(0)")
        for n in range(cnt):
            a(f"s_waitcnt vmcnt({min(dF-1, cnt-1-n)})")
            if n + dF < cnt: ld(n + dF)
            gemv_step(Wb+4*n, hP+n, first and n == 0, D)

    a(f"s_cmp_lg_u32 s{sHW}, 1")
    a(f"s_cbranch_scc1 L_h_noinit")
    a(f"s_cmp_lg_u32 s2, 0")
    a(f"s_cbranch_scc1 L_h_noinit")
    for r in range(4):
        a(f"v_mov_b32 v{hT+4+r}, 0")
    a(f"v_lshlrev_b32 v{hT}, 4, v0")
    assert ZERO_BYTES % 2048 == 0
    a(f"s_mov_b32 s{sT0}, {ZERO_BYTES // 2048}")
    a.label("L_zero")
    a(f"global_store_dwordx4 v{hT}, {vr(hT+4)}, {sr(sWS)} sc0 sc1")
    a(f"global_store_dwordx4 v{hT}, {vr(hT+4)}, {sr(sWS)} offset:1024 sc0 sc1")
    a(f"v_add_u32 v{hT}, 2048, v{hT}")
    a(f"s_sub_u32 s{sT0}, s{sT0}, 1")
    a(f"s_cmp_lg_u32 s{sT0}, 0")
    a(f"s_cbranch_scc1 L_zero")
    a("s_waitcnt vmcnt(0)")
    a(f"v_lshlrev_b32 v{hT}, 2, v0")
    a(f"v_add_u32 v{hT}, 32, v{hT}")
    a(f"v_mov_b32 v{hT+1}, 8")
    a(f"v_mov_b32 v{hT+2}, 1")
    a(f"v_cmp_lt_u32 vcc, 7, v0")
    a("s_nop 1")
    a(f"v_cndmask_b32 v{hT+1}, v{hT+1}, v{hT+2}, vcc")
    a(f"s_mov_b64 exec, 0x1ff")
    a(f"global_atomic_add v{hT}, v{hT+1}, {sr(sDBG)}")
    a(f"s_mov_b64 exec, -1")
    a.label("L_h_noinit")

    if p.noffn: a("s_branch L_h_noffn")
    a(f"s_cmp_ge_u32 s{sH}, 14")
    a(f"s_cbranch_scc1 L_h_noffn")
    a(f"v_mul_u32_u24 v{hVO}, {8*3584}, v3")
    a(f"v_lshl_add_u32 v{hVO}, v2, 4, v{hVO}")
    a(f"s_lshl_b32 s{sT0+8}, s{sC}, 2")
    a(f"s_add_u32 s{sT0+8}, s{sT0+8}, s{sHW}")
    a(f"s_lshl_b32 s{sT0}, s{sHW}, 11")
    a(f"s_lshl_b32 s{sT0+1}, s{sT0+8}, 7")
    a(f"s_add_u32 s{sT0}, s{sT0}, s{sT0+1}")
    a(f"v_lshlrev_b32 v{hT+1}, 5, v3")
    a(f"v_add_u32 v{hT+1}, s{sT0}, v{hT+1}")
    for i in range(2):
        a(f"ds_read_b128 {vr(hP+4*i)}, v{hT+1} offset:{L_XP+16*i}")
    for mat, (sP, Lacc) in enumerate([(sW1, L_GA), (sW3, L_UA)]):
        a(f"s_mov_b32 s{SRD_W}, s{sP}"); a(f"s_mov_b32 s{SRD_W+1}, s{sP+1}")
        a(f"s_mov_b32 s{SRD_W+2}, {512*3584}")
        a(f"s_mul_i32 s{sT0}, s{sT0+8}, {32*3584}")
        a(f"s_lshl_b32 s{sT0+1}, s{sH}, 8")
        a(f"s_add_u32 s{sT0}, s{sT0}, s{sT0+1}")
        paced_gemv(3584, True, hD, p.dF, 8)
        a("s_nop 7")
        for r in range(4):
            a(f"v_add_f32_dpp v{hD+r}, v{hD+r}, v{hD+r} row_ror:8 row_mask:0xf bank_mask:0xf")
        a(f"s_mov_b32 s{sT0+6}, 0x00ff00ff"); a(f"s_mov_b32 s{sT0+7}, 0x00ff00ff")
        a(f"s_mov_b64 exec, {sr(sT0+6)}")
        for r in range(4):
            a(f"ds_add_f32 v{hDA}, v{hD+r} offset:{Lacc + r*32}")
        a(f"s_mov_b64 exec, -1")
    a("s_waitcnt lgkmcnt(0)")
    a(f"v_mov_b32 v{hT}, 0")
    a(f"v_mov_b32 v{hT+1}, 1")
    a(f"s_mov_b64 exec, 1")
    a(f"ds_add_u32 v{hT}, v{hT+1} offset:{L_FC}")
    a(f"s_mov_b64 exec, -1")
    a.label("L_ffn_sync")
    a("s_sleep 4")
    a(f"ds_read_b32 v{hT+1}, v{hT} offset:{L_FC}")
    a("s_waitcnt lgkmcnt(0)")
    a(f"v_cmp_ne_u32 vcc, 4, v{hT+1}")
    a(f"s_cbranch_vccnz L_ffn_sync")
    a(f"s_lshl_b32 s{sT0}, s{sHW}, 8")
    a(f"v_lshlrev_b32 v{hT+2}, 2, v0")
    a(f"v_add_u32 v{hT+2}, s{sT0}, v{hT+2}")
    a(f"ds_read_b32 v{hT+3}, v{hT+2} offset:{L_GA}")
    a(f"s_mul_i32 s{sT0+9}, s{sB}, 14")
    a(f"s_add_u32 s{sT0+9}, s{sT0+9}, s{sH}")
    a(f"s_lshl_b32 s{sT0+1}, s{sT0+9}, 12")
    a(f"s_add_u32 s{sT0+1}, s{sT0+1}, {W_FF}")
    a(f"s_lshl_b32 s{sT0+2}, s{sC}, 10")
    a(f"s_add_u32 s{sT0+2}, s{sT0+2}, s{sT0+1}")
    a(f"v_add_u32 v{hT+2}, s{sT0+2}, v{hT+2}")
    a("s_waitcnt lgkmcnt(0)")
    a(f"global_store_dword v{hT+2}, v{hT+3}, {sr(sWS)} sc0 sc1")
    a(f"v_mov_b32 v{hT+4}, 0")
    a(f"v_mov_b32 v{hT+1}, 1")
    a("s_waitcnt vmcnt(0)")
    a(f"s_mov_b64 exec, 1")
    a(f"ds_add_u32 v{hT+4}, v{hT+1} offset:{L_FS}")
    a(f"s_mov_b64 exec, -1")
    a(f"s_cmp_lg_u32 s{sHW}, 0")
    a(f"s_cbranch_scc1 L_ffn_wait")
    a.label("L_ffn_st")
    a("s_sleep 4")
    a(f"ds_read_b32 v{hT+1}, v{hT+4} offset:{L_FS}")
    a("s_waitcnt lgkmcnt(0)")
    a(f"v_cmp_ne_u32 vcc, 4, v{hT+1}")
    a(f"s_cbranch_vccnz L_ffn_st")
    a(f"s_branch L_ffn_z1")
    a.label("L_ffn_z")
    a("s_sleep 64")
    a.label("L_ffn_z1")
    a(f"global_load_dword v{hT+1}, v{hT+4}, {sr(sDBG)} offset:64 sc0 sc1")
    a("s_waitcnt vmcnt(0)")
    a(f"v_cmp_eq_u32 vcc, 0, v{hT+1}")
    a(f"s_cbranch_vccnz L_ffn_z")
    a(f"s_lshl_b32 s{sT0+2}, s{sT0+9}, 6")
    a(f"s_add_u32 s{sT0+2}, s{sT0+2}, {W_FFC}")
    a(f"v_mov_b32 v{hT}, s{sT0+2}")
    a(f"v_mov_b32 v{hT+1}, 1")
    a(f"s_mov_b64 exec, 1")
    a(f"global_atomic_add v{hT}, v{hT+1}, {sr(sWS)}")
    a(f"s_mov_b64 exec, -1")
    a.label("L_ffn_poll")
    a(f"s_sleep {p.fsleep}")
    a(f"global_load_dword v{hT+1}, v{hT}, {sr(sWS)} sc0 sc1")
    a("s_waitcnt vmcnt(0)")
    a(f"v_cmp_ne_u32 vcc, 4, v{hT+1}")
    a(f"s_cbranch_vccnz L_ffn_poll")
    a(f"v_mov_b32 v{hT+1}, 1")
    a(f"ds_write_b32 v{hT+4}, v{hT+1} offset:{L_FG}")
    a.label("L_ffn_wait")
    a("s_sleep 8")
    a(f"ds_read_b32 v{hT+1}, v{hT+4} offset:{L_FG}")
    a("s_waitcnt lgkmcnt(0)")
    a(f"v_cmp_eq_u32 vcc, 0, v{hT+1}")
    a(f"s_cbranch_vccnz L_ffn_wait")
    a(f"s_lshl_b32 s{sT0}, s{sHW}, 7")
    a(f"s_add_u32 s{sT0}, s{sT0}, s{sT0+1}")
    a(f"v_lshlrev_b32 v{hT+2}, 5, v3")
    a(f"v_add_u32 v{hT+2}, s{sT0}, v{hT+2}")
    U = hT + 8
    for cc in range(4):
        G_ = hP if cc == 0 else hP + 8
        U_ = U if cc == 0 else U + 8
        for i in range(2):
            a(f"global_load_dwordx4 {vr(G_+4*i)}, v{hT+2}, {sr(sWS)} offset:{cc*1024+16*i} sc0 sc1")
            a(f"global_load_dwordx4 {vr(U_+4*i)}, v{hT+2}, {sr(sWS)} offset:{cc*1024+512+16*i} sc0 sc1")
        if cc > 0:
            a("s_waitcnt vmcnt(0)")
            for e in range(8):
                a(f"v_add_f32 v{hP+e}, v{hP+e}, v{hP+8+e}")
                a(f"v_add_f32 v{U+e}, v{U+e}, v{U+8+e}")
    a(f"s_mov_b32 s{sT0}, {f32bits(-math.log2(math.e)):#x}")
    a("s_waitcnt vmcnt(0)")
    for n in range(8):
        g_, u_ = hP + n, U + n
        a(f"v_mul_f32 v{hT}, s{sT0}, v{g_}")
        a(f"v_exp_f32 v{hT}, v{hT}")
        a("s_nop 0")
        a(f"v_add_f32 v{hT}, 1.0, v{hT}")
        a(f"v_rcp_f32 v{hT}, v{hT}")
        a("s_nop 0")
        a(f"v_mul_f32 v{hT}, v{hT}, v{g_}")
        a(f"v_mul_f32 v{hT}, v{hT}, v{u_}")
        a(f"v_cvt_pk_bf16_f32 v{hT+1}, v{hT}, v{hT}")
        a(f"v_and_b32 v{hT+1}, 0xffff0000, v{hT+1}")
        a(f"v_sub_f32 v{hT+2}, v{hT}, v{hT+1}")
        a(f"v_cvt_pk_bf16_f32 v{g_}, v{hT+1}, v{hT+2}")
    a(f"s_mov_b32 s{SRD_W}, s{sW2}"); a(f"s_mov_b32 s{SRD_W+1}, s{sW2+1}")
    a(f"s_mov_b32 s{SRD_W+2}, {1792*1024}")
    a(f"v_lshlrev_b32 v{hVO}, 13, v3")
    a(f"v_lshl_add_u32 v{hVO}, v2, 4, v{hVO}")
    a(f"s_lshl_b32 s{sT0}, s{sH}, 17")
    a(f"s_lshl_b32 s{sT0+2}, s{sHW}, 15")
    a(f"s_add_u32 s{sT0}, s{sT0}, s{sT0+2}")
    a(f"s_lshl_b32 s{sT0+2}, s{sC}, 8")
    a(f"s_add_u32 s{sT0}, s{sT0}, s{sT0+2}")
    paced_gemv(1024, True, hD, p.dF, 8)
    a("s_nop 7")
    for r in range(4):
        a(f"v_add_f32_dpp v{hD+r}, v{hD+r}, v{hD+r} row_ror:8 row_mask:0xf bank_mask:0xf")
    emit_y_addr(a, hT+4, hDA, sT0+4, sB, sC)
    emit_atomic_y(a, hD, hT+4, sWS, sT0+6)
    if p.f64:
        a(f"s_lshl_b32 s{sT0+4}, s{sB}, 12")
        a(f"s_lshl_b32 s{sT0+5}, s{sC}, 10")
        a(f"s_add_u32 s{sT0+4}, s{sT0+4}, s{sT0+5}")
        a(f"s_add_u32 s{sT0+4}, s{sT0+4}, {W_A64 + 4*8192}")
        a(f"v_lshlrev_b32 v{hT+5}, 1, v{hDA}")
        a(f"v_add_u32 v{hT+5}, s{sT0+4}, v{hT+5}")
        emit_f64_vals(a, [hD+r for r in range(4)], hT+8, sT0+8, hT+6)
        a(f"s_mov_b64 exec, {sr(sT0+6)}")
        for r in range(4):
            a(f"global_atomic_add_f64 v{hT+5}, v[{hT+8+2*r}:{hT+8+2*r+1}], {sr(sWS)} offset:{r*64}")
        a(f"s_mov_b64 exec, -1")
    a.label("L_h_noffn")
    stamp(3)

    a(f"s_lshl_b32 s{sT0}, s{sHW}, 2")
    a(f"v_mov_b32 v{hT}, s{sT0}")
    a.label("L_pb_poll")
    a("s_sleep 16")
    a(f"ds_read_b32 v{hT+1}, v{hT} offset:{L_PB}")
    a("s_waitcnt lgkmcnt(0)")
    a(f"v_cmp_eq_u32 vcc, 0, v{hT+1}")
    a(f"s_cbranch_vccnz L_pb_poll")
    a(f"s_mov_b32 s{SRD_W}, s{sWO}"); a(f"s_mov_b32 s{SRD_W+1}, s{sWO+1}")
    a(f"s_mov_b32 s{SRD_W+2}, 0x400000")
    a(f"v_lshlrev_b32 v{hVO}, 10, v3")
    a(f"v_lshl_add_u32 v{hVO}, v2, 4, v{hVO}")
    a(f"s_lshl_b32 s{sT0}, s{sH}, 17")
    a(f"s_lshl_b32 s{sT0+2}, s{sHW}, 8")
    a(f"s_add_u32 s{sT0}, s{sT0}, s{sT0+2}")
    a(f"s_lshl_b32 s{sT0+3}, s{sHW}, 15")
    a(f"s_add_u32 s{sT0+3}, s{sT0+3}, {L_KB}")
    for n in range(0 if p.nowo else 32):
        if n >= p.dW:
            a(f"s_waitcnt vmcnt({p.dW-1})")
        a(f"s_add_u32 m0, s{sT0+3}, {n*1024}")
        a("s_nop 0")
        a(f"buffer_load_dwordx4 v{hVO}, {sr(SRD_W,4)}, s{sT0} offen {p.wflags} lds")
        a(f"s_add_u32 s{sT0}, s{sT0}, 4096")
    a(f"v_lshrrev_b32 v{hT}, 2, v2")
    a(f"v_lshlrev_b32 v{hT}, 8, v{hT}")
    a(f"v_and_b32 v{hT+1}, 3, v2")
    a(f"v_lshl_add_u32 v{hT}, v{hT+1}, 3, v{hT}")
    a(f"v_lshl_add_u32 v{hT}, v3, 11, v{hT}")
    a(f"v_add_u32 v{hT}, s{sT0+3}, v{hT}")
    a("s_waitcnt vmcnt(0)")
    for ct in range(8):
        for ks in range(4):
            for hf in range(2):
                a(f"ds_read_b64_tr_b16 v[{hW + (ct*4+ks)*4 + 2*hf}:{hW + (ct*4+ks)*4 + 2*hf + 1}], v{hT} offset:{(32*ks + 4*hf)*256 + ct*32}")
        a("s_waitcnt lgkmcnt(0)")
    stamp(4)

    if p.ctl:
        a(f"s_cmp_lg_u32 s{sHW}, 2")
        a(f"s_cbranch_scc1 L_h_noctl")
        emit_wait_flag(a, "ctl", sDBG, hT)
        a(f"s_lshl_b32 s{sT0}, s2, 2")
        a(f"s_add_u32 s{sT0}, s{sT0}, {W_PR}")
        a(f"v_mov_b32 v{hT+2}, s{sT0}")
        a(f"s_and_b32 s{sT0+1}, s{sT0}, 0xffffffe0")
        a(f"v_and_b32 v{hT+3}, 7, v0")
        a(f"v_lshlrev_b32 v{hT+3}, 2, v{hT+3}")
        a(f"v_add_u32 v{hT+3}, s{sT0+1}, v{hT+3}")
        a(f"v_mov_b32 v{hT}, 0")
        a.label("L_ctl_loop")
        a(f"s_sleep {p.csleep}")
        a(f"ds_read_b32 v{hT+4}, v{hT} offset:{L_VP}")
        a("s_waitcnt lgkmcnt(0)")
        a(f"v_add_u32 v{hT+5}, 1, v{hT+4}")
        a(f"s_mov_b64 exec, 1")
        a(f"global_store_dword v{hT+2}, v{hT+5}, {sr(sWS)} sc0 sc1")
        a(f"s_mov_b64 exec, -1")
        a(f"global_load_dword v{hT+6}, v{hT+3}, {sr(sWS)} sc0 sc1")
        a("s_waitcnt vmcnt(0)")
        a(f"v_cmp_ne_u32 vcc, 0, v{hT+6}")
        a(f"v_mov_b32 v{hT+7}, 0")
        a(f"v_add_u32 v{hT+8}, {p.cdelta}, v{hT+5}")
        a(f"v_cndmask_b32 v{hT+7}, v{hT+7}, v{hT+8}, vcc")
        a(f"v_sub_u32 v{hT+6}, v{hT+6}, v{hT+7}")
        for ctrl in ("quad_perm:[1,0,3,2]", "quad_perm:[2,3,0,1]", "row_half_mirror"):
            a("s_nop 1")
            a(f"v_add_u32_dpp v{hT+6}, v{hT+6}, v{hT+6} {ctrl} row_mask:0xf bank_mask:0xf")
        a(f"v_cmp_lt_i32 vcc, 0, v{hT+6}")
        a(f"v_mov_b32 v{hT+7}, 0")
        a("s_nop 0")
        a(f"v_cndmask_b32 v{hT+7}, v{hT+7}, 1, vcc")
        a(f"ds_write_b32 v{hT}, v{hT+7} offset:{L_MD}")
        a(f"v_cmp_gt_u32 vcc, {32 - p.GE}, v{hT+4}")
        a(f"s_cbranch_vccnz L_ctl_loop")
        a.label("L_h_noctl")

    if p.noml: a("s_branch L_h_noml")
    a(f"s_cmp_lg_u32 s{sHW}, 0")
    a(f"s_cbranch_scc1 L_h_noml")
    a(f"v_mov_b32 v{hT}, 0")
    a.label("L_ml_poll")
    a("s_sleep 16")
    a(f"ds_read_b128 {vr(hT+4)}, v{hT} offset:{L_KF}")
    a("s_waitcnt lgkmcnt(0)")
    a(f"v_and_b32 v{hT+4}, v{hT+4}, v{hT+5}")
    a(f"v_and_b32 v{hT+6}, v{hT+6}, v{hT+7}")
    a(f"v_and_b32 v{hT+4}, v{hT+4}, v{hT+6}")
    a(f"v_cmp_eq_u32 vcc, 1, v{hT+4}")
    a(f"s_cbranch_vccz L_ml_poll")
    a(f"ds_read_b128 {vr(hT+4)}, v{hT} offset:{L_ML}")
    a(f"ds_read_b128 {vr(hT+8)}, v{hT} offset:{L_ML+16}")
    a("s_waitcnt lgkmcnt(0)")
    m = [hT+4, hT+6, hT+8, hT+10]; l = [hT+5, hT+7, hT+9, hT+11]
    MC, LC = hT+12, hT+13
    a(f"v_max_f32 v{MC}, v{m[0]}, v{m[1]}")
    a(f"v_max3_f32 v{MC}, v{MC}, v{m[2]}, v{m[3]}")
    for k in range(4):
        a(f"v_sub_f32 v{hT+16+k}, v{m[k]}, v{MC}")
    for k in range(4):
        a(f"v_exp_f32 v{hT+16+k}, v{hT+16+k}")
    a("s_nop 0")
    a(f"v_mul_f32 v{LC}, v{l[0]}, v{hT+16}")
    for k in range(1, 4):
        a(f"v_fmac_f32 v{LC}, v{l[k]}, v{hT+16+k}")
    a(f"s_lshl_b32 s{sT0}, s{sBH}, 5")
    a(f"s_lshl_b32 s{sT0+1}, s{sC}, 3")
    a(f"s_add_u32 s{sT0+1}, s{sT0+1}, s{sT0}")
    a(f"s_add_u32 s{sT0+1}, s{sT0+1}, {W_ML}")
    a(f"v_mov_b32 v{hT+20}, s{sT0+1}")
    a(f"s_lshr_b32 s{sT0+2}, s{sBH}, 3")
    a(f"s_lshl_b32 s{sT0+2}, s{sT0+2}, 2")
    a(f"s_add_u32 s{sT0+2}, s{sT0+2}, 32")
    a(f"s_and_b32 s{sT0+3}, s{sBH}, 7")
    a(f"s_lshl_b32 s{sT0+3}, s{sT0+3}, 2")
    a(f"s_lshl_b32 s{sT0+4}, 1, s{sT0+3}")
    a(f"v_mov_b32 v{hT+21}, s{sT0+2}")
    a(f"v_mov_b32 v{hT+22}, s{sT0+4}")
    a(f"s_mov_b64 exec, 1")
    a(f"global_store_dwordx2 v{hT+20}, v[{MC}:{LC}], {sr(sWS)} sc0 sc1")
    a("s_waitcnt vmcnt(0)")
    a(f"global_atomic_add v{hT+21}, v{hT+22}, {sr(sDBG)}")
    a(f"s_mov_b64 exec, -1")
    a.label("L_vp_poll")
    a("s_sleep 32")
    a(f"ds_read_b32 v{hT+23}, v{hT} offset:{L_VP}")
    a("s_waitcnt lgkmcnt(0)")
    a(f"v_cmp_gt_u32 vcc, {p.vsig}, v{hT+23}")
    a(f"s_cbranch_vccnz L_vp_poll")
    a.label("L_grp_poll")
    a(f"global_load_dword v{hT+23}, v{hT+21}, {sr(sDBG)} sc0 sc1")
    a("s_waitcnt vmcnt(0)")
    a(f"v_lshrrev_b32 v{hT+25}, s{sT0+3}, v{hT+23}")
    a(f"v_and_b32 v{hT+25}, 7, v{hT+25}")
    a(f"v_and_b32 v{hT+23}, 8, v{hT+23}")
    a(f"v_or_b32 v{hT+23}, v{hT+23}, v{hT+25}")
    a(f"v_cmp_eq_u32 vcc, 12, v{hT+23}")
    a(f"s_cbranch_vccnz L_grp_done")
    a("s_sleep 64")
    a("s_branch L_grp_poll")
    a.label("L_grp_done")
    a(f"v_and_b32 v{hT+24}, 3, v0")
    a(f"v_lshlrev_b32 v{hT+24}, 3, v{hT+24}")
    a(f"s_add_u32 s{sT0}, s{sT0}, {W_ML}")
    a(f"v_add_u32 v{hT+24}, s{sT0}, v{hT+24}")
    a(f"global_load_dwordx2 v[{hT+26}:{hT+27}], v{hT+24}, {sr(sWS)} sc0 sc1")
    a("s_waitcnt vmcnt(0)")
    GM, GL = hT+28, hT+29
    a(f"v_max_f32_dpp v{GM}, v{hT+26}, v{hT+26} quad_perm:[1,0,3,2] row_mask:0xf bank_mask:0xf")
    a("s_nop 1")
    a(f"v_max_f32_dpp v{GM}, v{GM}, v{GM} quad_perm:[2,3,0,1] row_mask:0xf bank_mask:0xf")
    a("s_nop 1")
    a(f"v_sub_f32 v{GL}, v{hT+26}, v{GM}")
    a(f"v_exp_f32 v{GL}, v{GL}")
    a("s_nop 0")
    a(f"v_mul_f32 v{GL}, v{GL}, v{hT+27}")
    a("s_nop 1")
    a(f"v_add_f32_dpp v{GL}, v{GL}, v{GL} quad_perm:[1,0,3,2] row_mask:0xf bank_mask:0xf")
    a("s_nop 1")
    a(f"v_add_f32_dpp v{GL}, v{GL}, v{GL} quad_perm:[2,3,0,1] row_mask:0xf bank_mask:0xf")
    a("s_nop 1")
    a(f"v_rcp_f32 v{GL}, v{GL}")
    for k in range(4):
        a(f"v_sub_f32 v{hT+16+k}, v{m[k]}, v{GM}")
    for k in range(4):
        a(f"v_exp_f32 v{hT+16+k}, v{hT+16+k}")
    a("s_nop 0")
    for k in range(4):
        a(f"v_mul_f32 v{hT+16+k}, v{hT+16+k}, v{GL}")
    a(f"ds_write_b128 v{hT}, {vr(hT+16)} offset:{L_F}")
    a(f"v_mov_b32 v{hT+30}, 1")
    a("s_waitcnt lgkmcnt(0)")
    a(f"ds_write_b32 v{hT}, v{hT+30} offset:{L_FR}")
    a.label("L_h_noml")
    a(f"s_and_b32 s{sT0+4}, s2, {NREP-1}")
    a(f"s_lshl_b32 s{sT0+4}, s{sT0+4}, 12")
    a(f"s_lshl_b32 s{sT0+5}, s{sB}, 11")
    a(f"s_add_u32 s{sT0+4}, s{sT0+4}, s{sT0+5}")
    a(f"s_lshl_b32 s{sT0+5}, s{sHW}, 9")
    a(f"s_add_u32 s{sT0+4}, s{sT0+4}, s{sT0+5}")
    a(f"v_lshrrev_b32 v{hT+40}, 1, v3")
    a(f"v_lshlrev_b32 v{hT+40}, 6, v{hT+40}")
    a(f"v_lshl_add_u32 v{hT+40}, v2, 2, v{hT+40}")
    a(f"v_add_u32 v{hT+40}, s{sT0+4}, v{hT+40}")
    if p.f64:
        a(f"s_lshl_b32 s{sT0+4}, s{sC}, 13")
        a(f"s_lshl_b32 s{sT0+5}, s{sB}, 12")
        a(f"s_add_u32 s{sT0+4}, s{sT0+4}, s{sT0+5}")
        a(f"s_lshl_b32 s{sT0+5}, s{sHW}, 10")
        a(f"s_add_u32 s{sT0+4}, s{sT0+4}, s{sT0+5}")
        a(f"s_add_u32 s{sT0+4}, s{sT0+4}, {W_A64}")
        a(f"v_lshrrev_b32 v{hT+44}, 1, v3")
        a(f"v_lshlrev_b32 v{hT+44}, 7, v{hT+44}")
        a(f"v_lshl_add_u32 v{hT+44}, v2, 3, v{hT+44}")
        a(f"v_add_u32 v{hT+44}, s{sT0+4}, v{hT+44}")
    a(f"v_and_b32 v{hT+41}, 7, v2")
    a(f"v_lshlrev_b32 v{hT+41}, 8, v{hT+41}")
    a(f"v_lshl_add_u32 v{hT+41}, v3, 4, v{hT+41}")
    a(f"s_mov_b32 s{sT0+6}, 0"); a(f"s_mov_b32 s{sT0+7}, -1")
    a(f"v_mov_b32 v{hT+42}, 0")
    a("s_waitcnt vmcnt(0) lgkmcnt(0)")
    stamp(5)
    a("s_barrier")
    stamp(6)
    AF = hP
    for ks in range(4):
        a(f"ds_read_b128 {vr(AF+4*ks)}, v{hT+41} offset:{L_OA + ks*64}")
    DD = hT
    for ks in range(4):
        a(f"s_waitcnt lgkmcnt({3-ks})")
        for ct in range(8):
            a(f"v_mfma_f32_16x16x32_bf16 {vr(DD+4*ct)}, {vr(AF+4*ks)}, {vr(hW+(ct*4+ks)*4)}, {'0' if ks == 0 else vr(DD+4*ct)}")
    for ct in range(8):
        if ct == 0: a("s_nop 3")
        a(f"v_add_f32 v{DD+4*ct}, v{DD+4*ct}, v{DD+4*ct+1}")
        a(f"v_add_f32 v{DD+4*ct+2}, v{DD+4*ct+2}, v{DD+4*ct+3}")
    for ct in range(8):
        a(f"v_add_f32 v{DD+4*ct}, v{DD+4*ct}, v{DD+4*ct+2}")
    if not p.f64:
        for pr in range(4):
            a(f"v_cndmask_b32 v{DD+8*pr}, v{DD+8*pr}, v{DD+8*pr+4}, {sr(sT0+6)}")
            a(f"global_atomic_add_f32 v{hT+40}, v{DD+8*pr}, {sr(sWS)} offset:{pr*128}")
    else:
        for pr in range(4):
            a(f"v_cndmask_b32 v{DD+8*pr}, v{DD+8*pr}, v{DD+8*pr+4}, {sr(sT0+6)}")
            a(f"v_mov_b32 v{DD+8*pr+1}, v{DD+8*pr}")
        a("s_nop 1")
        for pr in range(4):
            a(f"v_permlane16_swap_b32 v{DD+8*pr}, v{DD+8*pr+1}")
        a("s_nop 1")
        for pr in range(4):
            a(f"v_add_f32 v{DD+8*pr}, v{DD+8*pr}, v{DD+8*pr+1}")
        emit_f64_vals(a, [DD+8*pr for pr in range(4)], AF, sT0+8, hT+45)
        a(f"s_mov_b32 s{sT0+6}, 0x0000ffff"); a(f"s_mov_b32 s{sT0+7}, 0x0000ffff")
        a(f"s_mov_b64 exec, {sr(sT0+6)}")
        for pr in range(4):
            a(f"global_atomic_add_f64 v{hT+44}, v[{AF+2*pr}:{AF+2*pr+1}], {sr(sWS)} offset:{pr*256}")
        for pr in range(4):
            a(f"global_atomic_add_f32 v{hT+40}, v{DD+8*pr}, {sr(sWS)} offset:{pr*128}")
        a(f"s_mov_b64 exec, -1")
    a("s_waitcnt vmcnt(0)")
    stamp(7)
    a("s_barrier")
    a(f"s_cmp_lg_u32 s{sHW}, 0")
    a(f"s_cbranch_scc1 L_h_noarr")
    a(f"s_lshr_b32 s{sT0}, s2, 4")
    a(f"s_lshl_b32 s{sT0}, s{sT0}, 8")
    a(f"s_add_u32 s{sT0}, s{sT0}, {W_CNT}")
    a(f"v_mov_b32 v{hT}, s{sT0}")
    a(f"v_mov_b32 v{hT+1}, 1")
    a(f"s_mov_b64 exec, 1")
    a(f"global_atomic_add v{hT}, v{hT+1}, {sr(sWS)}")
    a(f"s_mov_b64 exec, -1")
    a.label("L_h_noarr")
    a(f"s_cmp_lg_u32 s2, 0")
    a(f"s_cbranch_scc1 L_hend")
    a(f"v_and_b32 v{hT}, {NCNT-1}, v0")
    a(f"v_lshlrev_b32 v{hT}, 8, v{hT}")
    a(f"v_add_u32 v{hT}, {W_CNT}, v{hT}")
    a(f"s_lshl_b32 s{sT0}, s{sHW}, 9")
    a(f"v_lshlrev_b32 v{hT+1}, 3, v0")
    a(f"v_add_u32 v{hT+1}, s{sT0}, v{hT+1}")
    a(f"global_load_dwordx2 v[{hT+4}:{hT+5}], v{hT+1}, {sr(sX)}")
    a(f"v_lshlrev_b32 v{hT+3}, 1, v{hT+1}")
    if p.f64:
        a.label("L_fin_p1")
        a(f"global_load_dword v{hT+2}, v{hT}, {sr(sWS)} sc0 sc1")
        a("s_waitcnt vmcnt(0)")
        for ctrl in ("quad_perm:[1,0,3,2]", "quad_perm:[2,3,0,1]", "row_half_mirror", "row_mirror"):
            a("s_nop 1")
            a(f"v_add_u32_dpp v{hT+2}, v{hT+2}, v{hT+2} {ctrl} row_mask:0xf bank_mask:0xf")
        a(f"v_cmp_gt_u32 vcc, {p.fin_thr}, v{hT+2}")
        a(f"s_cbranch_vccz L_fin_p2")
        a("s_sleep 8")
        a("s_branch L_fin_p1")
        a.label("L_fin_p2")
        lo, hi = f64pair(32 * CBIG); a(f"s_mov_b32 s{sT0}, {lo:#x}"); a(f"s_mov_b32 s{sT0+1}, {hi:#x}")
        lo, hi = f64pair(56 * CBIG); a(f"s_mov_b32 s{sT0+2}, {lo:#x}"); a(f"s_mov_b32 s{sT0+3}, {hi:#x}")
        lo, hi = f64pair(CBIG / 2); a(f"s_mov_b32 s{sT0+4}, {lo:#x}"); a(f"s_mov_b32 s{sT0+5}, {hi:#x}")
        lo, hi = f64pair(float(1 << 59)); a(f"s_mov_b32 s{sT0+6}, {lo:#x}"); a(f"s_mov_b32 s{sT0+7}, {hi:#x}")
        a(f"v_lshlrev_b32 v{hT+14}, 2, v{hT+1}")
        a(f"v_add_u32 v{hT+14}, {W_A64}, v{hT+14}")
        a.label("L_fin_p2l")
        a(f"v_mov_b32 v{hT+15}, v{hT+14}")
        for rep in range(5):
            a(f"global_load_dwordx4 {vr(hW + rep*8)}, v{hT+15}, {sr(sWS)} sc0 sc1")
            a(f"global_load_dwordx4 {vr(hW + rep*8 + 4)}, v{hT+15}, {sr(sWS)} offset:16 sc0 sc1")
            if rep < 4: a(f"v_add_u32 v{hT+15}, 8192, v{hT+15}")
        a(f"s_mov_b64 s[{sT0+8}:{sT0+9}], -1")
        a(f"s_mov_b64 s[{sT0+10}:{sT0+11}], 0")
        for rep in range(5):
            a(f"s_waitcnt vmcnt({2*(4-rep)})")
            for e in range(4):
                R_ = hW + rep*8 + 2*e
                a(f"v_cmp_nlt_f64 vcc, v[{R_}:{R_+1}], {sr(sT0+6)}")
                a(f"s_or_b64 s[{sT0+10}:{sT0+11}], s[{sT0+10}:{sT0+11}], vcc")
                a(f"v_add_f64 v[{R_}:{R_+1}], v[{R_}:{R_+1}], -{sr(sT0 if rep < 4 else sT0+2)}")
                a(f"v_cmp_lt_f64 vcc, |v[{R_}:{R_+1}]|, {sr(sT0+4)}")
                a(f"s_and_b64 s[{sT0+8}:{sT0+9}], s[{sT0+8}:{sT0+9}], vcc")
        a(f"s_cmp_lg_u64 s[{sT0+10}:{sT0+11}], 0")
        a(f"s_cbranch_scc1 L_fin_poll")
        a(f"s_cmp_eq_u64 s[{sT0+8}:{sT0+9}], -1")
        a(f"s_cbranch_scc0 L_fin_p2l")
        stamp(8)
        for e in range(4):
            for rep in range(1, 5):
                a(f"v_add_f64 v[{hW+2*e}:{hW+2*e+1}], v[{hW+2*e}:{hW+2*e+1}], v[{hW+rep*8+2*e}:{hW+rep*8+2*e+1}]")
            a(f"v_cvt_f32_f64 v{hT+16+e}, v[{hW+2*e}:{hW+2*e+1}]")
        a(f"v_lshlrev_b32 v{hT+8}, 16, v{hT+4}")
        a(f"v_and_b32 v{hT+9}, 0xffff0000, v{hT+4}")
        a(f"v_lshlrev_b32 v{hT+10}, 16, v{hT+5}")
        a(f"v_and_b32 v{hT+11}, 0xffff0000, v{hT+5}")
        for e in range(4):
            a(f"v_add_f32 v{hT+8+e}, v{hT+8+e}, v{hT+16+e}")
        a(f"v_cvt_pk_bf16_f32 v{hT+12}, v{hT+8}, v{hT+9}")
        a(f"v_cvt_pk_bf16_f32 v{hT+13}, v{hT+10}, v{hT+11}")
        a(f"global_store_dwordx2 v{hT+1}, v[{hT+12}:{hT+13}], {sr(sOUT)}")
        a("s_branch L_hend")
    a.label("L_fin_poll")
    a(f"global_load_dword v{hT+2}, v{hT}, {sr(sWS)} sc0 sc1")
    a("s_waitcnt vmcnt(0)")
    a(f"v_cmp_ne_u32 vcc, {256//NCNT}, v{hT+2}")
    a(f"s_cbranch_vccnz L_fin_poll")
    stamp(8)
    for rep in range(NREP):
        a(f"global_load_dwordx4 {vr(hW + rep*4)}, v{hT+3}, {sr(sWS)} sc0 sc1")
        a(f"v_add_u32 v{hT+3}, 4096, v{hT+3}")
    a(f"v_lshlrev_b32 v{hT+8}, 16, v{hT+4}")
    a(f"v_and_b32 v{hT+9}, 0xffff0000, v{hT+4}")
    a(f"v_lshlrev_b32 v{hT+10}, 16, v{hT+5}")
    a(f"v_and_b32 v{hT+11}, 0xffff0000, v{hT+5}")
    for rep in range(NREP):
        a(f"s_waitcnt vmcnt({NREP-1-rep})")
        for e in range(4):
            a(f"v_add_f32 v{hT+8+e}, v{hT+8+e}, v{hW+rep*4+e}")
    a(f"v_cvt_pk_bf16_f32 v{hT+12}, v{hT+8}, v{hT+9}")
    a(f"v_cvt_pk_bf16_f32 v{hT+13}, v{hT+10}, v{hT+11}")
    a(f"global_store_dwordx2 v{hT+1}, v[{hT+12}:{hT+13}], {sr(sOUT)}")
    a.label("L_hend")
    stamp(9)
    dump_stamps(10, hT)
    a.label("L_end")
    a("s_endpgm")

    kd = f""".section .rodata,"a"
.p2align 6
.amdhsa_kernel {NAME}
  .amdhsa_next_free_vgpr 256
  .amdhsa_next_free_sgpr 102
  .amdhsa_accum_offset 256
  .amdhsa_group_segment_fixed_size 0
  .amdhsa_kernarg_size 96
  .amdhsa_user_sgpr_count 2
  .amdhsa_user_sgpr_kernarg_segment_ptr 1
  .amdhsa_system_sgpr_workgroup_id_x 1
.end_amdhsa_kernel
"""
    txt = HEADER + f"; @launch grid=(256,1,1) block=(512,1,1) lds={lds_bytes(p.NL)}\n"
    txt += f'.amdgcn_target "amdgcn-amd-amdhsa--gfx950"\n.text\n.globl {NAME}\n.p2align 8\n.type {NAME},@function\n'
    txt += a.text() + kd
    return txt

def emit_selectors(a, vSEL, vT):
    a(f"v_lshrrev_b32 v{vT}, 3, v2")
    a(f"v_mul_u32_u24 v{vT}, 0x0202, v{vT}")
    a(f"v_add_u32 v{vT}, 0x0100, v{vT}")
    a(f"v_lshlrev_b32 v{vT+1}, 16, v{vT}")
    a(f"v_or_b32 v{vT+1}, 0x0c0c, v{vT+1}")
    a(f"v_or_b32 v{vT}, 0x0c0c0000, v{vT}")
    a(f"v_and_b32 v{vT+2}, 1, v2")
    a(f"v_cmp_eq_u32 vcc, 1, v{vT+2}")
    a("s_nop 1")
    a(f"v_cndmask_b32 v{vT}, v{vT}, v{vT+1}, vcc")
    a(f"v_bfe_u32 v{vT+2}, v2, 1, 2")
    a(f"v_mov_b32 v{vT+1}, 0x0c0c0c0c")
    for r in range(4):
        a(f"v_cmp_eq_u32 vcc, {r}, v{vT+2}")
        a("s_nop 1")
        a(f"v_cndmask_b32 v{vSEL+r}, v{vT+1}, v{vT}, vcc")

def wave_allreduce_add(a, v, sT):
    a("s_nop 1")
    a(f"v_add_f32_dpp v{v}, v{v}, v{v} quad_perm:[1,0,3,2] row_mask:0xf bank_mask:0xf")
    a("s_nop 1")
    a(f"v_add_f32_dpp v{v}, v{v}, v{v} quad_perm:[2,3,0,1] row_mask:0xf bank_mask:0xf")
    a("s_nop 1")
    a(f"v_add_f32_dpp v{v}, v{v}, v{v} row_half_mirror row_mask:0xf bank_mask:0xf")
    a("s_nop 1")
    a(f"v_add_f32_dpp v{v}, v{v}, v{v} row_mirror row_mask:0xf bank_mask:0xf")
    a("s_nop 1")
    for k in range(4):
        a(f"v_readlane_b32 s{sT+k}, v{v}, {16*k}")
    a("s_nop 1")
    a(f"v_mov_b32 v{v}, s{sT}")
    a(f"v_add_f32 v{v}, s{sT+1}, v{v}")
    a(f"v_add_f32 v{v}, s{sT+2}, v{v}")
    a(f"v_add_f32 v{v}, s{sT+3}, v{v}")

def emit_wait_flag(a, tag, sDBG, vT):
    a(f"v_mov_b32 v{vT}, 0")
    a(f"s_branch L_flag1_{tag}")
    a.label(f"L_flag_{tag}")
    a("s_sleep 48")
    a.label(f"L_flag1_{tag}")
    a(f"global_load_dword v{vT+1}, v{vT}, s[{sDBG}:{sDBG+1}] offset:4 sc0 sc1")
    a("s_waitcnt vmcnt(0)")
    a(f"v_cmp_eq_u32 vcc, 0, v{vT+1}")
    a(f"s_cbranch_vccnz L_flag_{tag}")

def emit_y_addr(a, vaddr, hDA, sT, sB, sHW):
    a(f"s_and_b32 s{sT}, s2, {NREP-1}")
    a(f"s_lshl_b32 s{sT}, s{sT}, 12")
    a(f"s_lshl_b32 s{sT+1}, s{sB}, 11")
    a(f"s_add_u32 s{sT}, s{sT}, s{sT+1}")
    a(f"s_lshl_b32 s{sT+1}, s{sHW}, 9")
    a(f"s_add_u32 s{sT}, s{sT}, s{sT+1}")
    a(f"v_add_u32 v{vaddr}, s{sT}, v{hDA}")

def emit_f64_vals(a, src, dst, sT, vT):
    lo, hi = f64pair(CBIG)
    a(f"s_mov_b32 s{sT}, {lo:#x}"); a(f"s_mov_b32 s{sT+1}, {hi:#x}")
    a(f"v_mov_b32 v{vT}, {f32bits(YLIM):#x}")
    a(f"v_mov_b32 v{vT+1}, {f64pair(float(1 << 60))[1]:#x}")
    for k, r in enumerate(src):
        a(f"v_cvt_f64_f32 v[{dst+2*k}:{dst+2*k+1}], v{r}")
        a(f"v_cmp_nlt_f32 vcc, |v{r}|, v{vT}")
        a(f"v_add_f64 v[{dst+2*k}:{dst+2*k+1}], v[{dst+2*k}:{dst+2*k+1}], s[{sT}:{sT+1}]")
        a("s_nop 0")
        a(f"v_cndmask_b32 v{dst+2*k+1}, v{dst+2*k+1}, v{vT+1}, vcc")

def emit_atomic_y(a, D, vaddr, sWS, sTmp):
    a(f"s_mov_b32 s{sTmp}, 0x00ff00ff"); a(f"s_mov_b32 s{sTmp+1}, 0x00ff00ff")
    a(f"s_mov_b64 exec, s[{sTmp}:{sTmp+1}]")
    for r in range(4):
        a(f"global_atomic_add_f32 v{vaddr}, v{D+r}, s[{sWS}:{sWS+1}] offset:{r*32}")
    a(f"s_mov_b64 exec, -1")

if __name__ == "__main__":
    out = sys.argv[1] if len(sys.argv) > 1 else OUT
    if out == "-": out = OUT
    for kv in sys.argv[2:]:
        k, v = kv.split("=", 1)
        cur = getattr(P, k)
        setattr(P, k, (v == "1") if isinstance(cur, bool) else type(cur)(v))
    open(out, "w").write(gen())
    print("wrote", out)
```

```python
import sys, os, math, struct

NAME = "parallel_sum__mha_block_cached__glu_gated_swiglu__decode_kernel"
OUT = "parallel_sum__mha_block_cached__glu_gated_swiglu__decode.s"

HEADER = """; Kernarg layout for this problem (96 bytes, ptrs only, base s[0:1]):
"""

class P:
    d = 5
    dA = 5
    NR = 48
    NL = 32
    NB = 64
    dQ = 3
    dF = 1
    dW = 3
    kvflags = "nt"
    wflags = ""
    stamps = False
    stampset = 'A'
    noffn = False
    nowo = False
    noml = False
    dE = 7
    dA0 = 5
    nA0 = 0
    fsleep = 120
    ctl = False
    cdelta = 1
    csleep = 64
    wmap = 3
    GE = 8
    vsig = 22

class Asm:
    def __init__(self):
        self.L = []
    def __call__(self, s):
        self.L.append("    " + s)
    def label(self, s):
        self.L.append(s + ":")
    def c(self, s):
        self.L.append("    ; " + s)
    def text(self):
        return "\n".join(self.L) + "\n"

def vr(b, n=4):
    return f"v[{b}:{b+n-1}]"
def sr(b, n=2):
    return f"s[{b}:{b+n-1}]"
def f32bits(x):
    return struct.unpack("<I", struct.pack("<f", x))[0]

RS = 1040
L_ST = 0
L_XP = 16640
L_QP = L_XP + 8192
L_Z = L_QP + 2048
L_ML = L_Z
L_KF = L_Z + 32
L_F = L_Z + 64
L_VP = L_Z + 80
L_FC = L_Z + 96
L_FR = L_Z + 100
L_FI = L_Z + 104
L_PB = L_Z + 112
L_FG = L_Z + 132
L_FS = L_Z + 136
L_MD = L_Z + 128
L_GA = L_Z + 512
L_UA = L_Z + 1024
L_OA = L_Z + 2048
L_KB = L_OA + 2048
def lds_bytes(NL): return (L_KB + 4 * NL * 1024 + 255) // 256 * 256

W_ACC = 0
NREP = 8
W_CNT = 32768
NCNT = 16
W_FF = 40960
W_ML = W_FF + 28*4096
W_PR = 32768 + 4096
W_FFC = 32768 + 4096
ZERO_BYTES = 32768 + 4096 + 2048

SCALE = (128 ** -0.5) * math.log2(math.e)

def gen(p=P):
    a = Asm()
    d = p.d
    NR, NL, NB = p.NR, p.NL, p.NB
    NS = NR + NL
    def stamp(k, which="A"):
        if p.stamps and p.stampset == which:
            a(f"s_memrealtime s[{82+2*k}:{83+2*k}]")
    def dump_stamps(n, vtmp):
        if not p.stamps: return
        a("s_waitcnt lgkmcnt(0)")
        a(f"s_lshl_b32 s81, s2, 3")
        a(f"s_add_u32 s81, s81, s3")
        a(f"s_lshl_b32 s81, s81, 6")
        a(f"s_add_u32 s81, s81, 0x100000")
        a(f"v_mov_b32 v{vtmp}, s81")
        a("s_mov_b64 exec, 1")
        for k in range(n):
            a(f"v_mov_b32 v{vtmp+1}, s{82+2*k}")
            a(f"global_store_dword v{vtmp}, v{vtmp+1}, s[30:31] offset:{4*k}")
        a("s_mov_b64 exec, -1")
    sX, sK, sV, sWQ, sWO, sW1, sW3, sW2, sOUT, sDBG, sWS = 8, 10, 12, 14, 16, 20, 22, 24, 26, 28, 30
    sH, sB, sC, sBH = 32, 33, 34, 35
    SRD_K, SRD_V, SRD_W = 36, 40, 44
    sSUB = 48
    sLB = 54
    sM0 = 56
    sCUR, sNXT = 64, 65
    sHW, sK8, sFIRST = 66, 67, 81
    sT0 = 68
    sWV = 3

    a.label(NAME)
    a(f"s_cmp_ge_u32 s2, 256")
    a(f"s_cbranch_scc1 L_end")
    a(f"s_load_dwordx16 s[8:23], s[0:1], 0")
    a(f"s_load_dwordx8 s[24:31], s[0:1], 64")
    a(f"v_lshrrev_b32 v1, 6, v0")
    a(f"v_and_b32 v0, 63, v0")
    a(f"v_readfirstlane_b32 s{sWV}, v1")
    if p.wmap == 0:
        a(f"s_and_b32 s{sH}, s2, 31")
        a(f"s_bfe_u32 s{sB}, s2, 0x10005")
        a(f"s_lshr_b32 s{sC}, s2, 6")
    elif p.wmap == 1:
        a(f"s_and_b32 s{sC}, s2, 1")
        a(f"s_lshl_b32 s{sC}, s{sC}, 1")
        a(f"s_bfe_u32 s{sB}, s2, 0x10003")
        a(f"s_or_b32 s{sC}, s{sC}, s{sB}")
        a(f"s_bfe_u32 s{sH}, s2, 0x30004")
        a(f"s_lshl_b32 s{sH}, s{sH}, 2")
        a(f"s_bfe_u32 s{sB}, s2, 0x20001")
        a(f"s_or_b32 s{sH}, s{sH}, s{sB}")
        a(f"s_lshr_b32 s{sB}, s2, 7")
    elif p.wmap == 3:
        a(f"s_bfe_u32 s{sC}, s2, 0x20003")
        a(f"s_and_b32 s{sH}, s2, 3")
        a(f"s_bfe_u32 s{sB}, s2, 0x20005")
        a(f"s_lshl_b32 s{sB}, s{sB}, 2")
        a(f"s_or_b32 s{sH}, s{sH}, s{sB}")
        a(f"s_bfe_u32 s{sB}, s2, 0x10002")
        a(f"s_lshl_b32 s{sB}, s{sB}, 4")
        a(f"s_or_b32 s{sH}, s{sH}, s{sB}")
        a(f"s_lshr_b32 s{sB}, s2, 7")
    elif p.wmap == 2:
        a(f"s_and_b32 s{sC}, s2, 3")
        a(f"s_bfe_u32 s{sH}, s2, 0x50002")
        a(f"s_lshr_b32 s{sB}, s2, 7")
    elif p.wmap == 5:
        a(f"s_bfe_u32 s{sC}, s2, 0x20003")
        a(f"s_bfe_u32 s{sH}, s2, 0x30005")
        a(f"s_and_b32 s{sB}, s2, 3")
        a(f"s_lshl_b32 s{sB}, s{sB}, 3")
        a(f"s_or_b32 s{sH}, s{sH}, s{sB}")
        a(f"s_bfe_u32 s{sB}, s2, 0x10002")
    a(f"s_lshl_b32 s{sBH}, s{sB}, 5")
    a(f"s_add_u32 s{sBH}, s{sBH}, s{sH}")
    a(f"v_and_b32 v2, 15, v0")
    a(f"v_lshrrev_b32 v3, 4, v0")
    stamp(0); stamp(0, "S")
    a(f"s_cmp_ge_u32 s{sWV}, 4")
    a(f"s_cbranch_scc1 L_helper")

    vKO0, vKO1, vVO0, vVO1 = 4, 5, 6, 7
    vSA, vSR, vMR, vL = 8, 9, 10, 11
    vX0, vX1, vMN, vA, vE0, vE1, vMW, vPG = 12, 13, 14, 15, 16, 17, 18, 19
    vD, vD2, vSEL = 20, 24, 28
    vBQ = 32
    vBT, vS0, vS1, vP = 32, 36, 44, 52
    vPA = 56
    vLB = 1
    vT = 56
    vSL = 64

    t0, t1, t2 = vX0, vX1, vMN
    a(f"v_lshrrev_b32 v{t0}, 2, v2")
    a(f"v_and_b32 v{t1}, 3, v2")
    a(f"v_lshlrev_b32 v{t0}, 8, v{t0}")
    a(f"v_lshlrev_b32 v{t1}, 4, v{t1}")
    a(f"v_lshlrev_b32 v{t2}, 6, v3")
    a(f"v_add3_u32 v{vKO0}, v{t0}, v{t1}, v{t2}")
    a(f"s_lshl_b32 s{sT0}, s{sWV}, 13")
    a(f"s_lshl_b32 s{sT0+1}, s{sBH}, 2")
    a(f"s_add_u32 s{sT0+1}, s{sT0+1}, s{sC}")
    a(f"s_lshl_b32 s{sT0+1}, s{sT0+1}, 20")
    a(f"v_add_u32 v{vKO0}, s{sT0}, v{vKO0}")
    a(f"v_add_u32 v{vKO1}, 0x1000, v{vKO0}")
    a(f"s_mov_b32 s{SRD_K+2}, 0x100000")
    a(f"s_mov_b32 s{SRD_K+3}, 0x00020000")
    a(f"s_mov_b32 s{sCUR}, 0")
    a(f"s_waitcnt lgkmcnt(0)")
    stamp(1, "S")
    a(f"s_add_u32 s{SRD_K}, s{sK}, s{sT0+1}")
    a(f"s_addc_u32 s{SRD_K+1}, s{sK+1}, 0")

    G0K = (NS + 16) // 8
    assert NS % 16 == 0 and NR >= 32 and NL % 8 == 0
    def slot(i):
        if i < NR: return vSL + 4 * i
        if i < NS: return vSL + 4 * (16 + ((i - NR) % 16))
        if i < 8 * G0K: return vSL + 4 * (i % 16)
        return vSL + 4 * (i % 8)
    def kimm(i):
        ii = i & 7
        return (vKO1 if ii >= 4 else vKO0), (ii & 3) * 1024
    def kload(i, soff):
        vo, imm = kimm(i)
        if NR <= i < NS:
            c = (i - NR) * 1024 - imm
            a(f"s_add_u32 m0, s{sLB}, {c & 0xffffffff:#x}")
            a("s_nop 0")
            a(f"buffer_load_dwordx4 v{vo}, {sr(SRD_K,4)}, {soff} offen offset:{imm} {p.kvflags} lds")
        else:
            a(f"buffer_load_dwordx4 {vr(slot(i))}, v{vo}, {sr(SRD_K,4)}, {soff} offen offset:{imm} {p.kvflags}")
    def vload(i, soff):
        ii = i & 7
        vo = vVO1 if ii >= 4 else vVO0
        imm = (ii & 3) * 1024
        a(f"buffer_load_dwordx4 {vr(vSL + 4*ii)}, v{vo}, {sr(SRD_V,4)}, {soff} offen offset:{imm} {p.kvflags}")
    cur_grp = [0]
    def kload_u(i):
        g = i >> 3
        if g != cur_grp[0]:
            assert g == cur_grp[0] + 1
            a(f"s_add_u32 s{sCUR}, s{sCUR}, 32768")
            cur_grp[0] = g
        kload(i, f"s{sCUR}")

    def setup1():
        a(f"s_add_u32 s{SRD_V}, s{sV}, s{sT0+1}")
        a(f"s_addc_u32 s{SRD_V+1}, s{sV+1}, 0")
        a(f"s_mov_b32 s{SRD_V+2}, 0x100000")
        a(f"s_mov_b32 s{SRD_V+3}, 0x00020000")
        a(f"v_lshlrev_b32 v{vVO0}, 4, v0")
        a(f"v_add_u32 v{vVO0}, s{sT0}, v{vVO0}")
        a(f"v_add_u32 v{vVO1}, 0x1000, v{vVO0}")
        a(f"s_mul_i32 s{sLB}, s{sWV}, {NL*1024}")
        a(f"s_add_u32 s{sLB}, s{sLB}, {L_KB}")
        for k in range(1, 4):
            mk = 0x11111111 << k
            a(f"s_mov_b32 s{sSUB+2*(k-1)}, {mk:#x}"); a(f"s_mov_b32 s{sSUB+2*(k-1)+1}, {mk:#x}")
        for m in range(4):
            mk = 0x000f000f << (4 * m)
            a(f"s_mov_b32 s{sM0+2*m}, {mk:#x}"); a(f"s_mov_b32 s{sM0+2*m+1}, {mk:#x}")
    def setup2():
        a(f"s_mul_i32 s{sT0}, s{sWV}, {4*RS}")
        a(f"v_mul_u32_u24 v{vSR}, {RS}, v3")
        a(f"v_add_u32 v{vSR}, s{sT0}, v{vSR}")
        a(f"v_lshrrev_b32 v{t1}, 2, v2")
        a(f"v_lshl_add_u32 v{vSA}, v{t1}, 2, v{vSR}")
        a(f"v_mov_b32 v{vMR}, 0xff7fffff")
        a(f"v_mov_b32 v{vL}, 0")
        a(f"v_and_b32 v1, 3, v2")
        a(f"v_lshlrev_b32 v1, 5, v1")
        a(f"v_lshl_add_u32 v1, v3, 7, v1")
    def setup3():
        emit_selectors(a, vSEL, t0)
    qa, qb = vD, vX0
    bchunks = []
    def b_read(hw):
        def f():
            dst = qa if hw == 0 else qb
            for hf in range(2):
                a(f"ds_read_b128 {vr(dst + 4*hf)}, v1 offset:{L_QP + hw*512 + hf*16}")
        return f
    def b_add():
        a("s_waitcnt lgkmcnt(0)")
        for e in range(8):
            a(f"v_add_f32 v{qa+e}, v{qa+e}, v{qb+e}")
    def b_scale():
        a(f"s_mov_b32 s{sT0}, {f32bits(SCALE):#x}")
        for e in range(8):
            a(f"v_mul_f32 v{qa+e}, s{sT0}, v{qa+e}")
    def b_split(r):
        def f():
            q0, q1 = qa + 2*r, qa + 2*r + 1
            H, h0, h1, Lp = qb, qb+1, qb+2, qb+3
            a(f"v_cvt_pk_bf16_f32 v{H}, v{q0}, v{q1}")
            a(f"v_lshlrev_b32 v{h0}, 16, v{H}")
            a(f"v_and_b32 v{h1}, 0xffff0000, v{H}")
            a(f"v_sub_f32 v{h0}, v{q0}, v{h0}")
            a(f"v_sub_f32 v{h1}, v{q1}, v{h1}")
            a(f"v_cvt_pk_bf16_f32 v{Lp}, v{h0}, v{h1}")
            for m in range(4):
                a(f"v_cndmask_b32 v{vBQ + (m*2+0)*4 + r}, 0, v{H}, {sr(sM0+2*m)}")
                a(f"v_cndmask_b32 v{vBQ + (m*2+1)*4 + r}, 0, v{Lp}, {sr(sM0+2*m)}")
        return f
    def seq(*fs):
        def f():
            for g_ in fs: g_()
        return f
    bchunks = [seq(b_read(0), b_read(1)), seq(b_add, b_read(2)), seq(b_add, b_read(3)), seq(b_add, b_scale),
               b_split(0), b_split(1), b_split(2), b_split(3)]

    for i in range(NS):
        if i == NB:
            stamp(1); stamp(5, "S")
            a("s_barrier")
            stamp(2); stamp(6, "S")
        dcur = p.dA0 if i < p.nA0 else p.dA
        if i >= dcur:
            a(f"s_waitcnt vmcnt({dcur-1})")
        if i == p.dA: stamp(3, "S")
        if i == 16: stamp(4, "S")
        kload_u(i)
        if i == p.dA - 1: stamp(2, "S"); setup1()
        if i == p.dA: setup2()
        if i == p.dA + 1: setup3()
        if i >= NB and bchunks:
            bchunks.pop(0)()
    if NB >= NS:
        stamp(1); stamp(5, "S")
        a("s_barrier")
        stamp(2); stamp(6, "S")
    while bchunks:
        bchunks.pop(0)()
    a(f"v_lshlrev_b32 v{vLB}, 4, v0")
    a(f"v_add_u32 v{vLB}, s{sLB}, v{vLB}")
    stamp(3); stamp(7, "S")

    def kconsume(i):
        ii = i & 7
        m = ii & 3
        D = vD if ii < 4 else vD2
        for hl in range(2):
            b = vBQ + (m*2+hl)*4
            c = "0" if (m == 0 and hl == 0) else vr(D)
            a(f"v_mfma_f32_16x16x32_bf16 {vr(D)}, {vr(slot(i))}, {vr(b)}, {c}")
    def kpost():
        a("s_nop 7")
        for X_, D in ((vX0, vD), (vX1, vD2)):
            a(f"v_cndmask_b32 v{X_}, v{D}, v{D+1}, {sr(sSUB)}")
            a(f"v_cndmask_b32 v{X_}, v{X_}, v{D+2}, {sr(sSUB+2)}")
            a(f"v_cndmask_b32 v{X_}, v{X_}, v{D+3}, {sr(sSUB+4)}")
        a("s_nop 0")
        a(f"v_add_f32_dpp v{vX0}, v{vX0}, v{vX0} quad_perm:[1,0,3,2] row_mask:0xf bank_mask:0xf")
        a(f"v_add_f32_dpp v{vX1}, v{vX1}, v{vX1} quad_perm:[1,0,3,2] row_mask:0xf bank_mask:0xf")
        a("s_nop 1")
        a(f"v_add_f32_dpp v{vX0}, v{vX0}, v{vX0} quad_perm:[2,3,0,1] row_mask:0xf bank_mask:0xf")
        a(f"v_add_f32_dpp v{vX1}, v{vX1}, v{vX1} quad_perm:[2,3,0,1] row_mask:0xf bank_mask:0xf")
        a(f"v_max3_f32 v{vMN}, v{vMR}, v{vX0}, v{vX1}")
        a(f"ds_write_b32 v{vSA}, v{vX0} offset:{L_ST}")
        a(f"ds_write_b32 v{vSA}, v{vX1} offset:{L_ST+16}")
        a(f"v_sub_f32 v{vA}, v{vMR}, v{vMN}")
        a(f"v_sub_f32 v{vE0}, v{vX0}, v{vMN}")
        a(f"v_sub_f32 v{vE1}, v{vX1}, v{vMN}")
        a(f"v_exp_f32 v{vA}, v{vA}")
        a(f"v_exp_f32 v{vE0}, v{vE0}")
        a(f"v_exp_f32 v{vE1}, v{vE1}")
        a(f"v_mov_b32 v{vMR}, v{vMN}")
        a(f"v_add_u32 v{vSA}, 32, v{vSA}")
        a(f"v_fma_f32 v{vL}, v{vL}, v{vA}, v{vE0}")
        a(f"v_add_f32 v{vL}, v{vL}, v{vE1}")

    issued = NS
    def lds_fetch(grp):
        for ii in range(8):
            i = grp * 8 + ii
            a(f"ds_read_b128 {vr(slot(i))}, v{vLB} offset:{(i-NR)*1024}")
    for grp in range(G0K):
        nxt = grp + 1
        is_lds = NR <= grp * 8 < NS
        if is_lds:
            a("s_waitcnt lgkmcnt(0)")
        if NR <= nxt * 8 < NS and nxt * 8 + 7 < issued:
            a(f"s_waitcnt vmcnt({min(issued - 1 - (nxt*8+7), 63)})")
            lds_fetch(nxt)
        for ii in range(8):
            i = grp * 8 + ii
            if not is_lds:
                oa = issued - 1 - i
                if oa < p.dA + d + 12:
                    a(f"s_waitcnt vmcnt({min(oa, 63)})")
            if i >= NS and i + d >= issued:
                a(f"s_waitcnt vmcnt({min(d-1, issued - 1 - i)})")
                kload_u(issued); issued += 1
            kconsume(i)
        kpost()
        if grp * 8 + 7 < NS:
            a(f"s_waitcnt vmcnt({d-1})")
            kload_u(issued); issued += 1
    assert issued == 8 * G0K + d, (issued, 8 * G0K + d)
    a(f"s_lshl_b32 s{sT0}, s{sWV}, 2")
    a(f"v_mov_b32 v{vA}, s{sT0}")
    a(f"v_mov_b32 v{vE0}, 1")
    a(f"ds_write_b32 v{vA}, v{vE0} offset:{L_PB}")
    stamp(4)
    ngA = G0K
    vDB = vSL + 4 * 8
    SETS = {0: (vD, vD2), 1: (vDB, vDB + 4)}
    def kconsume2(ii, st):
        m = ii & 3
        D = SETS[st][0 if ii < 4 else 1]
        for hl in range(2):
            b = vBQ + (m*2+hl)*4
            c = "0" if (m == 0 and hl == 0) else vr(D)
            a(f"v_mfma_f32_16x16x32_bf16 {vr(D)}, {vr(vSL + 4*ii)}, {vr(b)}, {c}")
    def post_piece(k, st):
        Da, Db = SETS[st]
        if k == 0 or k == 1:
            X_, D = ((vX0, Da), (vX1, Db))[k]
            a(f"v_cndmask_b32 v{X_}, v{D}, v{D+1}, {sr(sSUB)}")
            a(f"v_cndmask_b32 v{X_}, v{X_}, v{D+2}, {sr(sSUB+2)}")
            a(f"v_cndmask_b32 v{X_}, v{X_}, v{D+3}, {sr(sSUB+4)}")
        elif k == 2 or k == 3:
            qp = "[1,0,3,2]" if k == 2 else "[2,3,0,1]"
            a(f"v_add_f32_dpp v{vX0}, v{vX0}, v{vX0} quad_perm:{qp} row_mask:0xf bank_mask:0xf")
            a(f"v_add_f32_dpp v{vX1}, v{vX1}, v{vX1} quad_perm:{qp} row_mask:0xf bank_mask:0xf")
        elif k == 4:
            a(f"v_max3_f32 v{vMN}, v{vMR}, v{vX0}, v{vX1}")
            a(f"ds_write_b32 v{vSA}, v{vX0} offset:{L_ST}")
            a(f"ds_write_b32 v{vSA}, v{vX1} offset:{L_ST+16}")
        elif k == 5:
            a(f"v_sub_f32 v{vA}, v{vMR}, v{vMN}")
            a(f"v_sub_f32 v{vE0}, v{vX0}, v{vMN}")
            a(f"v_sub_f32 v{vE1}, v{vX1}, v{vMN}")
        elif k == 6:
            a(f"v_exp_f32 v{vA}, v{vA}")
            a(f"v_exp_f32 v{vE0}, v{vE0}")
            a(f"v_exp_f32 v{vE1}, v{vE1}")
            a(f"v_mov_b32 v{vMR}, v{vMN}")
            a(f"v_add_u32 v{vSA}, 32, v{vSA}")
        elif k == 7:
            a(f"v_fma_f32 v{vL}, v{vL}, v{vA}, v{vE0}")
            a(f"v_add_f32 v{vL}, v{vL}, v{vE1}")
    def kgroup(st, prev, last=False):
        for ii in range(8):
            a(f"s_waitcnt vmcnt({d-1})")
            n = ii + d
            if n < 8:
                kload(8*G0K + n, f"s{sCUR}")
            elif last:
                vload(n & 7, "0")
            else:
                kload(8*G0K + 8 + (n & 7), f"s{sNXT}")
            kconsume2(ii, st)
            if prev is not None:
                post_piece(ii, prev)
    def kadv():
        a(f"s_mov_b32 s{sCUR}, s{sNXT}")
        a(f"s_add_u32 s{sNXT}, s{sNXT}, 32768")
    a(f"s_mov_b32 s{sCUR}, {ngA*32768}")
    a(f"s_mov_b32 s{sNXT}, {(ngA+1)*32768}")
    assert ngA % 2 == 0
    kgroup(0, None); kadv()
    a.label("L_kloop")
    kgroup(1, 0); kadv()
    kgroup(0, 1); kadv()
    a(f"s_cmp_lt_u32 s{sCUR}, {31*32768}")
    a(f"s_cbranch_scc1 L_kloop")
    kgroup(1, 0, last=True)
    a("s_nop 7")
    for k in range(8):
        post_piece(k, 1)
        if k in (1, 2): a("s_nop 1")
    a("s_nop 1")
    a(f"v_max_f32_dpp v{vMN}, v{vMR}, v{vMR} row_half_mirror row_mask:0xf bank_mask:0xf")
    a("s_nop 1")
    a(f"v_max_f32_dpp v{vMN}, v{vMN}, v{vMN} row_mirror row_mask:0xf bank_mask:0xf")
    a("s_nop 1")
    for k in range(4):
        a(f"v_readlane_b32 s{sT0+k}, v{vMN}, {16*k}")
    a("s_nop 1")
    a(f"v_mov_b32 v{vMW}, s{sT0}")
    a(f"v_max_f32 v{vMW}, s{sT0+1}, v{vMW}")
    a(f"v_max_f32 v{vMW}, s{sT0+2}, v{vMW}")
    a(f"v_max_f32 v{vMW}, s{sT0+3}, v{vMW}")
    a(f"v_sub_f32 v{vA}, v{vMR}, v{vMW}")
    a(f"v_exp_f32 v{vA}, v{vA}")
    a("s_nop 0")
    a(f"v_mul_f32 v{vL}, v{vL}, v{vA}")
    a("s_nop 1")
    a(f"v_add_f32_dpp v{vL}, v{vL}, v{vL} row_half_mirror row_mask:0xf bank_mask:0xf")
    a("s_nop 1")
    a(f"v_add_f32_dpp v{vL}, v{vL}, v{vL} row_mirror row_mask:0xf bank_mask:0xf")
    a("s_nop 1")
    for k in range(4):
        a(f"v_readlane_b32 s{sT0+k}, v{vL}, {16*k}")
    a("s_nop 1")
    a(f"v_mov_b32 v{vL}, s{sT0}")
    a(f"v_add_f32 v{vL}, s{sT0+1}, v{vL}")
    a(f"v_add_f32 v{vL}, s{sT0+2}, v{vL}")
    a(f"v_add_f32 v{vL}, s{sT0+3}, v{vL}")
    a(f"s_lshl_b32 s{sT0}, s{sWV}, 3")
    a(f"v_mov_b32 v{vT}, s{sT0}")
    a(f"v_mov_b32 v{vT+2}, v{vMW}")
    a(f"v_mov_b32 v{vT+3}, v{vL}")
    a(f"ds_write_b64 v{vT}, v[{vT+2}:{vT+3}] offset:{L_ML}")
    a(f"s_lshl_b32 s{sT0}, s{sWV}, 2")
    a(f"v_mov_b32 v{vPA}, s{sT0}")
    a(f"v_mov_b32 v{vT+4}, 1")
    a("s_waitcnt lgkmcnt(0)")
    a(f"ds_write_b32 v{vPA}, v{vT+4} offset:{L_KF}")
    stamp(5)
    for r in range(4):
        a(f"v_mov_b32 v{vD+r}, 0")
        a(f"v_mov_b32 v{vD2+r}, 0")
    a(f"v_mov_b32 v{vPG}, 0")
    a(f"ds_read_b128 {vr(vS0)}, v{vSR} offset:{L_ST}")
    a(f"ds_read_b128 {vr(vS0+4)}, v{vSR} offset:{L_ST+16}")
    a(f"v_add_u32 v{vSR}, 32, v{vSR}")
    def vconsume(ii, S):
        t, hi, lo, Pk = vP, vP+1, vP+2, vP+3
        a(f"v_sub_f32 v{t}, v{S+ii}, v{vMW}")
        a(f"v_exp_f32 v{t}, v{t}")
        a("s_nop 0")
        a(f"v_and_b32 v{hi}, 0xffff0000, v{t}")
        a(f"v_sub_f32 v{lo}, v{t}, v{hi}")
        a(f"v_cvt_pk_bf16_f32 v{Pk}, v{hi}, v{lo}")
        for r in range(4):
            a(f"v_perm_b32 v{vBT+r}, v{Pk}, v{Pk}, v{vSEL+r}")
        a("s_nop 1")
        D = vD if (ii & 1) == 0 else vD2
        a(f"v_mfma_f32_16x16x32_bf16 {vr(D)}, {vr(vSL+4*ii)}, {vr(vBT)}, {vr(D)}")
    def vgroup(S, Sn, dc, dprev=None):
        a("s_waitcnt lgkmcnt(0)")
        a(f"ds_read_b128 {vr(Sn)}, v{vSR} offset:{L_ST}")
        a(f"ds_read_b128 {vr(Sn+4)}, v{vSR} offset:{L_ST+16}")
        a(f"v_add_u32 v{vSR}, 32, v{vSR}")
        for ii in range(8):
            if dprev is not None and dprev < dc and ii == 0:
                a(f"s_waitcnt vmcnt({dprev-1})")
                for n in range(dprev, dc + 1):
                    vload(n & 7, f"s{sCUR}" if n < 8 else f"s{sNXT}")
            elif dprev is not None and dprev > dc and ii + dc < dprev:
                a(f"s_waitcnt vmcnt({dprev-1-ii})")
            else:
                n = ii + dc
                a(f"s_waitcnt vmcnt({dc-1})")
                vload(n & 7, f"s{sCUR}" if n < 8 else f"s{sNXT}")
            vconsume(ii, S)
    def adv():
        a(f"s_mov_b32 s{sCUR}, s{sNXT}")
        a(f"s_add_u32 s{sNXT}, s{sNXT}, 32768")
    a(f"s_mov_b32 s{sCUR}, 0")
    a(f"s_mov_b32 s{sNXT}, 32768")
    dE, GE = p.dE, p.GE
    assert GE % 2 == 0 and GE >= 4
    G0 = 32 - GE
    vMD = vT + 1; vZ = vT + 2
    a(f"v_mov_b32 v{vZ}, 0")
    def vpair(d1, dprev, tag):
        a(f"v_add_u32 v{vPG}, 2, v{vPG}")
        a(f"ds_write_b32 v{vPA}, v{vPG} offset:{L_VP}")
        if p.ctl: a(f"ds_read_b32 v{vMD}, v{vZ} offset:{L_MD}")
        vgroup(vS0, vS1, d1, dprev); adv()
        vgroup(vS1, vS0, d1); adv()
        if p.ctl: a(f"v_readfirstlane_b32 s{sT0}, v{vMD}")
        a(f"s_cmp_ge_u32 s{sCUR}, {G0*32768}")
        a(f"s_cbranch_scc1 L_vend_{'L' if d1 == d else 'H'}")
    if p.ctl:
        assert dE > d
        a.label("L_vL")
        vpair(d, None, "LL")
        a(f"s_cmp_eq_u32 s{sT0}, 0")
        a(f"s_cbranch_scc1 L_vL")
        a.label("L_vLH")
        vpair(dE, d, "LH")
        a(f"s_cmp_eq_u32 s{sT0}, 0")
        a(f"s_cbranch_scc1 L_vHL")
        a.label("L_vH")
        vpair(dE, None, "HH")
        a(f"s_cmp_lg_u32 s{sT0}, 0")
        a(f"s_cbranch_scc1 L_vH")
        a.label("L_vHL")
        vpair(d, dE, "HL")
        a(f"s_cmp_eq_u32 s{sT0}, 0")
        a(f"s_cbranch_scc1 L_vL")
        a(f"s_branch L_vLH")
        a.label("L_vend_H")
        vgroup(vS0, vS1, dE); adv()
        vgroup(vS1, vS0, dE); adv()
        a("s_branch L_vend_J")
    else:
        a.label("L_vL")
        vpair(d, None, "LL")
        a(f"s_branch L_vL")
    a.label("L_vend_L")
    vgroup(vS0, vS1, dE, d); adv()
    vgroup(vS1, vS0, dE); adv()
    a.label("L_vend_J")
    if GE > 4:
        a.label("L_vloop2")
        for half in range(2):
            vgroup(vS0 if half == 0 else vS1, vS1 if half == 0 else vS0, dE)
            adv()
        a(f"s_cmp_lt_u32 s{sCUR}, {30*32768}")
        a(f"s_cbranch_scc1 L_vloop2")
    vgroup(vS0, vS1, dE)
    a(f"s_mov_b32 s{sCUR}, s{sNXT}")
    a("s_waitcnt lgkmcnt(0)")
    for ii in range(8):
        n = ii + dE
        issued_before = min(ii + dE, 8)
        a(f"s_waitcnt vmcnt({issued_before - 1 - ii})")
        if n < 8:
            vload(n, f"s{sCUR}")
        vconsume(ii, vS1)
    stamp(6)
    a(f"v_mov_b32 v{vT}, 0")
    a.label("L_fr_poll")
    a(f"ds_read_b32 v{vT+1}, v{vT} offset:{L_FR}")
    a(f"s_lshl_b32 s{sT0}, s{sWV}, 2")
    a(f"v_mov_b32 v{vT+2}, s{sT0}")
    a(f"ds_read_b32 v{vT+3}, v{vT+2} offset:{L_F}")
    a("s_waitcnt lgkmcnt(0)")
    a(f"v_cmp_eq_u32 vcc, 0, v{vT+1}")
    a(f"s_cbranch_vccnz L_fr_poll")
    a(f"v_and_b32 v{vT}, 7, v2")
    a(f"v_lshlrev_b32 v{vT}, 1, v{vT}")
    a(f"v_lshl_add_u32 v{vT}, v3, 6, v{vT}")
    a(f"v_lshrrev_b32 v{vT+1}, 3, v2")
    a(f"v_lshl_add_u32 v{vT}, v{vT+1}, 8, v{vT}")
    a(f"s_lshl_b32 s{sT0}, s{sWV}, 9")
    a(f"v_add_u32 v{vT}, s{sT0}, v{vT}")
    a(f"s_mov_b32 s{sT0+2}, 0xff00ff00"); a(f"s_mov_b32 s{sT0+3}, 0xff00ff00")
    for r in range(4):
        a(f"v_add_f32 v{vD+r}, v{vD+r}, v{vD2+r}")
    a("s_nop 1")
    for r in range(4):
        a(f"v_add_f32_dpp v{vD+r}, v{vD+r}, v{vD+r} row_ror:8 row_mask:0xf bank_mask:0xf")
    for r in range(4):
        a(f"v_mul_f32 v{vD+r}, v{vD+r}, v{vT+3}")
    for r in range(4):
        H, hf_, lo = vD2, vD2+1, vD2+2
        a(f"v_cvt_pk_bf16_f32 v{H}, v{vD+r}, v{vD+r}")
        a(f"v_and_b32 v{hf_}, 0xffff0000, v{H}")
        a(f"v_sub_f32 v{lo}, v{vD+r}, v{hf_}")
        a(f"v_cvt_pk_bf16_f32 v{lo}, v{lo}, v{lo}")
        a(f"v_cndmask_b32 v{lo}, v{H}, v{lo}, {sr(sT0+2)}")
        a(f"ds_write_b16 v{vT}, v{lo} offset:{L_OA + r*16}")
    a("s_waitcnt lgkmcnt(0)")
    a("s_barrier")
    stamp(7)
    dump_stamps(8, vT)
    a("s_endpgm")

    a.label("L_helper")
    hSEL = 4
    hB = 8
    hD = 12
    hP = 16
    hT = 48
    hVO = 96
    hDA = 98
    hG = 100
    hW = 128
    a(f"s_sub_u32 s{sHW}, s{sWV}, 4")
    a(f"v_lshlrev_b32 v{hT}, 4, v0")
    a(f"s_lshl_b32 s{sT0}, s{sB}, 10")
    a(f"s_mov_b32 s{SRD_W+2}, 0x400000"); a(f"s_mov_b32 s{SRD_W+3}, 0x00020000")
    a(f"v_lshlrev_b32 v{hVO}, 18, v3")
    a(f"v_lshl_add_u32 v{hVO}, v2, 4, v{hVO}")
    if p.wmap == 0:
        a(f"s_lshr_b32 s{sK8}, s2, 5")
    elif p.wmap == 5:
        a(f"s_lshl_b32 s{sK8}, s{sC}, 1")
    elif p.wmap == 3:
        a(f"s_lshl_b32 s{sK8}, s{sB}, 2")
        a(f"s_add_u32 s{sK8}, s{sK8}, s{sC}")
    else:
        a(f"s_lshl_b32 s{sK8}, s{sB}, 2")
        a(f"s_and_b32 s{sT0+1}, s{sC}, 1")
        a(f"s_lshl_b32 s{sT0+1}, s{sT0+1}, 1")
        a(f"s_add_u32 s{sK8}, s{sK8}, s{sT0+1}")
        a(f"s_lshr_b32 s{sT0+1}, s{sC}, 1")
        a(f"s_add_u32 s{sK8}, s{sK8}, s{sT0+1}")
    a("s_waitcnt lgkmcnt(0)")
    stamp(1, "S")
    a(f"s_add_u32 s{sT0+2}, s{sX}, s{sT0}")
    a(f"s_addc_u32 s{sT0+3}, s{sX+1}, 0")
    a(f"global_load_dwordx4 {vr(hT+4)}, v{hT}, {sr(sT0+2)}")
    a(f"s_mov_b32 s{SRD_W}, s{sWQ}"); a(f"s_mov_b32 s{SRD_W+1}, s{sWQ+1}")
    a(f"s_lshl_b32 s{sT0}, s{sHW}, 20")
    a(f"s_lshl_b32 s{sT0+1}, s{sH}, 8")
    a(f"s_add_u32 s{sT0}, s{sT0}, s{sT0+1}")

    def gemv_step(W, Pk, first, D=hD):
        for r in range(4):
            a(f"v_perm_b32 v{hB+r}, v{Pk}, v{Pk}, v{hSEL+r}")
        a("s_nop 1")
        a(f"v_mfma_f32_16x16x32_bf16 {vr(D)}, {vr(W)}, {vr(hB)}, {'0' if first else vr(D)}")

    X, S, Q = hT + 8, hT + 16, hT + 24
    sR = sT0 + 4
    chunks = []
    def chunk(f): chunks.append(f)
    def c_sel():
        emit_selectors(a, hSEL, hT+8)
    def c_clear():
        a(f"s_cmp_lg_u32 s{sHW}, 0")
        a(f"s_cbranch_scc1 L_h_noclr")
        for r in range(4): a(f"v_mov_b32 v{hT+8+r}, 0")
        a(f"ds_write_b128 v{hT}, {vr(hT+8)} offset:{L_Z}")
        a(f"ds_write_b128 v{hT}, {vr(hT+8)} offset:{L_Z+1024}")
        a.label("L_h_noclr")
        a(f"v_and_b32 v{hDA}, 7, v2")
        a(f"v_lshlrev_b32 v{hDA}, 2, v{hDA}")
        a(f"v_lshl_add_u32 v{hDA}, v3, 7, v{hDA}")
    def c_ln1():
        for r in range(4):
            a(f"v_lshlrev_b32 v{X+2*r}, 16, v{hT+4+r}")
            a(f"v_and_b32 v{X+2*r+1}, 0xffff0000, v{hT+4+r}")
        a(f"v_add_f32 v{S}, v{X}, v{X+1}")
        for e in range(2, 8):
            a(f"v_add_f32 v{S}, v{S}, v{X+e}")
    def c_ln2():
        wave_allreduce_add(a, S, sR)
    def c_ln3():
        a(f"v_mul_f32 v{S}, {f32bits(1.0/512):#x}, v{S}")
        for e in range(8):
            a(f"v_sub_f32 v{X+e}, v{X+e}, v{S}")
        a(f"v_mul_f32 v{S+1}, v{X}, v{X}")
        for e in range(1, 8):
            a(f"v_fmac_f32 v{S+1}, v{X+e}, v{X+e}")
    def c_ln4():
        wave_allreduce_add(a, S + 1, sR)
    def c_ln5():
        a(f"v_mov_b32 v{S+2}, {f32bits(1e-5):#x}")
        a(f"v_fmac_f32 v{S+2}, {f32bits(1.0/512):#x}, v{S+1}")
        a(f"v_sqrt_f32 v{S+2}, v{S+2}")
        a("s_nop 0")
        a(f"v_rcp_f32 v{S+2}, v{S+2}")
        a("s_nop 0")
        for e in range(8):
            a(f"v_mul_f32 v{X+e}, v{X+e}, v{S+2}")
    def c_ln6(lo, hi):
        def f():
            for e in range(lo, hi):
                a(f"v_cvt_pk_bf16_f32 v{S+3}, v{X+e}, v{X+e}")
                a(f"v_and_b32 v{S+3}, 0xffff0000, v{S+3}")
                a(f"v_sub_f32 v{S+4}, v{X+e}, v{S+3}")
                a(f"v_cvt_pk_bf16_f32 v{Q+e}, v{S+3}, v{S+4}")
        return f
    def c_ln7():
        a(f"s_lshl_b32 s{sR}, s{sHW}, 11")
        a(f"v_lshlrev_b32 v{hT+1}, 5, v0")
        a(f"v_add_u32 v{hT+1}, s{sR}, v{hT+1}")
        a(f"ds_write_b128 v{hT+1}, {vr(Q)} offset:{L_XP}")
        a(f"ds_write_b128 v{hT+1}, {vr(Q+4)} offset:{L_XP+16}")
        a(f"s_mul_i32 s{sR}, s{sHW}, {2048+512}")
        a(f"v_lshlrev_b32 v{hT+1}, 7, v3")
        a(f"v_add_u32 v{hT+1}, s{sR}, v{hT+1}")
    def c_ln8():
        a("s_waitcnt lgkmcnt(0)")
        for i in range(8):
            a(f"s_add_u32 s{sR}, s{sK8}, {i}")
            a(f"s_and_b32 s{sR}, s{sR}, 7")
            a(f"s_lshl_b32 s{sR}, s{sR}, 4")
            a(f"v_add_u32 v{hT+2}, s{sR}, v{hT+1}")
            a(f"ds_read_b128 {vr(hP+4*i)}, v{hT+2} offset:{L_XP}")
    def c_ln9():
        a("s_waitcnt lgkmcnt(0)")
        stamp(4, "S")
    pre = [c_sel, c_clear]
    post = [c_ln1, c_ln2, c_ln3, c_ln4, c_ln5, c_ln6(0, 4), c_ln6(4, 8), c_ln7, c_ln8, c_ln9]
    dQ = p.dQ
    next_gemv = 0
    for n in range(32):
        i, r = n >> 2, n & 3
        if n >= dQ:
            a(f"s_waitcnt vmcnt({dQ-1})")
            if n == dQ: stamp(3, "S")
        if r == 0:
            a(f"s_add_u32 s{sT0+1}, s{sK8}, {i}")
            a(f"s_and_b32 s{sT0+1}, s{sT0+1}, 7")
            a(f"s_lshl_b32 s{sT0+1}, s{sT0+1}, 15")
            a(f"s_add_u32 s{sT0+1}, s{sT0+1}, s{sT0}")
        else:
            a(f"s_add_u32 s{sT0+1}, s{sT0+1}, 8192")
        a(f"buffer_load_dwordx4 {vr(hW+4*n)}, v{hVO}, {sr(SRD_W,4)}, s{sT0+1} offen {p.wflags}")
        if pre:
            pre.pop(0)()
        elif n >= dQ and post:
            post.pop(0)()
        elif n >= dQ:
            landed = n - dQ
            k = 0
            while next_gemv <= landed and k < 3:
                gemv_step(hW+4*next_gemv, hP+next_gemv, next_gemv == 0); next_gemv += 1; k += 1
    stamp(2, "S")
    assert not post
    while next_gemv < 32:
        a(f"s_waitcnt vmcnt({31-next_gemv})")
        gemv_step(hW+4*next_gemv, hP+next_gemv, next_gemv == 0); next_gemv += 1
    stamp(6, "S")
    a(f"s_lshl_b32 s{sT0}, s{sHW}, 9")
    a(f"v_add_u32 v{hT}, s{sT0}, v{hDA}")
    a("s_nop 7")
    for r in range(4):
        a(f"v_add_f32_dpp v{hD+r}, v{hD+r}, v{hD+r} row_ror:8 row_mask:0xf bank_mask:0xf")
    for r in range(4):
        a(f"ds_write_b32 v{hT}, v{hD+r} offset:{L_QP + r*32}")
    a("s_waitcnt lgkmcnt(0)")
    stamp(2); stamp(7, "S")
    a("s_barrier")

    def paced_gemv(stride, first, D, dF, cnt=32, Wb=None):
        Wb = hW if Wb is None else Wb
        def ld(n):
            a(f"buffer_load_dwordx4 {vr(Wb+4*n)}, v{hVO}, {sr(SRD_W,4)}, s{sT0} offen {p.wflags}")
            a(f"s_add_u32 s{sT0}, s{sT0}, {stride}")
        for n in range(min(dF, cnt)): ld(n)
        a("s_waitcnt lgkmcnt(0)")
        for n in range(cnt):
            a(f"s_waitcnt vmcnt({min(dF-1, cnt-1-n)})")
            if n + dF < cnt: ld(n + dF)
            gemv_step(Wb+4*n, hP+n, first and n == 0, D)

    a(f"s_cmp_lg_u32 s{sHW}, 1")
    a(f"s_cbranch_scc1 L_h_noinit")
    a(f"s_cmp_lg_u32 s2, 0")
    a(f"s_cbranch_scc1 L_h_noinit")
    for r in range(4):
        a(f"v_mov_b32 v{hT+4+r}, 0")
    a(f"v_lshlrev_b32 v{hT}, 4, v0")
    assert ZERO_BYTES % 2048 == 0
    a(f"s_mov_b32 s{sT0}, {ZERO_BYTES // 2048}")
    a.label("L_zero")
    a(f"global_store_dwordx4 v{hT}, {vr(hT+4)}, {sr(sWS)} sc0 sc1")
    a(f"global_store_dwordx4 v{hT}, {vr(hT+4)}, {sr(sWS)} offset:1024 sc0 sc1")
    a(f"v_add_u32 v{hT}, 2048, v{hT}")
    a(f"s_sub_u32 s{sT0}, s{sT0}, 1")
    a(f"s_cmp_lg_u32 s{sT0}, 0")
    a(f"s_cbranch_scc1 L_zero")
    a("s_waitcnt vmcnt(0)")
    a(f"v_lshlrev_b32 v{hT}, 2, v0")
    a(f"v_add_u32 v{hT}, 32, v{hT}")
    a(f"v_mov_b32 v{hT+1}, 8")
    a(f"v_mov_b32 v{hT+2}, 1")
    a(f"v_cmp_lt_u32 vcc, 7, v0")
    a("s_nop 1")
    a(f"v_cndmask_b32 v{hT+1}, v{hT+1}, v{hT+2}, vcc")
    a(f"s_mov_b64 exec, 0x1ff")
    a(f"global_atomic_add v{hT}, v{hT+1}, {sr(sDBG)}")
    a(f"s_mov_b64 exec, -1")
    a.label("L_h_noinit")

    if p.noffn: a("s_branch L_h_noffn")
    a(f"s_cmp_ge_u32 s{sH}, 14")
    a(f"s_cbranch_scc1 L_h_noffn")
    a(f"v_mul_u32_u24 v{hVO}, {8*3584}, v3")
    a(f"v_lshl_add_u32 v{hVO}, v2, 4, v{hVO}")
    a(f"s_lshl_b32 s{sT0+8}, s{sC}, 2")
    a(f"s_add_u32 s{sT0+8}, s{sT0+8}, s{sHW}")
    a(f"s_lshl_b32 s{sT0}, s{sHW}, 11")
    a(f"s_lshl_b32 s{sT0+1}, s{sT0+8}, 7")
    a(f"s_add_u32 s{sT0}, s{sT0}, s{sT0+1}")
    a(f"v_lshlrev_b32 v{hT+1}, 5, v3")
    a(f"v_add_u32 v{hT+1}, s{sT0}, v{hT+1}")
    for i in range(2):
        a(f"ds_read_b128 {vr(hP+4*i)}, v{hT+1} offset:{L_XP+16*i}")
    for mat, (sP, Lacc) in enumerate([(sW1, L_GA), (sW3, L_UA)]):
        a(f"s_mov_b32 s{SRD_W}, s{sP}"); a(f"s_mov_b32 s{SRD_W+1}, s{sP+1}")
        a(f"s_mov_b32 s{SRD_W+2}, {512*3584}")
        a(f"s_mul_i32 s{sT0}, s{sT0+8}, {32*3584}")
        a(f"s_lshl_b32 s{sT0+1}, s{sH}, 8")
        a(f"s_add_u32 s{sT0}, s{sT0}, s{sT0+1}")
        paced_gemv(3584, True, hD, p.dF, 8)
        a("s_nop 7")
        for r in range(4):
            a(f"v_add_f32_dpp v{hD+r}, v{hD+r}, v{hD+r} row_ror:8 row_mask:0xf bank_mask:0xf")
        a(f"s_mov_b32 s{sT0+6}, 0x00ff00ff"); a(f"s_mov_b32 s{sT0+7}, 0x00ff00ff")
        a(f"s_mov_b64 exec, {sr(sT0+6)}")
        for r in range(4):
            a(f"ds_add_f32 v{hDA}, v{hD+r} offset:{Lacc + r*32}")
        a(f"s_mov_b64 exec, -1")
    a("s_waitcnt lgkmcnt(0)")
    a(f"v_mov_b32 v{hT}, 0")
    a(f"v_mov_b32 v{hT+1}, 1")
    a(f"s_mov_b64 exec, 1")
    a(f"ds_add_u32 v{hT}, v{hT+1} offset:{L_FC}")
    a(f"s_mov_b64 exec, -1")
    a.label("L_ffn_sync")
    a("s_sleep 4")
    a(f"ds_read_b32 v{hT+1}, v{hT} offset:{L_FC}")
    a("s_waitcnt lgkmcnt(0)")
    a(f"v_cmp_ne_u32 vcc, 4, v{hT+1}")
    a(f"s_cbranch_vccnz L_ffn_sync")
    a(f"s_lshl_b32 s{sT0}, s{sHW}, 8")
    a(f"v_lshlrev_b32 v{hT+2}, 2, v0")
    a(f"v_add_u32 v{hT+2}, s{sT0}, v{hT+2}")
    a(f"ds_read_b32 v{hT+3}, v{hT+2} offset:{L_GA}")
    a(f"s_mul_i32 s{sT0+9}, s{sB}, 14")
    a(f"s_add_u32 s{sT0+9}, s{sT0+9}, s{sH}")
    a(f"s_lshl_b32 s{sT0+1}, s{sT0+9}, 12")
    a(f"s_add_u32 s{sT0+1}, s{sT0+1}, {W_FF}")
    a(f"s_lshl_b32 s{sT0+2}, s{sC}, 10")
    a(f"s_add_u32 s{sT0+2}, s{sT0+2}, s{sT0+1}")
    a(f"v_add_u32 v{hT+2}, s{sT0+2}, v{hT+2}")
    a("s_waitcnt lgkmcnt(0)")
    a(f"global_store_dword v{hT+2}, v{hT+3}, {sr(sWS)} sc0 sc1")
    a(f"v_mov_b32 v{hT+4}, 0")
    a(f"v_mov_b32 v{hT+1}, 1")
    a("s_waitcnt vmcnt(0)")
    a(f"s_mov_b64 exec, 1")
    a(f"ds_add_u32 v{hT+4}, v{hT+1} offset:{L_FS}")
    a(f"s_mov_b64 exec, -1")
    a(f"s_cmp_lg_u32 s{sHW}, 0")
    a(f"s_cbranch_scc1 L_ffn_wait")
    a.label("L_ffn_st")
    a("s_sleep 4")
    a(f"ds_read_b32 v{hT+1}, v{hT+4} offset:{L_FS}")
    a("s_waitcnt lgkmcnt(0)")
    a(f"v_cmp_ne_u32 vcc, 4, v{hT+1}")
    a(f"s_cbranch_vccnz L_ffn_st")
    a(f"s_branch L_ffn_z1")
    a.label("L_ffn_z")
    a("s_sleep 64")
    a.label("L_ffn_z1")
    a(f"global_load_dword v{hT+1}, v{hT+4}, {sr(sDBG)} offset:64 sc0 sc1")
    a("s_waitcnt vmcnt(0)")
    a(f"v_cmp_eq_u32 vcc, 0, v{hT+1}")
    a(f"s_cbranch_vccnz L_ffn_z")
    a(f"s_lshl_b32 s{sT0+2}, s{sT0+9}, 6")
    a(f"s_add_u32 s{sT0+2}, s{sT0+2}, {W_FFC}")
    a(f"v_mov_b32 v{hT}, s{sT0+2}")
    a(f"v_mov_b32 v{hT+1}, 1")
    a(f"s_mov_b64 exec, 1")
    a(f"global_atomic_add v{hT}, v{hT+1}, {sr(sWS)}")
    a(f"s_mov_b64 exec, -1")
    a.label("L_ffn_poll")
    a(f"s_sleep {p.fsleep}")
    a(f"global_load_dword v{hT+1}, v{hT}, {sr(sWS)} sc0 sc1")
    a("s_waitcnt vmcnt(0)")
    a(f"v_cmp_ne_u32 vcc, 4, v{hT+1}")
    a(f"s_cbranch_vccnz L_ffn_poll")
    a(f"v_mov_b32 v{hT+1}, 1")
    a(f"ds_write_b32 v{hT+4}, v{hT+1} offset:{L_FG}")
    a.label("L_ffn_wait")
    a("s_sleep 8")
    a(f"ds_read_b32 v{hT+1}, v{hT+4} offset:{L_FG}")
    a("s_waitcnt lgkmcnt(0)")
    a(f"v_cmp_eq_u32 vcc, 0, v{hT+1}")
    a(f"s_cbranch_vccnz L_ffn_wait")
    a(f"s_lshl_b32 s{sT0}, s{sHW}, 7")
    a(f"s_add_u32 s{sT0}, s{sT0}, s{sT0+1}")
    a(f"v_lshlrev_b32 v{hT+2}, 5, v3")
    a(f"v_add_u32 v{hT+2}, s{sT0}, v{hT+2}")
    U = hT + 8
    for cc in range(4):
        G_ = hP if cc == 0 else hP + 8
        U_ = U if cc == 0 else U + 8
        for i in range(2):
            a(f"global_load_dwordx4 {vr(G_+4*i)}, v{hT+2}, {sr(sWS)} offset:{cc*1024+16*i} sc0 sc1")
            a(f"global_load_dwordx4 {vr(U_+4*i)}, v{hT+2}, {sr(sWS)} offset:{cc*1024+512+16*i} sc0 sc1")
        if cc > 0:
            a("s_waitcnt vmcnt(0)")
            for e in range(8):
                a(f"v_add_f32 v{hP+e}, v{hP+e}, v{hP+8+e}")
                a(f"v_add_f32 v{U+e}, v{U+e}, v{U+8+e}")
    a(f"s_mov_b32 s{sT0}, {f32bits(-math.log2(math.e)):#x}")
    a("s_waitcnt vmcnt(0)")
    for n in range(8):
        g_, u_ = hP + n, U + n
        a(f"v_mul_f32 v{hT}, s{sT0}, v{g_}")
        a(f"v_exp_f32 v{hT}, v{hT}")
        a("s_nop 0")
        a(f"v_add_f32 v{hT}, 1.0, v{hT}")
        a(f"v_rcp_f32 v{hT}, v{hT}")
        a("s_nop 0")
        a(f"v_mul_f32 v{hT}, v{hT}, v{g_}")
        a(f"v_mul_f32 v{hT}, v{hT}, v{u_}")
        a(f"v_cvt_pk_bf16_f32 v{hT+1}, v{hT}, v{hT}")
        a(f"v_and_b32 v{hT+1}, 0xffff0000, v{hT+1}")
        a(f"v_sub_f32 v{hT+2}, v{hT}, v{hT+1}")
        a(f"v_cvt_pk_bf16_f32 v{g_}, v{hT+1}, v{hT+2}")
    a(f"s_mov_b32 s{SRD_W}, s{sW2}"); a(f"s_mov_b32 s{SRD_W+1}, s{sW2+1}")
    a(f"s_mov_b32 s{SRD_W+2}, {1792*1024}")
    a(f"v_lshlrev_b32 v{hVO}, 13, v3")
    a(f"v_lshl_add_u32 v{hVO}, v2, 4, v{hVO}")
    a(f"s_lshl_b32 s{sT0}, s{sH}, 17")
    a(f"s_lshl_b32 s{sT0+2}, s{sHW}, 15")
    a(f"s_add_u32 s{sT0}, s{sT0}, s{sT0+2}")
    a(f"s_lshl_b32 s{sT0+2}, s{sC}, 8")
    a(f"s_add_u32 s{sT0}, s{sT0}, s{sT0+2}")
    paced_gemv(1024, True, hD, p.dF, 8)
    a("s_nop 7")
    for r in range(4):
        a(f"v_add_f32_dpp v{hD+r}, v{hD+r}, v{hD+r} row_ror:8 row_mask:0xf bank_mask:0xf")
    emit_y_addr(a, hT+4, hDA, sT0+4, sB, sC)
    emit_atomic_y(a, hD, hT+4, sWS, sT0+6)
    a.label("L_h_noffn")
    stamp(3)

    a(f"s_lshl_b32 s{sT0}, s{sHW}, 2")
    a(f"v_mov_b32 v{hT}, s{sT0}")
    a.label("L_pb_poll")
    a("s_sleep 16")
    a(f"ds_read_b32 v{hT+1}, v{hT} offset:{L_PB}")
    a("s_waitcnt lgkmcnt(0)")
    a(f"v_cmp_eq_u32 vcc, 0, v{hT+1}")
    a(f"s_cbranch_vccnz L_pb_poll")
    a(f"s_mov_b32 s{SRD_W}, s{sWO}"); a(f"s_mov_b32 s{SRD_W+1}, s{sWO+1}")
    a(f"s_mov_b32 s{SRD_W+2}, 0x400000")
    a(f"v_lshlrev_b32 v{hVO}, 10, v3")
    a(f"v_lshl_add_u32 v{hVO}, v2, 4, v{hVO}")
    a(f"s_lshl_b32 s{sT0}, s{sH}, 17")
    a(f"s_lshl_b32 s{sT0+2}, s{sHW}, 8")
    a(f"s_add_u32 s{sT0}, s{sT0}, s{sT0+2}")
    a(f"s_lshl_b32 s{sT0+3}, s{sHW}, 15")
    a(f"s_add_u32 s{sT0+3}, s{sT0+3}, {L_KB}")
    for n in range(0 if p.nowo else 32):
        if n >= p.dW:
            a(f"s_waitcnt vmcnt({p.dW-1})")
        a(f"s_add_u32 m0, s{sT0+3}, {n*1024}")
        a("s_nop 0")
        a(f"buffer_load_dwordx4 v{hVO}, {sr(SRD_W,4)}, s{sT0} offen {p.wflags} lds")
        a(f"s_add_u32 s{sT0}, s{sT0}, 4096")
    a(f"v_lshrrev_b32 v{hT}, 2, v2")
    a(f"v_lshlrev_b32 v{hT}, 8, v{hT}")
    a(f"v_and_b32 v{hT+1}, 3, v2")
    a(f"v_lshl_add_u32 v{hT}, v{hT+1}, 3, v{hT}")
    a(f"v_lshl_add_u32 v{hT}, v3, 11, v{hT}")
    a(f"v_add_u32 v{hT}, s{sT0+3}, v{hT}")
    a("s_waitcnt vmcnt(0)")
    for ct in range(8):
        for ks in range(4):
            for hf in range(2):
                a(f"ds_read_b64_tr_b16 v[{hW + (ct*4+ks)*4 + 2*hf}:{hW + (ct*4+ks)*4 + 2*hf + 1}], v{hT} offset:{(32*ks + 4*hf)*256 + ct*32}")
        a("s_waitcnt lgkmcnt(0)")
    stamp(4)

    if p.ctl:
        a(f"s_cmp_lg_u32 s{sHW}, 2")
        a(f"s_cbranch_scc1 L_h_noctl")
        emit_wait_flag(a, "ctl", sDBG, hT)
        a(f"s_lshl_b32 s{sT0}, s2, 2")
        a(f"s_add_u32 s{sT0}, s{sT0}, {W_PR}")
        a(f"v_mov_b32 v{hT+2}, s{sT0}")
        a(f"s_and_b32 s{sT0+1}, s{sT0}, 0xffffffe0")
        a(f"v_and_b32 v{hT+3}, 7, v0")
        a(f"v_lshlrev_b32 v{hT+3}, 2, v{hT+3}")
        a(f"v_add_u32 v{hT+3}, s{sT0+1}, v{hT+3}")
        a(f"v_mov_b32 v{hT}, 0")
        a.label("L_ctl_loop")
        a(f"s_sleep {p.csleep}")
        a(f"ds_read_b32 v{hT+4}, v{hT} offset:{L_VP}")
        a("s_waitcnt lgkmcnt(0)")
        a(f"v_add_u32 v{hT+5}, 1, v{hT+4}")
        a(f"s_mov_b64 exec, 1")
        a(f"global_store_dword v{hT+2}, v{hT+5}, {sr(sWS)} sc0 sc1")
        a(f"s_mov_b64 exec, -1")
        a(f"global_load_dword v{hT+6}, v{hT+3}, {sr(sWS)} sc0 sc1")
        a("s_waitcnt vmcnt(0)")
        a(f"v_cmp_ne_u32 vcc, 0, v{hT+6}")
        a(f"v_mov_b32 v{hT+7}, 0")
        a(f"v_add_u32 v{hT+8}, {p.cdelta}, v{hT+5}")
        a(f"v_cndmask_b32 v{hT+7}, v{hT+7}, v{hT+8}, vcc")
        a(f"v_sub_u32 v{hT+6}, v{hT+6}, v{hT+7}")
        for ctrl in ("quad_perm:[1,0,3,2]", "quad_perm:[2,3,0,1]", "row_half_mirror"):
            a("s_nop 1")
            a(f"v_add_u32_dpp v{hT+6}, v{hT+6}, v{hT+6} {ctrl} row_mask:0xf bank_mask:0xf")
        a(f"v_cmp_lt_i32 vcc, 0, v{hT+6}")
        a(f"v_mov_b32 v{hT+7}, 0")
        a("s_nop 0")
        a(f"v_cndmask_b32 v{hT+7}, v{hT+7}, 1, vcc")
        a(f"ds_write_b32 v{hT}, v{hT+7} offset:{L_MD}")
        a(f"v_cmp_gt_u32 vcc, {32 - p.GE}, v{hT+4}")
        a(f"s_cbranch_vccnz L_ctl_loop")
        a.label("L_h_noctl")

    if p.noml: a("s_branch L_h_noml")
    a(f"s_cmp_lg_u32 s{sHW}, 0")
    a(f"s_cbranch_scc1 L_h_noml")
    a(f"v_mov_b32 v{hT}, 0")
    a.label("L_ml_poll")
    a("s_sleep 16")
    a(f"ds_read_b128 {vr(hT+4)}, v{hT} offset:{L_KF}")
    a("s_waitcnt lgkmcnt(0)")
    a(f"v_and_b32 v{hT+4}, v{hT+4}, v{hT+5}")
    a(f"v_and_b32 v{hT+6}, v{hT+6}, v{hT+7}")
    a(f"v_and_b32 v{hT+4}, v{hT+4}, v{hT+6}")
    a(f"v_cmp_eq_u32 vcc, 1, v{hT+4}")
    a(f"s_cbranch_vccz L_ml_poll")
    a(f"ds_read_b128 {vr(hT+4)}, v{hT} offset:{L_ML}")
    a(f"ds_read_b128 {vr(hT+8)}, v{hT} offset:{L_ML+16}")
    a("s_waitcnt lgkmcnt(0)")
    m = [hT+4, hT+6, hT+8, hT+10]; l = [hT+5, hT+7, hT+9, hT+11]
    MC, LC = hT+12, hT+13
    a(f"v_max_f32 v{MC}, v{m[0]}, v{m[1]}")
    a(f"v_max3_f32 v{MC}, v{MC}, v{m[2]}, v{m[3]}")
    for k in range(4):
        a(f"v_sub_f32 v{hT+16+k}, v{m[k]}, v{MC}")
    for k in range(4):
        a(f"v_exp_f32 v{hT+16+k}, v{hT+16+k}")
    a("s_nop 0")
    a(f"v_mul_f32 v{LC}, v{l[0]}, v{hT+16}")
    for k in range(1, 4):
        a(f"v_fmac_f32 v{LC}, v{l[k]}, v{hT+16+k}")
    a(f"s_lshl_b32 s{sT0}, s{sBH}, 5")
    a(f"s_lshl_b32 s{sT0+1}, s{sC}, 3")
    a(f"s_add_u32 s{sT0+1}, s{sT0+1}, s{sT0}")
    a(f"s_add_u32 s{sT0+1}, s{sT0+1}, {W_ML}")
    a(f"v_mov_b32 v{hT+20}, s{sT0+1}")
    a(f"s_lshr_b32 s{sT0+2}, s{sBH}, 3")
    a(f"s_lshl_b32 s{sT0+2}, s{sT0+2}, 2")
    a(f"s_add_u32 s{sT0+2}, s{sT0+2}, 32")
    a(f"s_and_b32 s{sT0+3}, s{sBH}, 7")
    a(f"s_lshl_b32 s{sT0+3}, s{sT0+3}, 2")
    a(f"s_lshl_b32 s{sT0+4}, 1, s{sT0+3}")
    a(f"v_mov_b32 v{hT+21}, s{sT0+2}")
    a(f"v_mov_b32 v{hT+22}, s{sT0+4}")
    a(f"s_mov_b64 exec, 1")
    a(f"global_store_dwordx2 v{hT+20}, v[{MC}:{LC}], {sr(sWS)} sc0 sc1")
    a("s_waitcnt vmcnt(0)")
    a(f"global_atomic_add v{hT+21}, v{hT+22}, {sr(sDBG)}")
    a(f"s_mov_b64 exec, -1")
    a.label("L_vp_poll")
    a("s_sleep 32")
    a(f"ds_read_b32 v{hT+23}, v{hT} offset:{L_VP}")
    a("s_waitcnt lgkmcnt(0)")
    a(f"v_cmp_gt_u32 vcc, {p.vsig}, v{hT+23}")
    a(f"s_cbranch_vccnz L_vp_poll")
    a.label("L_grp_poll")
    a(f"global_load_dword v{hT+23}, v{hT+21}, {sr(sDBG)} sc0 sc1")
    a("s_waitcnt vmcnt(0)")
    a(f"v_lshrrev_b32 v{hT+25}, s{sT0+3}, v{hT+23}")
    a(f"v_and_b32 v{hT+25}, 7, v{hT+25}")
    a(f"v_and_b32 v{hT+23}, 8, v{hT+23}")
    a(f"v_or_b32 v{hT+23}, v{hT+23}, v{hT+25}")
    a(f"v_cmp_eq_u32 vcc, 12, v{hT+23}")
    a(f"s_cbranch_vccnz L_grp_done")
    a("s_sleep 64")
    a("s_branch L_grp_poll")
    a.label("L_grp_done")
    a(f"v_and_b32 v{hT+24}, 3, v0")
    a(f"v_lshlrev_b32 v{hT+24}, 3, v{hT+24}")
    a(f"s_add_u32 s{sT0}, s{sT0}, {W_ML}")
    a(f"v_add_u32 v{hT+24}, s{sT0}, v{hT+24}")
    a(f"global_load_dwordx2 v[{hT+26}:{hT+27}], v{hT+24}, {sr(sWS)} sc0 sc1")
    a("s_waitcnt vmcnt(0)")
    GM, GL = hT+28, hT+29
    a(f"v_max_f32_dpp v{GM}, v{hT+26}, v{hT+26} quad_perm:[1,0,3,2] row_mask:0xf bank_mask:0xf")
    a("s_nop 1")
    a(f"v_max_f32_dpp v{GM}, v{GM}, v{GM} quad_perm:[2,3,0,1] row_mask:0xf bank_mask:0xf")
    a("s_nop 1")
    a(f"v_sub_f32 v{GL}, v{hT+26}, v{GM}")
    a(f"v_exp_f32 v{GL}, v{GL}")
    a("s_nop 0")
    a(f"v_mul_f32 v{GL}, v{GL}, v{hT+27}")
    a("s_nop 1")
    a(f"v_add_f32_dpp v{GL}, v{GL}, v{GL} quad_perm:[1,0,3,2] row_mask:0xf bank_mask:0xf")
    a("s_nop 1")
    a(f"v_add_f32_dpp v{GL}, v{GL}, v{GL} quad_perm:[2,3,0,1] row_mask:0xf bank_mask:0xf")
    a("s_nop 1")
    a(f"v_rcp_f32 v{GL}, v{GL}")
    for k in range(4):
        a(f"v_sub_f32 v{hT+16+k}, v{m[k]}, v{GM}")
    for k in range(4):
        a(f"v_exp_f32 v{hT+16+k}, v{hT+16+k}")
    a("s_nop 0")
    for k in range(4):
        a(f"v_mul_f32 v{hT+16+k}, v{hT+16+k}, v{GL}")
    a(f"ds_write_b128 v{hT}, {vr(hT+16)} offset:{L_F}")
    a(f"v_mov_b32 v{hT+30}, 1")
    a("s_waitcnt lgkmcnt(0)")
    a(f"ds_write_b32 v{hT}, v{hT+30} offset:{L_FR}")
    a.label("L_h_noml")
    a(f"s_and_b32 s{sT0+4}, s2, {NREP-1}")
    a(f"s_lshl_b32 s{sT0+4}, s{sT0+4}, 12")
    a(f"s_lshl_b32 s{sT0+5}, s{sB}, 11")
    a(f"s_add_u32 s{sT0+4}, s{sT0+4}, s{sT0+5}")
    a(f"s_lshl_b32 s{sT0+5}, s{sHW}, 9")
    a(f"s_add_u32 s{sT0+4}, s{sT0+4}, s{sT0+5}")
    a(f"v_lshrrev_b32 v{hT+40}, 1, v3")
    a(f"v_lshlrev_b32 v{hT+40}, 6, v{hT+40}")
    a(f"v_lshl_add_u32 v{hT+40}, v2, 2, v{hT+40}")
    a(f"v_add_u32 v{hT+40}, s{sT0+4}, v{hT+40}")
    a(f"v_and_b32 v{hT+41}, 7, v2")
    a(f"v_lshlrev_b32 v{hT+41}, 8, v{hT+41}")
    a(f"v_lshl_add_u32 v{hT+41}, v3, 4, v{hT+41}")
    a(f"s_mov_b32 s{sT0+6}, 0"); a(f"s_mov_b32 s{sT0+7}, -1")
    a(f"v_mov_b32 v{hT+42}, 0")
    a("s_waitcnt vmcnt(0) lgkmcnt(0)")
    stamp(5)
    a("s_barrier")
    stamp(6)
    AF = hP
    for ks in range(4):
        a(f"ds_read_b128 {vr(AF+4*ks)}, v{hT+41} offset:{L_OA + ks*64}")
    DD = hT
    for ks in range(4):
        a(f"s_waitcnt lgkmcnt({3-ks})")
        for ct in range(8):
            a(f"v_mfma_f32_16x16x32_bf16 {vr(DD+4*ct)}, {vr(AF+4*ks)}, {vr(hW+(ct*4+ks)*4)}, {'0' if ks == 0 else vr(DD+4*ct)}")
    for ct in range(8):
        if ct == 0: a("s_nop 3")
        a(f"v_add_f32 v{DD+4*ct}, v{DD+4*ct}, v{DD+4*ct+1}")
        a(f"v_add_f32 v{DD+4*ct+2}, v{DD+4*ct+2}, v{DD+4*ct+3}")
    for ct in range(8):
        a(f"v_add_f32 v{DD+4*ct}, v{DD+4*ct}, v{DD+4*ct+2}")
    for pr in range(4):
        a(f"v_cndmask_b32 v{DD+8*pr}, v{DD+8*pr}, v{DD+8*pr+4}, {sr(sT0+6)}")
        a(f"global_atomic_add_f32 v{hT+40}, v{DD+8*pr}, {sr(sWS)} offset:{pr*128}")
    a("s_waitcnt vmcnt(0)")
    stamp(7)
    a("s_barrier")
    a(f"s_cmp_lg_u32 s{sHW}, 0")
    a(f"s_cbranch_scc1 L_h_noarr")
    a(f"s_lshr_b32 s{sT0}, s2, 4")
    a(f"s_lshl_b32 s{sT0}, s{sT0}, 8")
    a(f"s_add_u32 s{sT0}, s{sT0}, {W_CNT}")
    a(f"v_mov_b32 v{hT}, s{sT0}")
    a(f"v_mov_b32 v{hT+1}, 1")
    a(f"s_mov_b64 exec, 1")
    a(f"global_atomic_add v{hT}, v{hT+1}, {sr(sWS)}")
    a(f"s_mov_b64 exec, -1")
    a.label("L_h_noarr")
    a(f"s_cmp_lg_u32 s2, 0")
    a(f"s_cbranch_scc1 L_hend")
    a(f"v_and_b32 v{hT}, {NCNT-1}, v0")
    a(f"v_lshlrev_b32 v{hT}, 8, v{hT}")
    a(f"v_add_u32 v{hT}, {W_CNT}, v{hT}")
    a(f"s_lshl_b32 s{sT0}, s{sHW}, 9")
    a(f"v_lshlrev_b32 v{hT+1}, 3, v0")
    a(f"v_add_u32 v{hT+1}, s{sT0}, v{hT+1}")
    a(f"global_load_dwordx2 v[{hT+4}:{hT+5}], v{hT+1}, {sr(sX)}")
    a(f"v_lshlrev_b32 v{hT+3}, 1, v{hT+1}")
    a.label("L_fin_poll")
    a(f"global_load_dword v{hT+2}, v{hT}, {sr(sWS)} sc0 sc1")
    a("s_waitcnt vmcnt(0)")
    a(f"v_cmp_ne_u32 vcc, {256//NCNT}, v{hT+2}")
    a(f"s_cbranch_vccnz L_fin_poll")
    stamp(8)
    for rep in range(NREP):
        a(f"global_load_dwordx4 {vr(hW + rep*4)}, v{hT+3}, {sr(sWS)} sc0 sc1")
        a(f"v_add_u32 v{hT+3}, 4096, v{hT+3}")
    a(f"v_lshlrev_b32 v{hT+8}, 16, v{hT+4}")
    a(f"v_and_b32 v{hT+9}, 0xffff0000, v{hT+4}")
    a(f"v_lshlrev_b32 v{hT+10}, 16, v{hT+5}")
    a(f"v_and_b32 v{hT+11}, 0xffff0000, v{hT+5}")
    for rep in range(NREP):
        a(f"s_waitcnt vmcnt({NREP-1-rep})")
        for e in range(4):
            a(f"v_add_f32 v{hT+8+e}, v{hT+8+e}, v{hW+rep*4+e}")
    a(f"v_cvt_pk_bf16_f32 v{hT+12}, v{hT+8}, v{hT+9}")
    a(f"v_cvt_pk_bf16_f32 v{hT+13}, v{hT+10}, v{hT+11}")
    a(f"global_store_dwordx2 v{hT+1}, v[{hT+12}:{hT+13}], {sr(sOUT)}")
    a.label("L_hend")
    stamp(9)
    dump_stamps(10, hT)
    a.label("L_end")
    a("s_endpgm")

    kd = f""".section .rodata,"a"
.p2align 6
.amdhsa_kernel {NAME}
  .amdhsa_next_free_vgpr 256
  .amdhsa_next_free_sgpr 102
  .amdhsa_accum_offset 256
  .amdhsa_group_segment_fixed_size 0
  .amdhsa_kernarg_size 96
  .amdhsa_user_sgpr_count 2
  .amdhsa_user_sgpr_kernarg_segment_ptr 1
  .amdhsa_system_sgpr_workgroup_id_x 1
.end_amdhsa_kernel
"""
    txt = HEADER + f"; @launch grid=(256,1,1) block=(512,1,1) lds={lds_bytes(p.NL)}\n"
    txt += f'.amdgcn_target "amdgcn-amd-amdhsa--gfx950"\n.text\n.globl {NAME}\n.p2align 8\n.type {NAME},@function\n'
    txt += a.text() + kd
    return txt

def emit_selectors(a, vSEL, vT):
    a(f"v_lshrrev_b32 v{vT}, 3, v2")
    a(f"v_mul_u32_u24 v{vT}, 0x0202, v{vT}")
    a(f"v_add_u32 v{vT}, 0x0100, v{vT}")
    a(f"v_lshlrev_b32 v{vT+1}, 16, v{vT}")
    a(f"v_or_b32 v{vT+1}, 0x0c0c, v{vT+1}")
    a(f"v_or_b32 v{vT}, 0x0c0c0000, v{vT}")
    a(f"v_and_b32 v{vT+2}, 1, v2")
    a(f"v_cmp_eq_u32 vcc, 1, v{vT+2}")
    a("s_nop 1")
    a(f"v_cndmask_b32 v{vT}, v{vT}, v{vT+1}, vcc")
    a(f"v_bfe_u32 v{vT+2}, v2, 1, 2")
    a(f"v_mov_b32 v{vT+1}, 0x0c0c0c0c")
    for r in range(4):
        a(f"v_cmp_eq_u32 vcc, {r}, v{vT+2}")
        a("s_nop 1")
        a(f"v_cndmask_b32 v{vSEL+r}, v{vT+1}, v{vT}, vcc")

def wave_allreduce_add(a, v, sT):
    a("s_nop 1")
    a(f"v_add_f32_dpp v{v}, v{v}, v{v} quad_perm:[1,0,3,2] row_mask:0xf bank_mask:0xf")
    a("s_nop 1")
    a(f"v_add_f32_dpp v{v}, v{v}, v{v} quad_perm:[2,3,0,1] row_mask:0xf bank_mask:0xf")
    a("s_nop 1")
    a(f"v_add_f32_dpp v{v}, v{v}, v{v} row_half_mirror row_mask:0xf bank_mask:0xf")
    a("s_nop 1")
    a(f"v_add_f32_dpp v{v}, v{v}, v{v} row_mirror row_mask:0xf bank_mask:0xf")
    a("s_nop 1")
    for k in range(4):
        a(f"v_readlane_b32 s{sT+k}, v{v}, {16*k}")
    a("s_nop 1")
    a(f"v_mov_b32 v{v}, s{sT}")
    a(f"v_add_f32 v{v}, s{sT+1}, v{v}")
    a(f"v_add_f32 v{v}, s{sT+2}, v{v}")
    a(f"v_add_f32 v{v}, s{sT+3}, v{v}")

def emit_wait_flag(a, tag, sDBG, vT):
    a(f"v_mov_b32 v{vT}, 0")
    a(f"s_branch L_flag1_{tag}")
    a.label(f"L_flag_{tag}")
    a("s_sleep 48")
    a.label(f"L_flag1_{tag}")
    a(f"global_load_dword v{vT+1}, v{vT}, s[{sDBG}:{sDBG+1}] offset:4 sc0 sc1")
    a("s_waitcnt vmcnt(0)")
    a(f"v_cmp_eq_u32 vcc, 0, v{vT+1}")
    a(f"s_cbranch_vccnz L_flag_{tag}")

def emit_y_addr(a, vaddr, hDA, sT, sB, sHW):
    a(f"s_and_b32 s{sT}, s2, {NREP-1}")
    a(f"s_lshl_b32 s{sT}, s{sT}, 12")
    a(f"s_lshl_b32 s{sT+1}, s{sB}, 11")
    a(f"s_add_u32 s{sT}, s{sT}, s{sT+1}")
    a(f"s_lshl_b32 s{sT+1}, s{sHW}, 9")
    a(f"s_add_u32 s{sT}, s{sT}, s{sT+1}")
    a(f"v_add_u32 v{vaddr}, s{sT}, v{hDA}")

def emit_atomic_y(a, D, vaddr, sWS, sTmp):
    a(f"s_mov_b32 s{sTmp}, 0x00ff00ff"); a(f"s_mov_b32 s{sTmp+1}, 0x00ff00ff")
    a(f"s_mov_b64 exec, s[{sTmp}:{sTmp+1}]")
    for r in range(4):
        a(f"global_atomic_add_f32 v{vaddr}, v{D+r}, s[{sWS}:{sWS+1}] offset:{r*32}")
    a(f"s_mov_b64 exec, -1")

if __name__ == "__main__":
    out = sys.argv[1] if len(sys.argv) > 1 else OUT
    if out == "-": out = OUT
    for kv in sys.argv[2:]:
        k, v = kv.split("=", 1)
        cur = getattr(P, k)
        setattr(P, k, (v == "1") if isinstance(cur, bool) else type(cur)(v))
    open(out, "w").write(gen())
    print("wrote", out)
```

```python
import sys, os, math, struct

NAME = "parallel_sum__mha_block_cached__glu_gated_swiglu__decode_kernel"
OUT = "parallel_sum__mha_block_cached__glu_gated_swiglu__decode.s"

HEADER = """; Kernarg layout for this problem (96 bytes, ptrs only, base s[0:1]):
"""

class P:
    d = 5
    dA = 5
    NR = 48
    NL = 32
    NB = 64
    dQ = 3
    dF = 1
    dW = 3
    kvflags = "nt"
    wflags = ""
    stamps = False
    stampset = 'A'
    noffn = False
    nowo = False
    noml = False
    dE = 7
    fmap = True
    dA0 = 5
    nA0 = 0
    fsleep = 120
    ctl = False
    cdelta = 1
    csleep = 64
    wmap = 3
    GE = 8
    vsig = 22

class Asm:
    def __init__(self):
        self.L = []
    def __call__(self, s):
        self.L.append("    " + s)
    def label(self, s):
        self.L.append(s + ":")
    def c(self, s):
        self.L.append("    ; " + s)
    def text(self):
        return "\n".join(self.L) + "\n"

def vr(b, n=4):
    return f"v[{b}:{b+n-1}]"
def sr(b, n=2):
    return f"s[{b}:{b+n-1}]"
def f32bits(x):
    return struct.unpack("<I", struct.pack("<f", x))[0]

RS = 1040
L_ST = 0
L_XP = 16640
L_QP = L_XP + 8192
L_Z = L_QP + 2048
L_ML = L_Z
L_KF = L_Z + 32
L_F = L_Z + 64
L_VP = L_Z + 80
L_FC = L_Z + 96
L_FR = L_Z + 100
L_FI = L_Z + 104
L_PB = L_Z + 112
L_FG = L_Z + 132
L_FS = L_Z + 136
L_MD = L_Z + 128
L_GA = L_Z + 512
L_UA = L_Z + 1024
L_OA = L_Z + 2048
L_KB = L_OA + 2048
def lds_bytes(NL): return (L_KB + 4 * NL * 1024 + 255) // 256 * 256

W_ACC = 0
NREP = 8
W_CNT = 32768
NCNT = 16
W_FF = 40960
W_ML = W_FF + 28*4096
W_PR = 32768 + 4096
W_FFC = 32768 + 4096
ZERO_BYTES = 32768 + 4096 + 2048

SCALE = (128 ** -0.5) * math.log2(math.e)

def gen(p=P):
    a = Asm()
    d = p.d
    NR, NL, NB = p.NR, p.NL, p.NB
    NS = NR + NL
    def stamp(k, which="A"):
        if p.stamps and p.stampset == which:
            a(f"s_memrealtime s[{82+2*k}:{83+2*k}]")
    def dump_stamps(n, vtmp):
        if not p.stamps: return
        a("s_waitcnt lgkmcnt(0)")
        a(f"s_lshl_b32 s81, s2, 3")
        a(f"s_add_u32 s81, s81, s3")
        a(f"s_lshl_b32 s81, s81, 6")
        a(f"s_add_u32 s81, s81, 0x100000")
        a(f"v_mov_b32 v{vtmp}, s81")
        a("s_mov_b64 exec, 1")
        for k in range(n):
            a(f"v_mov_b32 v{vtmp+1}, s{82+2*k}")
            a(f"global_store_dword v{vtmp}, v{vtmp+1}, s[30:31] offset:{4*k}")
        a("s_mov_b64 exec, -1")
    sX, sK, sV, sWQ, sWO, sW1, sW3, sW2, sOUT, sDBG, sWS = 8, 10, 12, 14, 16, 20, 22, 24, 26, 28, 30
    sH, sB, sC, sBH = 32, 33, 34, 35
    SRD_K, SRD_V, SRD_W = 36, 40, 44
    sSUB = 48
    sLB = 54
    sM0 = 56
    sCUR, sNXT = 64, 65
    sHW, sK8, sFIRST = 66, 67, 81
    sT0 = 68
    sWV = 3

    a.label(NAME)
    a(f"s_cmp_ge_u32 s2, 256")
    a(f"s_cbranch_scc1 L_end")
    a(f"s_load_dwordx16 s[8:23], s[0:1], 0")
    a(f"s_load_dwordx8 s[24:31], s[0:1], 64")
    a(f"v_lshrrev_b32 v1, 6, v0")
    a(f"v_and_b32 v0, 63, v0")
    a(f"v_readfirstlane_b32 s{sWV}, v1")
    if p.wmap == 0:
        a(f"s_and_b32 s{sH}, s2, 31")
        a(f"s_bfe_u32 s{sB}, s2, 0x10005")
        a(f"s_lshr_b32 s{sC}, s2, 6")
    elif p.wmap == 1:
        a(f"s_and_b32 s{sC}, s2, 1")
        a(f"s_lshl_b32 s{sC}, s{sC}, 1")
        a(f"s_bfe_u32 s{sB}, s2, 0x10003")
        a(f"s_or_b32 s{sC}, s{sC}, s{sB}")
        a(f"s_bfe_u32 s{sH}, s2, 0x30004")
        a(f"s_lshl_b32 s{sH}, s{sH}, 2")
        a(f"s_bfe_u32 s{sB}, s2, 0x20001")
        a(f"s_or_b32 s{sH}, s{sH}, s{sB}")
        a(f"s_lshr_b32 s{sB}, s2, 7")
    elif p.wmap == 3:
        a(f"s_bfe_u32 s{sC}, s2, 0x20003")
        a(f"s_and_b32 s{sH}, s2, 3")
        a(f"s_bfe_u32 s{sB}, s2, 0x20005")
        a(f"s_lshl_b32 s{sB}, s{sB}, 2")
        a(f"s_or_b32 s{sH}, s{sH}, s{sB}")
        a(f"s_bfe_u32 s{sB}, s2, 0x10002")
        a(f"s_lshl_b32 s{sB}, s{sB}, 4")
        a(f"s_or_b32 s{sH}, s{sH}, s{sB}")
        a(f"s_lshr_b32 s{sB}, s2, 7")
    elif p.wmap == 2:
        a(f"s_and_b32 s{sC}, s2, 3")
        a(f"s_bfe_u32 s{sH}, s2, 0x50002")
        a(f"s_lshr_b32 s{sB}, s2, 7")
    elif p.wmap == 5:
        a(f"s_bfe_u32 s{sC}, s2, 0x20003")
        a(f"s_bfe_u32 s{sH}, s2, 0x30005")
        a(f"s_and_b32 s{sB}, s2, 3")
        a(f"s_lshl_b32 s{sB}, s{sB}, 3")
        a(f"s_or_b32 s{sH}, s{sH}, s{sB}")
        a(f"s_bfe_u32 s{sB}, s2, 0x10002")
    a(f"s_lshl_b32 s{sBH}, s{sB}, 5")
    a(f"s_add_u32 s{sBH}, s{sBH}, s{sH}")
    a(f"v_and_b32 v2, 15, v0")
    a(f"v_lshrrev_b32 v3, 4, v0")
    stamp(0); stamp(0, "S")
    a(f"s_cmp_ge_u32 s{sWV}, 4")
    a(f"s_cbranch_scc1 L_helper")

    vKO0, vKO1, vVO0, vVO1 = 4, 5, 6, 7
    vSA, vSR, vMR, vL = 8, 9, 10, 11
    vX0, vX1, vMN, vA, vE0, vE1, vMW, vPG = 12, 13, 14, 15, 16, 17, 18, 19
    vD, vD2, vSEL = 20, 24, 28
    vBQ = 32
    vBT, vS0, vS1, vP = 32, 36, 44, 52
    vPA = 56
    vLB = 1
    vT = 56
    vSL = 64

    t0, t1, t2 = vX0, vX1, vMN
    a(f"v_lshrrev_b32 v{t0}, 2, v2")
    a(f"v_and_b32 v{t1}, 3, v2")
    a(f"v_lshlrev_b32 v{t0}, 8, v{t0}")
    a(f"v_lshlrev_b32 v{t1}, 4, v{t1}")
    a(f"v_lshlrev_b32 v{t2}, 6, v3")
    a(f"v_add3_u32 v{vKO0}, v{t0}, v{t1}, v{t2}")
    a(f"s_lshl_b32 s{sT0}, s{sWV}, 13")
    a(f"s_lshl_b32 s{sT0+1}, s{sBH}, 2")
    a(f"s_add_u32 s{sT0+1}, s{sT0+1}, s{sC}")
    a(f"s_lshl_b32 s{sT0+1}, s{sT0+1}, 20")
    a(f"v_add_u32 v{vKO0}, s{sT0}, v{vKO0}")
    a(f"v_add_u32 v{vKO1}, 0x1000, v{vKO0}")
    a(f"s_mov_b32 s{SRD_K+2}, 0x100000")
    a(f"s_mov_b32 s{SRD_K+3}, 0x00020000")
    a(f"s_mov_b32 s{sCUR}, 0")
    a(f"s_waitcnt lgkmcnt(0)")
    stamp(1, "S")
    a(f"s_add_u32 s{SRD_K}, s{sK}, s{sT0+1}")
    a(f"s_addc_u32 s{SRD_K+1}, s{sK+1}, 0")

    G0K = (NS + 16) // 8
    assert NS % 16 == 0 and NR >= 32 and NL % 8 == 0
    def slot(i):
        if i < NR: return vSL + 4 * i
        if i < NS: return vSL + 4 * (16 + ((i - NR) % 16))
        if i < 8 * G0K: return vSL + 4 * (i % 16)
        return vSL + 4 * (i % 8)
    def kimm(i):
        ii = i & 7
        return (vKO1 if ii >= 4 else vKO0), (ii & 3) * 1024
    def kload(i, soff):
        vo, imm = kimm(i)
        if NR <= i < NS:
            c = (i - NR) * 1024 - imm
            a(f"s_add_u32 m0, s{sLB}, {c & 0xffffffff:#x}")
            a("s_nop 0")
            a(f"buffer_load_dwordx4 v{vo}, {sr(SRD_K,4)}, {soff} offen offset:{imm} {p.kvflags} lds")
        else:
            a(f"buffer_load_dwordx4 {vr(slot(i))}, v{vo}, {sr(SRD_K,4)}, {soff} offen offset:{imm} {p.kvflags}")
    def vload(i, soff):
        ii = i & 7
        vo = vVO1 if ii >= 4 else vVO0
        imm = (ii & 3) * 1024
        a(f"buffer_load_dwordx4 {vr(vSL + 4*ii)}, v{vo}, {sr(SRD_V,4)}, {soff} offen offset:{imm} {p.kvflags}")
    cur_grp = [0]
    def kload_u(i):
        g = i >> 3
        if g != cur_grp[0]:
            assert g == cur_grp[0] + 1
            a(f"s_add_u32 s{sCUR}, s{sCUR}, 32768")
            cur_grp[0] = g
        kload(i, f"s{sCUR}")

    def setup1():
        a(f"s_add_u32 s{SRD_V}, s{sV}, s{sT0+1}")
        a(f"s_addc_u32 s{SRD_V+1}, s{sV+1}, 0")
        a(f"s_mov_b32 s{SRD_V+2}, 0x100000")
        a(f"s_mov_b32 s{SRD_V+3}, 0x00020000")
        a(f"v_lshlrev_b32 v{vVO0}, 4, v0")
        a(f"v_add_u32 v{vVO0}, s{sT0}, v{vVO0}")
        a(f"v_add_u32 v{vVO1}, 0x1000, v{vVO0}")
        a(f"s_mul_i32 s{sLB}, s{sWV}, {NL*1024}")
        a(f"s_add_u32 s{sLB}, s{sLB}, {L_KB}")
        for k in range(1, 4):
            mk = 0x11111111 << k
            a(f"s_mov_b32 s{sSUB+2*(k-1)}, {mk:#x}"); a(f"s_mov_b32 s{sSUB+2*(k-1)+1}, {mk:#x}")
        for m in range(4):
            mk = 0x000f000f << (4 * m)
            a(f"s_mov_b32 s{sM0+2*m}, {mk:#x}"); a(f"s_mov_b32 s{sM0+2*m+1}, {mk:#x}")
    def setup2():
        a(f"s_mul_i32 s{sT0}, s{sWV}, {4*RS}")
        a(f"v_mul_u32_u24 v{vSR}, {RS}, v3")
        a(f"v_add_u32 v{vSR}, s{sT0}, v{vSR}")
        a(f"v_lshrrev_b32 v{t1}, 2, v2")
        a(f"v_lshl_add_u32 v{vSA}, v{t1}, 2, v{vSR}")
        a(f"v_mov_b32 v{vMR}, 0xff7fffff")
        a(f"v_mov_b32 v{vL}, 0")
        a(f"v_and_b32 v1, 3, v2")
        a(f"v_lshlrev_b32 v1, 5, v1")
        a(f"v_lshl_add_u32 v1, v3, 7, v1")
    def setup3():
        emit_selectors(a, vSEL, t0)
    qa, qb = vD, vX0
    bchunks = []
    def b_read(hw):
        def f():
            dst = qa if hw == 0 else qb
            for hf in range(2):
                a(f"ds_read_b128 {vr(dst + 4*hf)}, v1 offset:{L_QP + hw*512 + hf*16}")
        return f
    def b_add():
        a("s_waitcnt lgkmcnt(0)")
        for e in range(8):
            a(f"v_add_f32 v{qa+e}, v{qa+e}, v{qb+e}")
    def b_scale():
        a(f"s_mov_b32 s{sT0}, {f32bits(SCALE):#x}")
        for e in range(8):
            a(f"v_mul_f32 v{qa+e}, s{sT0}, v{qa+e}")
    def b_split(r):
        def f():
            q0, q1 = qa + 2*r, qa + 2*r + 1
            H, h0, h1, Lp = qb, qb+1, qb+2, qb+3
            a(f"v_cvt_pk_bf16_f32 v{H}, v{q0}, v{q1}")
            a(f"v_lshlrev_b32 v{h0}, 16, v{H}")
            a(f"v_and_b32 v{h1}, 0xffff0000, v{H}")
            a(f"v_sub_f32 v{h0}, v{q0}, v{h0}")
            a(f"v_sub_f32 v{h1}, v{q1}, v{h1}")
            a(f"v_cvt_pk_bf16_f32 v{Lp}, v{h0}, v{h1}")
            for m in range(4):
                a(f"v_cndmask_b32 v{vBQ + (m*2+0)*4 + r}, 0, v{H}, {sr(sM0+2*m)}")
                a(f"v_cndmask_b32 v{vBQ + (m*2+1)*4 + r}, 0, v{Lp}, {sr(sM0+2*m)}")
        return f
    def seq(*fs):
        def f():
            for g_ in fs: g_()
        return f
    bchunks = [seq(b_read(0), b_read(1)), seq(b_add, b_read(2)), seq(b_add, b_read(3)), seq(b_add, b_scale),
               b_split(0), b_split(1), b_split(2), b_split(3)]

    for i in range(NS):
        if i == NB:
            stamp(1); stamp(5, "S")
            a("s_barrier")
            stamp(2); stamp(6, "S")
        dcur = p.dA0 if i < p.nA0 else p.dA
        if i >= dcur:
            a(f"s_waitcnt vmcnt({dcur-1})")
        if i == p.dA: stamp(3, "S")
        if i == 16: stamp(4, "S")
        kload_u(i)
        if i == p.dA - 1: stamp(2, "S"); setup1()
        if i == p.dA: setup2()
        if i == p.dA + 1: setup3()
        if i >= NB and bchunks:
            bchunks.pop(0)()
    if NB >= NS:
        stamp(1); stamp(5, "S")
        a("s_barrier")
        stamp(2); stamp(6, "S")
    while bchunks:
        bchunks.pop(0)()
    a(f"v_lshlrev_b32 v{vLB}, 4, v0")
    a(f"v_add_u32 v{vLB}, s{sLB}, v{vLB}")
    stamp(3); stamp(7, "S")

    def kconsume(i):
        ii = i & 7
        m = ii & 3
        D = vD if ii < 4 else vD2
        for hl in range(2):
            b = vBQ + (m*2+hl)*4
            c = "0" if (m == 0 and hl == 0) else vr(D)
            a(f"v_mfma_f32_16x16x32_bf16 {vr(D)}, {vr(slot(i))}, {vr(b)}, {c}")
    def kpost():
        a("s_nop 7")
        for X_, D in ((vX0, vD), (vX1, vD2)):
            a(f"v_cndmask_b32 v{X_}, v{D}, v{D+1}, {sr(sSUB)}")
            a(f"v_cndmask_b32 v{X_}, v{X_}, v{D+2}, {sr(sSUB+2)}")
            a(f"v_cndmask_b32 v{X_}, v{X_}, v{D+3}, {sr(sSUB+4)}")
        a("s_nop 0")
        a(f"v_add_f32_dpp v{vX0}, v{vX0}, v{vX0} quad_perm:[1,0,3,2] row_mask:0xf bank_mask:0xf")
        a(f"v_add_f32_dpp v{vX1}, v{vX1}, v{vX1} quad_perm:[1,0,3,2] row_mask:0xf bank_mask:0xf")
        a("s_nop 1")
        a(f"v_add_f32_dpp v{vX0}, v{vX0}, v{vX0} quad_perm:[2,3,0,1] row_mask:0xf bank_mask:0xf")
        a(f"v_add_f32_dpp v{vX1}, v{vX1}, v{vX1} quad_perm:[2,3,0,1] row_mask:0xf bank_mask:0xf")
        a(f"v_max3_f32 v{vMN}, v{vMR}, v{vX0}, v{vX1}")
        a(f"ds_write_b32 v{vSA}, v{vX0} offset:{L_ST}")
        a(f"ds_write_b32 v{vSA}, v{vX1} offset:{L_ST+16}")
        a(f"v_sub_f32 v{vA}, v{vMR}, v{vMN}")
        a(f"v_sub_f32 v{vE0}, v{vX0}, v{vMN}")
        a(f"v_sub_f32 v{vE1}, v{vX1}, v{vMN}")
        a(f"v_exp_f32 v{vA}, v{vA}")
        a(f"v_exp_f32 v{vE0}, v{vE0}")
        a(f"v_exp_f32 v{vE1}, v{vE1}")
        a(f"v_mov_b32 v{vMR}, v{vMN}")
        a(f"v_add_u32 v{vSA}, 32, v{vSA}")
        a(f"v_fma_f32 v{vL}, v{vL}, v{vA}, v{vE0}")
        a(f"v_add_f32 v{vL}, v{vL}, v{vE1}")

    issued = NS
    def lds_fetch(grp):
        for ii in range(8):
            i = grp * 8 + ii
            a(f"ds_read_b128 {vr(slot(i))}, v{vLB} offset:{(i-NR)*1024}")
    for grp in range(G0K):
        nxt = grp + 1
        is_lds = NR <= grp * 8 < NS
        if is_lds:
            a("s_waitcnt lgkmcnt(0)")
        if NR <= nxt * 8 < NS and nxt * 8 + 7 < issued:
            a(f"s_waitcnt vmcnt({min(issued - 1 - (nxt*8+7), 63)})")
            lds_fetch(nxt)
        for ii in range(8):
            i = grp * 8 + ii
            if not is_lds:
                oa = issued - 1 - i
                if oa < p.dA + d + 12:
                    a(f"s_waitcnt vmcnt({min(oa, 63)})")
            if i >= NS and i + d >= issued:
                a(f"s_waitcnt vmcnt({min(d-1, issued - 1 - i)})")
                kload_u(issued); issued += 1
            kconsume(i)
        kpost()
        if grp * 8 + 7 < NS:
            a(f"s_waitcnt vmcnt({d-1})")
            kload_u(issued); issued += 1
    assert issued == 8 * G0K + d, (issued, 8 * G0K + d)
    a(f"s_lshl_b32 s{sT0}, s{sWV}, 2")
    a(f"v_mov_b32 v{vA}, s{sT0}")
    a(f"v_mov_b32 v{vE0}, 1")
    a(f"ds_write_b32 v{vA}, v{vE0} offset:{L_PB}")
    stamp(4)
    ngA = G0K
    vDB = vSL + 4 * 8
    SETS = {0: (vD, vD2), 1: (vDB, vDB + 4)}
    def kconsume2(ii, st):
        m = ii & 3
        D = SETS[st][0 if ii < 4 else 1]
        for hl in range(2):
            b = vBQ + (m*2+hl)*4
            c = "0" if (m == 0 and hl == 0) else vr(D)
            a(f"v_mfma_f32_16x16x32_bf16 {vr(D)}, {vr(vSL + 4*ii)}, {vr(b)}, {c}")
    def post_piece(k, st):
        Da, Db = SETS[st]
        if k == 0 or k == 1:
            X_, D = ((vX0, Da), (vX1, Db))[k]
            a(f"v_cndmask_b32 v{X_}, v{D}, v{D+1}, {sr(sSUB)}")
            a(f"v_cndmask_b32 v{X_}, v{X_}, v{D+2}, {sr(sSUB+2)}")
            a(f"v_cndmask_b32 v{X_}, v{X_}, v{D+3}, {sr(sSUB+4)}")
        elif k == 2 or k == 3:
            qp = "[1,0,3,2]" if k == 2 else "[2,3,0,1]"
            a(f"v_add_f32_dpp v{vX0}, v{vX0}, v{vX0} quad_perm:{qp} row_mask:0xf bank_mask:0xf")
            a(f"v_add_f32_dpp v{vX1}, v{vX1}, v{vX1} quad_perm:{qp} row_mask:0xf bank_mask:0xf")
        elif k == 4:
            a(f"v_max3_f32 v{vMN}, v{vMR}, v{vX0}, v{vX1}")
            a(f"ds_write_b32 v{vSA}, v{vX0} offset:{L_ST}")
            a(f"ds_write_b32 v{vSA}, v{vX1} offset:{L_ST+16}")
        elif k == 5:
            a(f"v_sub_f32 v{vA}, v{vMR}, v{vMN}")
            a(f"v_sub_f32 v{vE0}, v{vX0}, v{vMN}")
            a(f"v_sub_f32 v{vE1}, v{vX1}, v{vMN}")
        elif k == 6:
            a(f"v_exp_f32 v{vA}, v{vA}")
            a(f"v_exp_f32 v{vE0}, v{vE0}")
            a(f"v_exp_f32 v{vE1}, v{vE1}")
            a(f"v_mov_b32 v{vMR}, v{vMN}")
            a(f"v_add_u32 v{vSA}, 32, v{vSA}")
        elif k == 7:
            a(f"v_fma_f32 v{vL}, v{vL}, v{vA}, v{vE0}")
            a(f"v_add_f32 v{vL}, v{vL}, v{vE1}")
    def kgroup(st, prev, last=False):
        for ii in range(8):
            a(f"s_waitcnt vmcnt({d-1})")
            n = ii + d
            if n < 8:
                kload(8*G0K + n, f"s{sCUR}")
            elif last:
                vload(n & 7, "0")
            else:
                kload(8*G0K + 8 + (n & 7), f"s{sNXT}")
            kconsume2(ii, st)
            if prev is not None:
                post_piece(ii, prev)
    def kadv():
        a(f"s_mov_b32 s{sCUR}, s{sNXT}")
        a(f"s_add_u32 s{sNXT}, s{sNXT}, 32768")
    a(f"s_mov_b32 s{sCUR}, {ngA*32768}")
    a(f"s_mov_b32 s{sNXT}, {(ngA+1)*32768}")
    assert ngA % 2 == 0
    kgroup(0, None); kadv()
    a.label("L_kloop")
    kgroup(1, 0); kadv()
    kgroup(0, 1); kadv()
    a(f"s_cmp_lt_u32 s{sCUR}, {31*32768}")
    a(f"s_cbranch_scc1 L_kloop")
    kgroup(1, 0, last=True)
    a("s_nop 7")
    for k in range(8):
        post_piece(k, 1)
        if k in (1, 2): a("s_nop 1")
    a("s_nop 1")
    a(f"v_max_f32_dpp v{vMN}, v{vMR}, v{vMR} row_half_mirror row_mask:0xf bank_mask:0xf")
    a("s_nop 1")
    a(f"v_max_f32_dpp v{vMN}, v{vMN}, v{vMN} row_mirror row_mask:0xf bank_mask:0xf")
    a("s_nop 1")
    for k in range(4):
        a(f"v_readlane_b32 s{sT0+k}, v{vMN}, {16*k}")
    a("s_nop 1")
    a(f"v_mov_b32 v{vMW}, s{sT0}")
    a(f"v_max_f32 v{vMW}, s{sT0+1}, v{vMW}")
    a(f"v_max_f32 v{vMW}, s{sT0+2}, v{vMW}")
    a(f"v_max_f32 v{vMW}, s{sT0+3}, v{vMW}")
    a(f"v_sub_f32 v{vA}, v{vMR}, v{vMW}")
    a(f"v_exp_f32 v{vA}, v{vA}")
    a("s_nop 0")
    a(f"v_mul_f32 v{vL}, v{vL}, v{vA}")
    a("s_nop 1")
    a(f"v_add_f32_dpp v{vL}, v{vL}, v{vL} row_half_mirror row_mask:0xf bank_mask:0xf")
    a("s_nop 1")
    a(f"v_add_f32_dpp v{vL}, v{vL}, v{vL} row_mirror row_mask:0xf bank_mask:0xf")
    a("s_nop 1")
    for k in range(4):
        a(f"v_readlane_b32 s{sT0+k}, v{vL}, {16*k}")
    a("s_nop 1")
    a(f"v_mov_b32 v{vL}, s{sT0}")
    a(f"v_add_f32 v{vL}, s{sT0+1}, v{vL}")
    a(f"v_add_f32 v{vL}, s{sT0+2}, v{vL}")
    a(f"v_add_f32 v{vL}, s{sT0+3}, v{vL}")
    a(f"s_lshl_b32 s{sT0}, s{sWV}, 3")
    a(f"v_mov_b32 v{vT}, s{sT0}")
    a(f"v_mov_b32 v{vT+2}, v{vMW}")
    a(f"v_mov_b32 v{vT+3}, v{vL}")
    a(f"ds_write_b64 v{vT}, v[{vT+2}:{vT+3}] offset:{L_ML}")
    a(f"s_lshl_b32 s{sT0}, s{sWV}, 2")
    a(f"v_mov_b32 v{vPA}, s{sT0}")
    a(f"v_mov_b32 v{vT+4}, 1")
    a("s_waitcnt lgkmcnt(0)")
    a(f"ds_write_b32 v{vPA}, v{vT+4} offset:{L_KF}")
    stamp(5)
    for r in range(4):
        a(f"v_mov_b32 v{vD+r}, 0")
        a(f"v_mov_b32 v{vD2+r}, 0")
    a(f"v_mov_b32 v{vPG}, 0")
    a(f"ds_read_b128 {vr(vS0)}, v{vSR} offset:{L_ST}")
    a(f"ds_read_b128 {vr(vS0+4)}, v{vSR} offset:{L_ST+16}")
    a(f"v_add_u32 v{vSR}, 32, v{vSR}")
    def vconsume(ii, S):
        t, hi, lo, Pk = vP, vP+1, vP+2, vP+3
        a(f"v_sub_f32 v{t}, v{S+ii}, v{vMW}")
        a(f"v_exp_f32 v{t}, v{t}")
        a("s_nop 0")
        a(f"v_and_b32 v{hi}, 0xffff0000, v{t}")
        a(f"v_sub_f32 v{lo}, v{t}, v{hi}")
        a(f"v_cvt_pk_bf16_f32 v{Pk}, v{hi}, v{lo}")
        for r in range(4):
            a(f"v_perm_b32 v{vBT+r}, v{Pk}, v{Pk}, v{vSEL+r}")
        a("s_nop 1")
        D = vD if (ii & 1) == 0 else vD2
        a(f"v_mfma_f32_16x16x32_bf16 {vr(D)}, {vr(vSL+4*ii)}, {vr(vBT)}, {vr(D)}")
    def vgroup(S, Sn, dc, dprev=None):
        a("s_waitcnt lgkmcnt(0)")
        a(f"ds_read_b128 {vr(Sn)}, v{vSR} offset:{L_ST}")
        a(f"ds_read_b128 {vr(Sn+4)}, v{vSR} offset:{L_ST+16}")
        a(f"v_add_u32 v{vSR}, 32, v{vSR}")
        for ii in range(8):
            if dprev is not None and dprev < dc and ii == 0:
                a(f"s_waitcnt vmcnt({dprev-1})")
                for n in range(dprev, dc + 1):
                    vload(n & 7, f"s{sCUR}" if n < 8 else f"s{sNXT}")
            elif dprev is not None and dprev > dc and ii + dc < dprev:
                a(f"s_waitcnt vmcnt({dprev-1-ii})")
            else:
                n = ii + dc
                a(f"s_waitcnt vmcnt({dc-1})")
                vload(n & 7, f"s{sCUR}" if n < 8 else f"s{sNXT}")
            vconsume(ii, S)
    def adv():
        a(f"s_mov_b32 s{sCUR}, s{sNXT}")
        a(f"s_add_u32 s{sNXT}, s{sNXT}, 32768")
    a(f"s_mov_b32 s{sCUR}, 0")
    a(f"s_mov_b32 s{sNXT}, 32768")
    dE, GE = p.dE, p.GE
    assert GE % 2 == 0 and GE >= 4
    G0 = 32 - GE
    vMD = vT + 1; vZ = vT + 2
    a(f"v_mov_b32 v{vZ}, 0")
    def vpair(d1, dprev, tag):
        a(f"v_add_u32 v{vPG}, 2, v{vPG}")
        a(f"ds_write_b32 v{vPA}, v{vPG} offset:{L_VP}")
        if p.ctl: a(f"ds_read_b32 v{vMD}, v{vZ} offset:{L_MD}")
        vgroup(vS0, vS1, d1, dprev); adv()
        vgroup(vS1, vS0, d1); adv()
        if p.ctl: a(f"v_readfirstlane_b32 s{sT0}, v{vMD}")
        a(f"s_cmp_ge_u32 s{sCUR}, {G0*32768}")
        a(f"s_cbranch_scc1 L_vend_{'L' if d1 == d else 'H'}")
    if p.ctl:
        assert dE > d
        a.label("L_vL")
        vpair(d, None, "LL")
        a(f"s_cmp_eq_u32 s{sT0}, 0")
        a(f"s_cbranch_scc1 L_vL")
        a.label("L_vLH")
        vpair(dE, d, "LH")
        a(f"s_cmp_eq_u32 s{sT0}, 0")
        a(f"s_cbranch_scc1 L_vHL")
        a.label("L_vH")
        vpair(dE, None, "HH")
        a(f"s_cmp_lg_u32 s{sT0}, 0")
        a(f"s_cbranch_scc1 L_vH")
        a.label("L_vHL")
        vpair(d, dE, "HL")
        a(f"s_cmp_eq_u32 s{sT0}, 0")
        a(f"s_cbranch_scc1 L_vL")
        a(f"s_branch L_vLH")
        a.label("L_vend_H")
        vgroup(vS0, vS1, dE); adv()
        vgroup(vS1, vS0, dE); adv()
        a("s_branch L_vend_J")
    else:
        a.label("L_vL")
        vpair(d, None, "LL")
        a(f"s_branch L_vL")
    a.label("L_vend_L")
    vgroup(vS0, vS1, dE, d); adv()
    vgroup(vS1, vS0, dE); adv()
    a.label("L_vend_J")
    if GE > 4:
        a.label("L_vloop2")
        for half in range(2):
            vgroup(vS0 if half == 0 else vS1, vS1 if half == 0 else vS0, dE)
            adv()
        a(f"s_cmp_lt_u32 s{sCUR}, {30*32768}")
        a(f"s_cbranch_scc1 L_vloop2")
    vgroup(vS0, vS1, dE)
    a(f"s_mov_b32 s{sCUR}, s{sNXT}")
    a("s_waitcnt lgkmcnt(0)")
    for ii in range(8):
        n = ii + dE
        issued_before = min(ii + dE, 8)
        a(f"s_waitcnt vmcnt({issued_before - 1 - ii})")
        if n < 8:
            vload(n, f"s{sCUR}")
        vconsume(ii, vS1)
    stamp(6)
    a(f"v_mov_b32 v{vT}, 0")
    a.label("L_fr_poll")
    a(f"ds_read_b32 v{vT+1}, v{vT} offset:{L_FR}")
    a(f"s_lshl_b32 s{sT0}, s{sWV}, 2")
    a(f"v_mov_b32 v{vT+2}, s{sT0}")
    a(f"ds_read_b32 v{vT+3}, v{vT+2} offset:{L_F}")
    a("s_waitcnt lgkmcnt(0)")
    a(f"v_cmp_eq_u32 vcc, 0, v{vT+1}")
    a(f"s_cbranch_vccnz L_fr_poll")
    a(f"v_and_b32 v{vT}, 7, v2")
    a(f"v_lshlrev_b32 v{vT}, 1, v{vT}")
    a(f"v_lshl_add_u32 v{vT}, v3, 6, v{vT}")
    a(f"v_lshrrev_b32 v{vT+1}, 3, v2")
    a(f"v_lshl_add_u32 v{vT}, v{vT+1}, 8, v{vT}")
    a(f"s_lshl_b32 s{sT0}, s{sWV}, 9")
    a(f"v_add_u32 v{vT}, s{sT0}, v{vT}")
    a(f"s_mov_b32 s{sT0+2}, 0xff00ff00"); a(f"s_mov_b32 s{sT0+3}, 0xff00ff00")
    for r in range(4):
        a(f"v_add_f32 v{vD+r}, v{vD+r}, v{vD2+r}")
    a("s_nop 1")
    for r in range(4):
        a(f"v_add_f32_dpp v{vD+r}, v{vD+r}, v{vD+r} row_ror:8 row_mask:0xf bank_mask:0xf")
    for r in range(4):
        a(f"v_mul_f32 v{vD+r}, v{vD+r}, v{vT+3}")
    for r in range(4):
        H, hf_, lo = vD2, vD2+1, vD2+2
        a(f"v_cvt_pk_bf16_f32 v{H}, v{vD+r}, v{vD+r}")
        a(f"v_and_b32 v{hf_}, 0xffff0000, v{H}")
        a(f"v_sub_f32 v{lo}, v{vD+r}, v{hf_}")
        a(f"v_cvt_pk_bf16_f32 v{lo}, v{lo}, v{lo}")
        a(f"v_cndmask_b32 v{lo}, v{H}, v{lo}, {sr(sT0+2)}")
        a(f"ds_write_b16 v{vT}, v{lo} offset:{L_OA + r*16}")
    a("s_waitcnt lgkmcnt(0)")
    a("s_barrier")
    stamp(7)
    dump_stamps(8, vT)
    a("s_endpgm")

    a.label("L_helper")
    hSEL = 4
    hB = 8
    hD = 12
    hP = 16
    hT = 48
    hVO = 96
    hDA = 98
    hG = 100
    hW = 128
    a(f"s_sub_u32 s{sHW}, s{sWV}, 4")
    a(f"v_lshlrev_b32 v{hT}, 4, v0")
    a(f"s_lshl_b32 s{sT0}, s{sB}, 10")
    a(f"s_mov_b32 s{SRD_W+2}, 0x400000"); a(f"s_mov_b32 s{SRD_W+3}, 0x00020000")
    a(f"v_lshlrev_b32 v{hVO}, 18, v3")
    a(f"v_lshl_add_u32 v{hVO}, v2, 4, v{hVO}")
    if p.wmap == 0:
        a(f"s_lshr_b32 s{sK8}, s2, 5")
    elif p.wmap == 5:
        a(f"s_lshl_b32 s{sK8}, s{sC}, 1")
    elif p.wmap == 3:
        a(f"s_lshl_b32 s{sK8}, s{sB}, 2")
        a(f"s_add_u32 s{sK8}, s{sK8}, s{sC}")
    else:
        a(f"s_lshl_b32 s{sK8}, s{sB}, 2")
        a(f"s_and_b32 s{sT0+1}, s{sC}, 1")
        a(f"s_lshl_b32 s{sT0+1}, s{sT0+1}, 1")
        a(f"s_add_u32 s{sK8}, s{sK8}, s{sT0+1}")
        a(f"s_lshr_b32 s{sT0+1}, s{sC}, 1")
        a(f"s_add_u32 s{sK8}, s{sK8}, s{sT0+1}")
    a("s_waitcnt lgkmcnt(0)")
    stamp(1, "S")
    a(f"s_add_u32 s{sT0+2}, s{sX}, s{sT0}")
    a(f"s_addc_u32 s{sT0+3}, s{sX+1}, 0")
    a(f"global_load_dwordx4 {vr(hT+4)}, v{hT}, {sr(sT0+2)}")
    a(f"s_mov_b32 s{SRD_W}, s{sWQ}"); a(f"s_mov_b32 s{SRD_W+1}, s{sWQ+1}")
    a(f"s_lshl_b32 s{sT0}, s{sHW}, 20")
    a(f"s_lshl_b32 s{sT0+1}, s{sH}, 8")
    a(f"s_add_u32 s{sT0}, s{sT0}, s{sT0+1}")

    def gemv_step(W, Pk, first, D=hD):
        for r in range(4):
            a(f"v_perm_b32 v{hB+r}, v{Pk}, v{Pk}, v{hSEL+r}")
        a("s_nop 1")
        a(f"v_mfma_f32_16x16x32_bf16 {vr(D)}, {vr(W)}, {vr(hB)}, {'0' if first else vr(D)}")

    X, S, Q = hT + 8, hT + 16, hT + 24
    sR = sT0 + 4
    chunks = []
    def chunk(f): chunks.append(f)
    def c_sel():
        emit_selectors(a, hSEL, hT+8)
    def c_clear():
        a(f"s_cmp_lg_u32 s{sHW}, 0")
        a(f"s_cbranch_scc1 L_h_noclr")
        for r in range(4): a(f"v_mov_b32 v{hT+8+r}, 0")
        a(f"ds_write_b128 v{hT}, {vr(hT+8)} offset:{L_Z}")
        a(f"ds_write_b128 v{hT}, {vr(hT+8)} offset:{L_Z+1024}")
        a.label("L_h_noclr")
        a(f"v_and_b32 v{hDA}, 7, v2")
        a(f"v_lshlrev_b32 v{hDA}, 2, v{hDA}")
        a(f"v_lshl_add_u32 v{hDA}, v3, 7, v{hDA}")
    def c_ln1():
        for r in range(4):
            a(f"v_lshlrev_b32 v{X+2*r}, 16, v{hT+4+r}")
            a(f"v_and_b32 v{X+2*r+1}, 0xffff0000, v{hT+4+r}")
        a(f"v_add_f32 v{S}, v{X}, v{X+1}")
        for e in range(2, 8):
            a(f"v_add_f32 v{S}, v{S}, v{X+e}")
    def c_ln2():
        wave_allreduce_add(a, S, sR)
    def c_ln3():
        a(f"v_mul_f32 v{S}, {f32bits(1.0/512):#x}, v{S}")
        for e in range(8):
            a(f"v_sub_f32 v{X+e}, v{X+e}, v{S}")
        a(f"v_mul_f32 v{S+1}, v{X}, v{X}")
        for e in range(1, 8):
            a(f"v_fmac_f32 v{S+1}, v{X+e}, v{X+e}")
    def c_ln4():
        wave_allreduce_add(a, S + 1, sR)
    def c_ln5():
        a(f"v_mov_b32 v{S+2}, {f32bits(1e-5):#x}")
        a(f"v_fmac_f32 v{S+2}, {f32bits(1.0/512):#x}, v{S+1}")
        a(f"v_sqrt_f32 v{S+2}, v{S+2}")
        a("s_nop 0")
        a(f"v_rcp_f32 v{S+2}, v{S+2}")
        a("s_nop 0")
        for e in range(8):
            a(f"v_mul_f32 v{X+e}, v{X+e}, v{S+2}")
    def c_ln6(lo, hi):
        def f():
            for e in range(lo, hi):
                a(f"v_cvt_pk_bf16_f32 v{S+3}, v{X+e}, v{X+e}")
                a(f"v_and_b32 v{S+3}, 0xffff0000, v{S+3}")
                a(f"v_sub_f32 v{S+4}, v{X+e}, v{S+3}")
                a(f"v_cvt_pk_bf16_f32 v{Q+e}, v{S+3}, v{S+4}")
        return f
    def c_ln7():
        a(f"s_lshl_b32 s{sR}, s{sHW}, 11")
        a(f"v_lshlrev_b32 v{hT+1}, 5, v0")
        a(f"v_add_u32 v{hT+1}, s{sR}, v{hT+1}")
        a(f"ds_write_b128 v{hT+1}, {vr(Q)} offset:{L_XP}")
        a(f"ds_write_b128 v{hT+1}, {vr(Q+4)} offset:{L_XP+16}")
        a(f"s_mul_i32 s{sR}, s{sHW}, {2048+512}")
        a(f"v_lshlrev_b32 v{hT+1}, 7, v3")
        a(f"v_add_u32 v{hT+1}, s{sR}, v{hT+1}")
    def c_ln8():
        a("s_waitcnt lgkmcnt(0)")
        for i in range(8):
            a(f"s_add_u32 s{sR}, s{sK8}, {i}")
            a(f"s_and_b32 s{sR}, s{sR}, 7")
            a(f"s_lshl_b32 s{sR}, s{sR}, 4")
            a(f"v_add_u32 v{hT+2}, s{sR}, v{hT+1}")
            a(f"ds_read_b128 {vr(hP+4*i)}, v{hT+2} offset:{L_XP}")
    def c_ln9():
        a("s_waitcnt lgkmcnt(0)")
        stamp(4, "S")
    pre = [c_sel, c_clear]
    post = [c_ln1, c_ln2, c_ln3, c_ln4, c_ln5, c_ln6(0, 4), c_ln6(4, 8), c_ln7, c_ln8, c_ln9]
    dQ = p.dQ
    next_gemv = 0
    for n in range(32):
        i, r = n >> 2, n & 3
        if n >= dQ:
            a(f"s_waitcnt vmcnt({dQ-1})")
            if n == dQ: stamp(3, "S")
        if r == 0:
            a(f"s_add_u32 s{sT0+1}, s{sK8}, {i}")
            a(f"s_and_b32 s{sT0+1}, s{sT0+1}, 7")
            a(f"s_lshl_b32 s{sT0+1}, s{sT0+1}, 15")
            a(f"s_add_u32 s{sT0+1}, s{sT0+1}, s{sT0}")
        else:
            a(f"s_add_u32 s{sT0+1}, s{sT0+1}, 8192")
        a(f"buffer_load_dwordx4 {vr(hW+4*n)}, v{hVO}, {sr(SRD_W,4)}, s{sT0+1} offen {p.wflags}")
        if pre:
            pre.pop(0)()
        elif n >= dQ and post:
            post.pop(0)()
        elif n >= dQ:
            landed = n - dQ
            k = 0
            while next_gemv <= landed and k < 3:
                gemv_step(hW+4*next_gemv, hP+next_gemv, next_gemv == 0); next_gemv += 1; k += 1
    stamp(2, "S")
    assert not post
    while next_gemv < 32:
        a(f"s_waitcnt vmcnt({31-next_gemv})")
        gemv_step(hW+4*next_gemv, hP+next_gemv, next_gemv == 0); next_gemv += 1
    stamp(6, "S")
    a(f"s_lshl_b32 s{sT0}, s{sHW}, 9")
    a(f"v_add_u32 v{hT}, s{sT0}, v{hDA}")
    a("s_nop 7")
    for r in range(4):
        a(f"v_add_f32_dpp v{hD+r}, v{hD+r}, v{hD+r} row_ror:8 row_mask:0xf bank_mask:0xf")
    for r in range(4):
        a(f"ds_write_b32 v{hT}, v{hD+r} offset:{L_QP + r*32}")
    a("s_waitcnt lgkmcnt(0)")
    stamp(2); stamp(7, "S")
    a("s_barrier")

    def paced_gemv(stride, first, D, dF, cnt=32, Wb=None):
        Wb = hW if Wb is None else Wb
        def ld(n):
            a(f"buffer_load_dwordx4 {vr(Wb+4*n)}, v{hVO}, {sr(SRD_W,4)}, s{sT0} offen {p.wflags}")
            a(f"s_add_u32 s{sT0}, s{sT0}, {stride}")
        for n in range(min(dF, cnt)): ld(n)
        a("s_waitcnt lgkmcnt(0)")
        for n in range(cnt):
            a(f"s_waitcnt vmcnt({min(dF-1, cnt-1-n)})")
            if n + dF < cnt: ld(n + dF)
            gemv_step(Wb+4*n, hP+n, first and n == 0, D)

    a(f"s_cmp_lg_u32 s{sHW}, 1")
    a(f"s_cbranch_scc1 L_h_noinit")
    a(f"s_cmp_lg_u32 s2, 0")
    a(f"s_cbranch_scc1 L_h_noinit")
    for r in range(4):
        a(f"v_mov_b32 v{hT+4+r}, 0")
    a(f"v_lshlrev_b32 v{hT}, 4, v0")
    assert ZERO_BYTES % 2048 == 0
    a(f"s_mov_b32 s{sT0}, {ZERO_BYTES // 2048}")
    a.label("L_zero")
    a(f"global_store_dwordx4 v{hT}, {vr(hT+4)}, {sr(sWS)} sc0 sc1")
    a(f"global_store_dwordx4 v{hT}, {vr(hT+4)}, {sr(sWS)} offset:1024 sc0 sc1")
    a(f"v_add_u32 v{hT}, 2048, v{hT}")
    a(f"s_sub_u32 s{sT0}, s{sT0}, 1")
    a(f"s_cmp_lg_u32 s{sT0}, 0")
    a(f"s_cbranch_scc1 L_zero")
    a("s_waitcnt vmcnt(0)")
    a(f"v_lshlrev_b32 v{hT}, 2, v0")
    a(f"v_add_u32 v{hT}, 32, v{hT}")
    a(f"v_mov_b32 v{hT+1}, 8")
    a(f"v_mov_b32 v{hT+2}, 1")
    a(f"v_cmp_lt_u32 vcc, 7, v0")
    a("s_nop 1")
    a(f"v_cndmask_b32 v{hT+1}, v{hT+1}, v{hT+2}, vcc")
    a(f"s_mov_b64 exec, 0x1ff")
    a(f"global_atomic_add v{hT}, v{hT+1}, {sr(sDBG)}")
    a(f"s_mov_b64 exec, -1")
    a.label("L_h_noinit")

    if p.noffn: a("s_branch L_h_noffn")
    sJ = sFIRST
    if p.fmap:
        a(f"s_bitcmp1_b32 s{sH}, 3")
        a(f"s_cbranch_scc1 L_h_noffn")
        a(f"s_and_b32 s{sJ}, s{sH}, 7")
        a(f"s_lshr_b32 s{sT0}, s{sH}, 4")
        a(f"s_lshl_b32 s{sT0}, s{sT0}, 3")
        a(f"s_or_b32 s{sJ}, s{sJ}, s{sT0}")
    else:
        a(f"s_mov_b32 s{sJ}, s{sH}")
    a(f"s_cmp_ge_u32 s{sJ}, 14")
    a(f"s_cbranch_scc1 L_h_noffn")
    a(f"v_mul_u32_u24 v{hVO}, {8*3584}, v3")
    a(f"v_lshl_add_u32 v{hVO}, v2, 4, v{hVO}")
    a(f"s_lshl_b32 s{sT0+8}, s{sC}, 2")
    a(f"s_add_u32 s{sT0+8}, s{sT0+8}, s{sHW}")
    a(f"s_lshl_b32 s{sT0}, s{sHW}, 11")
    a(f"s_lshl_b32 s{sT0+1}, s{sT0+8}, 7")
    a(f"s_add_u32 s{sT0}, s{sT0}, s{sT0+1}")
    a(f"v_lshlrev_b32 v{hT+1}, 5, v3")
    a(f"v_add_u32 v{hT+1}, s{sT0}, v{hT+1}")
    for i in range(2):
        a(f"ds_read_b128 {vr(hP+4*i)}, v{hT+1} offset:{L_XP+16*i}")
    for mat, (sP, Lacc) in enumerate([(sW1, L_GA), (sW3, L_UA)]):
        a(f"s_mov_b32 s{SRD_W}, s{sP}"); a(f"s_mov_b32 s{SRD_W+1}, s{sP+1}")
        a(f"s_mov_b32 s{SRD_W+2}, {512*3584}")
        a(f"s_mul_i32 s{sT0}, s{sT0+8}, {32*3584}")
        a(f"s_lshl_b32 s{sT0+1}, s{sJ}, 8")
        a(f"s_add_u32 s{sT0}, s{sT0}, s{sT0+1}")
        paced_gemv(3584, True, hD, p.dF, 8)
        a("s_nop 7")
        for r in range(4):
            a(f"v_add_f32_dpp v{hD+r}, v{hD+r}, v{hD+r} row_ror:8 row_mask:0xf bank_mask:0xf")
        a(f"s_mov_b32 s{sT0+6}, 0x00ff00ff"); a(f"s_mov_b32 s{sT0+7}, 0x00ff00ff")
        a(f"s_mov_b64 exec, {sr(sT0+6)}")
        for r in range(4):
            a(f"ds_add_f32 v{hDA}, v{hD+r} offset:{Lacc + r*32}")
        a(f"s_mov_b64 exec, -1")
    a("s_waitcnt lgkmcnt(0)")
    a(f"v_mov_b32 v{hT}, 0")
    a(f"v_mov_b32 v{hT+1}, 1")
    a(f"s_mov_b64 exec, 1")
    a(f"ds_add_u32 v{hT}, v{hT+1} offset:{L_FC}")
    a(f"s_mov_b64 exec, -1")
    a.label("L_ffn_sync")
    a("s_sleep 4")
    a(f"ds_read_b32 v{hT+1}, v{hT} offset:{L_FC}")
    a("s_waitcnt lgkmcnt(0)")
    a(f"v_cmp_ne_u32 vcc, 4, v{hT+1}")
    a(f"s_cbranch_vccnz L_ffn_sync")
    a(f"s_lshl_b32 s{sT0}, s{sHW}, 8")
    a(f"v_lshlrev_b32 v{hT+2}, 2, v0")
    a(f"v_add_u32 v{hT+2}, s{sT0}, v{hT+2}")
    a(f"ds_read_b32 v{hT+3}, v{hT+2} offset:{L_GA}")
    a(f"s_mul_i32 s{sT0+9}, s{sB}, 14")
    a(f"s_add_u32 s{sT0+9}, s{sT0+9}, s{sJ}")
    a(f"s_lshl_b32 s{sT0+1}, s{sT0+9}, 12")
    a(f"s_add_u32 s{sT0+1}, s{sT0+1}, {W_FF}")
    a(f"s_lshl_b32 s{sT0+2}, s{sC}, 10")
    a(f"s_add_u32 s{sT0+2}, s{sT0+2}, s{sT0+1}")
    a(f"v_add_u32 v{hT+2}, s{sT0+2}, v{hT+2}")
    a("s_waitcnt lgkmcnt(0)")
    a(f"global_store_dword v{hT+2}, v{hT+3}, {sr(sWS)} sc0 sc1")
    a(f"v_mov_b32 v{hT+4}, 0")
    a(f"v_mov_b32 v{hT+1}, 1")
    a("s_waitcnt vmcnt(0)")
    a(f"s_mov_b64 exec, 1")
    a(f"ds_add_u32 v{hT+4}, v{hT+1} offset:{L_FS}")
    a(f"s_mov_b64 exec, -1")
    a(f"s_cmp_lg_u32 s{sHW}, 0")
    a(f"s_cbranch_scc1 L_ffn_wait")
    a.label("L_ffn_st")
    a("s_sleep 4")
    a(f"ds_read_b32 v{hT+1}, v{hT+4} offset:{L_FS}")
    a("s_waitcnt lgkmcnt(0)")
    a(f"v_cmp_ne_u32 vcc, 4, v{hT+1}")
    a(f"s_cbranch_vccnz L_ffn_st")
    a(f"s_branch L_ffn_z1")
    a.label("L_ffn_z")
    a("s_sleep 64")
    a.label("L_ffn_z1")
    a(f"global_load_dword v{hT+1}, v{hT+4}, {sr(sDBG)} offset:64 sc0 sc1")
    a("s_waitcnt vmcnt(0)")
    a(f"v_cmp_eq_u32 vcc, 0, v{hT+1}")
    a(f"s_cbranch_vccnz L_ffn_z")
    a(f"s_lshl_b32 s{sT0+2}, s{sT0+9}, 6")
    a(f"s_add_u32 s{sT0+2}, s{sT0+2}, {W_FFC}")
    a(f"v_mov_b32 v{hT}, s{sT0+2}")
    a(f"v_mov_b32 v{hT+1}, 1")
    a(f"s_mov_b64 exec, 1")
    a(f"global_atomic_add v{hT}, v{hT+1}, {sr(sWS)}")
    a(f"s_mov_b64 exec, -1")
    a.label("L_ffn_poll")
    a(f"s_sleep {p.fsleep}")
    a(f"global_load_dword v{hT+1}, v{hT}, {sr(sWS)} sc0 sc1")
    a("s_waitcnt vmcnt(0)")
    a(f"v_cmp_ne_u32 vcc, 4, v{hT+1}")
    a(f"s_cbranch_vccnz L_ffn_poll")
    a(f"v_lshlrev_b32 v{hT+2}, 4, v0")
    a(f"v_add_u32 v{hT+3}, s{sT0+1}, v{hT+2}")
    for cc in range(4):
        a(f"global_load_dwordx4 {vr(hT+8+4*cc)}, v{hT+3}, {sr(sWS)} offset:{cc*1024} sc0 sc1")
    a("s_waitcnt vmcnt(0)")
    for cc in range(1, 4):
        for e in range(4):
            a(f"v_add_f32 v{hT+8+e}, v{hT+8+e}, v{hT+8+4*cc+e}")
    a(f"ds_write_b128 v{hT+2}, {vr(hT+8)} offset:{L_GA}")
    a(f"v_mov_b32 v{hT+1}, 1")
    a("s_waitcnt lgkmcnt(0)")
    a(f"ds_write_b32 v{hT+4}, v{hT+1} offset:{L_FG}")
    a.label("L_ffn_wait")
    a("s_sleep 8")
    a(f"ds_read_b32 v{hT+1}, v{hT+4} offset:{L_FG}")
    a("s_waitcnt lgkmcnt(0)")
    a(f"v_cmp_eq_u32 vcc, 0, v{hT+1}")
    a(f"s_cbranch_vccnz L_ffn_wait")
    a(f"s_lshl_b32 s{sT0}, s{sHW}, 7")
    a(f"v_lshlrev_b32 v{hT+2}, 5, v3")
    a(f"v_add_u32 v{hT+2}, s{sT0}, v{hT+2}")
    U = hT + 8
    for i in range(2):
        a(f"ds_read_b128 {vr(hP+4*i)}, v{hT+2} offset:{L_GA+16*i}")
        a(f"ds_read_b128 {vr(U+4*i)}, v{hT+2} offset:{L_UA+16*i}")
    a("s_waitcnt lgkmcnt(0)")
    a(f"s_mov_b32 s{sT0}, {f32bits(-math.log2(math.e)):#x}")
    a("s_waitcnt vmcnt(0)")
    for n in range(8):
        g_, u_ = hP + n, U + n
        a(f"v_mul_f32 v{hT}, s{sT0}, v{g_}")
        a(f"v_exp_f32 v{hT}, v{hT}")
        a("s_nop 0")
        a(f"v_add_f32 v{hT}, 1.0, v{hT}")
        a(f"v_rcp_f32 v{hT}, v{hT}")
        a("s_nop 0")
        a(f"v_mul_f32 v{hT}, v{hT}, v{g_}")
        a(f"v_mul_f32 v{hT}, v{hT}, v{u_}")
        a(f"v_cvt_pk_bf16_f32 v{hT+1}, v{hT}, v{hT}")
        a(f"v_and_b32 v{hT+1}, 0xffff0000, v{hT+1}")
        a(f"v_sub_f32 v{hT+2}, v{hT}, v{hT+1}")
        a(f"v_cvt_pk_bf16_f32 v{g_}, v{hT+1}, v{hT+2}")
    a(f"s_mov_b32 s{SRD_W}, s{sW2}"); a(f"s_mov_b32 s{SRD_W+1}, s{sW2+1}")
    a(f"s_mov_b32 s{SRD_W+2}, {1792*1024}")
    a(f"v_lshlrev_b32 v{hVO}, 13, v3")
    a(f"v_lshl_add_u32 v{hVO}, v2, 4, v{hVO}")
    a(f"s_lshl_b32 s{sT0}, s{sJ}, 17")
    a(f"s_lshl_b32 s{sT0+2}, s{sHW}, 15")
    a(f"s_add_u32 s{sT0}, s{sT0}, s{sT0+2}")
    a(f"s_lshl_b32 s{sT0+2}, s{sC}, 8")
    a(f"s_add_u32 s{sT0}, s{sT0}, s{sT0+2}")
    paced_gemv(1024, True, hD, p.dF, 8)
    a("s_nop 7")
    for r in range(4):
        a(f"v_add_f32_dpp v{hD+r}, v{hD+r}, v{hD+r} row_ror:8 row_mask:0xf bank_mask:0xf")
    emit_y_addr(a, hT+4, hDA, sT0+4, sB, sC)
    emit_atomic_y(a, hD, hT+4, sWS, sT0+6)
    a.label("L_h_noffn")
    stamp(3)

    a(f"s_lshl_b32 s{sT0}, s{sHW}, 2")
    a(f"v_mov_b32 v{hT}, s{sT0}")
    a.label("L_pb_poll")
    a("s_sleep 16")
    a(f"ds_read_b32 v{hT+1}, v{hT} offset:{L_PB}")
    a("s_waitcnt lgkmcnt(0)")
    a(f"v_cmp_eq_u32 vcc, 0, v{hT+1}")
    a(f"s_cbranch_vccnz L_pb_poll")
    a(f"s_mov_b32 s{SRD_W}, s{sWO}"); a(f"s_mov_b32 s{SRD_W+1}, s{sWO+1}")
    a(f"s_mov_b32 s{SRD_W+2}, 0x400000")
    a(f"v_lshlrev_b32 v{hVO}, 10, v3")
    a(f"v_lshl_add_u32 v{hVO}, v2, 4, v{hVO}")
    a(f"s_lshl_b32 s{sT0}, s{sH}, 17")
    a(f"s_lshl_b32 s{sT0+2}, s{sHW}, 8")
    a(f"s_add_u32 s{sT0}, s{sT0}, s{sT0+2}")
    a(f"s_lshl_b32 s{sT0+3}, s{sHW}, 15")
    a(f"s_add_u32 s{sT0+3}, s{sT0+3}, {L_KB}")
    for n in range(0 if p.nowo else 32):
        if n >= p.dW:
            a(f"s_waitcnt vmcnt({p.dW-1})")
        a(f"s_add_u32 m0, s{sT0+3}, {n*1024}")
        a("s_nop 0")
        a(f"buffer_load_dwordx4 v{hVO}, {sr(SRD_W,4)}, s{sT0} offen {p.wflags} lds")
        a(f"s_add_u32 s{sT0}, s{sT0}, 4096")
    a(f"v_lshrrev_b32 v{hT}, 2, v2")
    a(f"v_lshlrev_b32 v{hT}, 8, v{hT}")
    a(f"v_and_b32 v{hT+1}, 3, v2")
    a(f"v_lshl_add_u32 v{hT}, v{hT+1}, 3, v{hT}")
    a(f"v_lshl_add_u32 v{hT}, v3, 11, v{hT}")
    a(f"v_add_u32 v{hT}, s{sT0+3}, v{hT}")
    a("s_waitcnt vmcnt(0)")
    for ct in range(8):
        for ks in range(4):
            for hf in range(2):
                a(f"ds_read_b64_tr_b16 v[{hW + (ct*4+ks)*4 + 2*hf}:{hW + (ct*4+ks)*4 + 2*hf + 1}], v{hT} offset:{(32*ks + 4*hf)*256 + ct*32}")
        a("s_waitcnt lgkmcnt(0)")
    stamp(4)

    if p.ctl:
        a(f"s_cmp_lg_u32 s{sHW}, 2")
        a(f"s_cbranch_scc1 L_h_noctl")
        emit_wait_flag(a, "ctl", sDBG, hT)
        a(f"s_lshl_b32 s{sT0}, s2, 2")
        a(f"s_add_u32 s{sT0}, s{sT0}, {W_PR}")
        a(f"v_mov_b32 v{hT+2}, s{sT0}")
        a(f"s_and_b32 s{sT0+1}, s{sT0}, 0xffffffe0")
        a(f"v_and_b32 v{hT+3}, 7, v0")
        a(f"v_lshlrev_b32 v{hT+3}, 2, v{hT+3}")
        a(f"v_add_u32 v{hT+3}, s{sT0+1}, v{hT+3}")
        a(f"v_mov_b32 v{hT}, 0")
        a.label("L_ctl_loop")
        a(f"s_sleep {p.csleep}")
        a(f"ds_read_b32 v{hT+4}, v{hT} offset:{L_VP}")
        a("s_waitcnt lgkmcnt(0)")
        a(f"v_add_u32 v{hT+5}, 1, v{hT+4}")
        a(f"s_mov_b64 exec, 1")
        a(f"global_store_dword v{hT+2}, v{hT+5}, {sr(sWS)} sc0 sc1")
        a(f"s_mov_b64 exec, -1")
        a(f"global_load_dword v{hT+6}, v{hT+3}, {sr(sWS)} sc0 sc1")
        a("s_waitcnt vmcnt(0)")
        a(f"v_cmp_ne_u32 vcc, 0, v{hT+6}")
        a(f"v_mov_b32 v{hT+7}, 0")
        a(f"v_add_u32 v{hT+8}, {p.cdelta}, v{hT+5}")
        a(f"v_cndmask_b32 v{hT+7}, v{hT+7}, v{hT+8}, vcc")
        a(f"v_sub_u32 v{hT+6}, v{hT+6}, v{hT+7}")
        for ctrl in ("quad_perm:[1,0,3,2]", "quad_perm:[2,3,0,1]", "row_half_mirror"):
            a("s_nop 1")
            a(f"v_add_u32_dpp v{hT+6}, v{hT+6}, v{hT+6} {ctrl} row_mask:0xf bank_mask:0xf")
        a(f"v_cmp_lt_i32 vcc, 0, v{hT+6}")
        a(f"v_mov_b32 v{hT+7}, 0")
        a("s_nop 0")
        a(f"v_cndmask_b32 v{hT+7}, v{hT+7}, 1, vcc")
        a(f"ds_write_b32 v{hT}, v{hT+7} offset:{L_MD}")
        a(f"v_cmp_gt_u32 vcc, {32 - p.GE}, v{hT+4}")
        a(f"s_cbranch_vccnz L_ctl_loop")
        a.label("L_h_noctl")

    if p.noml: a("s_branch L_h_noml")
    a(f"s_cmp_lg_u32 s{sHW}, 0")
    a(f"s_cbranch_scc1 L_h_noml")
    a(f"v_mov_b32 v{hT}, 0")
    a.label("L_ml_poll")
    a("s_sleep 16")
    a(f"ds_read_b128 {vr(hT+4)}, v{hT} offset:{L_KF}")
    a("s_waitcnt lgkmcnt(0)")
    a(f"v_and_b32 v{hT+4}, v{hT+4}, v{hT+5}")
    a(f"v_and_b32 v{hT+6}, v{hT+6}, v{hT+7}")
    a(f"v_and_b32 v{hT+4}, v{hT+4}, v{hT+6}")
    a(f"v_cmp_eq_u32 vcc, 1, v{hT+4}")
    a(f"s_cbranch_vccz L_ml_poll")
    a(f"ds_read_b128 {vr(hT+4)}, v{hT} offset:{L_ML}")
    a(f"ds_read_b128 {vr(hT+8)}, v{hT} offset:{L_ML+16}")
    a("s_waitcnt lgkmcnt(0)")
    m = [hT+4, hT+6, hT+8, hT+10]; l = [hT+5, hT+7, hT+9, hT+11]
    MC, LC = hT+12, hT+13
    a(f"v_max_f32 v{MC}, v{m[0]}, v{m[1]}")
    a(f"v_max3_f32 v{MC}, v{MC}, v{m[2]}, v{m[3]}")
    for k in range(4):
        a(f"v_sub_f32 v{hT+16+k}, v{m[k]}, v{MC}")
    for k in range(4):
        a(f"v_exp_f32 v{hT+16+k}, v{hT+16+k}")
    a("s_nop 0")
    a(f"v_mul_f32 v{LC}, v{l[0]}, v{hT+16}")
    for k in range(1, 4):
        a(f"v_fmac_f32 v{LC}, v{l[k]}, v{hT+16+k}")
    a(f"s_lshl_b32 s{sT0}, s{sBH}, 5")
    a(f"s_lshl_b32 s{sT0+1}, s{sC}, 3")
    a(f"s_add_u32 s{sT0+1}, s{sT0+1}, s{sT0}")
    a(f"s_add_u32 s{sT0+1}, s{sT0+1}, {W_ML}")
    a(f"v_mov_b32 v{hT+20}, s{sT0+1}")
    a(f"s_lshr_b32 s{sT0+2}, s{sBH}, 3")
    a(f"s_lshl_b32 s{sT0+2}, s{sT0+2}, 2")
    a(f"s_add_u32 s{sT0+2}, s{sT0+2}, 32")
    a(f"s_and_b32 s{sT0+3}, s{sBH}, 7")
    a(f"s_lshl_b32 s{sT0+3}, s{sT0+3}, 2")
    a(f"s_lshl_b32 s{sT0+4}, 1, s{sT0+3}")
    a(f"v_mov_b32 v{hT+21}, s{sT0+2}")
    a(f"v_mov_b32 v{hT+22}, s{sT0+4}")
    a(f"s_mov_b64 exec, 1")
    a(f"global_store_dwordx2 v{hT+20}, v[{MC}:{LC}], {sr(sWS)} sc0 sc1")
    a("s_waitcnt vmcnt(0)")
    a(f"global_atomic_add v{hT+21}, v{hT+22}, {sr(sDBG)}")
    a(f"s_mov_b64 exec, -1")
    a.label("L_vp_poll")
    a("s_sleep 32")
    a(f"ds_read_b32 v{hT+23}, v{hT} offset:{L_VP}")
    a("s_waitcnt lgkmcnt(0)")
    a(f"v_cmp_gt_u32 vcc, {p.vsig}, v{hT+23}")
    a(f"s_cbranch_vccnz L_vp_poll")
    a.label("L_grp_poll")
    a(f"global_load_dword v{hT+23}, v{hT+21}, {sr(sDBG)} sc0 sc1")
    a("s_waitcnt vmcnt(0)")
    a(f"v_lshrrev_b32 v{hT+25}, s{sT0+3}, v{hT+23}")
    a(f"v_and_b32 v{hT+25}, 7, v{hT+25}")
    a(f"v_and_b32 v{hT+23}, 8, v{hT+23}")
    a(f"v_or_b32 v{hT+23}, v{hT+23}, v{hT+25}")
    a(f"v_cmp_eq_u32 vcc, 12, v{hT+23}")
    a(f"s_cbranch_vccnz L_grp_done")
    a("s_sleep 64")
    a("s_branch L_grp_poll")
    a.label("L_grp_done")
    a(f"v_and_b32 v{hT+24}, 3, v0")
    a(f"v_lshlrev_b32 v{hT+24}, 3, v{hT+24}")
    a(f"s_add_u32 s{sT0}, s{sT0}, {W_ML}")
    a(f"v_add_u32 v{hT+24}, s{sT0}, v{hT+24}")
    a(f"global_load_dwordx2 v[{hT+26}:{hT+27}], v{hT+24}, {sr(sWS)} sc0 sc1")
    a("s_waitcnt vmcnt(0)")
    GM, GL = hT+28, hT+29
    a(f"v_max_f32_dpp v{GM}, v{hT+26}, v{hT+26} quad_perm:[1,0,3,2] row_mask:0xf bank_mask:0xf")
    a("s_nop 1")
    a(f"v_max_f32_dpp v{GM}, v{GM}, v{GM} quad_perm:[2,3,0,1] row_mask:0xf bank_mask:0xf")
    a("s_nop 1")
    a(f"v_sub_f32 v{GL}, v{hT+26}, v{GM}")
    a(f"v_exp_f32 v{GL}, v{GL}")
    a("s_nop 0")
    a(f"v_mul_f32 v{GL}, v{GL}, v{hT+27}")
    a("s_nop 1")
    a(f"v_add_f32_dpp v{GL}, v{GL}, v{GL} quad_perm:[1,0,3,2] row_mask:0xf bank_mask:0xf")
    a("s_nop 1")
    a(f"v_add_f32_dpp v{GL}, v{GL}, v{GL} quad_perm:[2,3,0,1] row_mask:0xf bank_mask:0xf")
    a("s_nop 1")
    a(f"v_rcp_f32 v{GL}, v{GL}")
    for k in range(4):
        a(f"v_sub_f32 v{hT+16+k}, v{m[k]}, v{GM}")
    for k in range(4):
        a(f"v_exp_f32 v{hT+16+k}, v{hT+16+k}")
    a("s_nop 0")
    for k in range(4):
        a(f"v_mul_f32 v{hT+16+k}, v{hT+16+k}, v{GL}")
    a(f"ds_write_b128 v{hT}, {vr(hT+16)} offset:{L_F}")
    a(f"v_mov_b32 v{hT+30}, 1")
    a("s_waitcnt lgkmcnt(0)")
    a(f"ds_write_b32 v{hT}, v{hT+30} offset:{L_FR}")
    a.label("L_h_noml")
    a(f"s_and_b32 s{sT0+4}, s2, {NREP-1}")
    a(f"s_lshl_b32 s{sT0+4}, s{sT0+4}, 12")
    a(f"s_lshl_b32 s{sT0+5}, s{sB}, 11")
    a(f"s_add_u32 s{sT0+4}, s{sT0+4}, s{sT0+5}")
    a(f"s_lshl_b32 s{sT0+5}, s{sHW}, 9")
    a(f"s_add_u32 s{sT0+4}, s{sT0+4}, s{sT0+5}")
    a(f"v_lshrrev_b32 v{hT+40}, 1, v3")
    a(f"v_lshlrev_b32 v{hT+40}, 6, v{hT+40}")
    a(f"v_lshl_add_u32 v{hT+40}, v2, 2, v{hT+40}")
    a(f"v_add_u32 v{hT+40}, s{sT0+4}, v{hT+40}")
    a(f"v_and_b32 v{hT+41}, 7, v2")
    a(f"v_lshlrev_b32 v{hT+41}, 8, v{hT+41}")
    a(f"v_lshl_add_u32 v{hT+41}, v3, 4, v{hT+41}")
    a(f"s_mov_b32 s{sT0+6}, 0"); a(f"s_mov_b32 s{sT0+7}, -1")
    a(f"v_mov_b32 v{hT+42}, 0")
    a("s_waitcnt vmcnt(0) lgkmcnt(0)")
    stamp(5)
    a("s_barrier")
    stamp(6)
    AF = hP
    for ks in range(4):
        a(f"ds_read_b128 {vr(AF+4*ks)}, v{hT+41} offset:{L_OA + ks*64}")
    DD = hT
    for ks in range(4):
        a(f"s_waitcnt lgkmcnt({3-ks})")
        for ct in range(8):
            a(f"v_mfma_f32_16x16x32_bf16 {vr(DD+4*ct)}, {vr(AF+4*ks)}, {vr(hW+(ct*4+ks)*4)}, {'0' if ks == 0 else vr(DD+4*ct)}")
    for ct in range(8):
        if ct == 0: a("s_nop 3")
        a(f"v_add_f32 v{DD+4*ct}, v{DD+4*ct}, v{DD+4*ct+1}")
        a(f"v_add_f32 v{DD+4*ct+2}, v{DD+4*ct+2}, v{DD+4*ct+3}")
    for ct in range(8):
        a(f"v_add_f32 v{DD+4*ct}, v{DD+4*ct}, v{DD+4*ct+2}")
    for pr in range(4):
        a(f"v_cndmask_b32 v{DD+8*pr}, v{DD+8*pr}, v{DD+8*pr+4}, {sr(sT0+6)}")
        a(f"global_atomic_add_f32 v{hT+40}, v{DD+8*pr}, {sr(sWS)} offset:{pr*128}")
    a("s_waitcnt vmcnt(0)")
    stamp(7)
    a("s_barrier")
    a(f"s_cmp_lg_u32 s{sHW}, 0")
    a(f"s_cbranch_scc1 L_h_noarr")
    a(f"s_lshr_b32 s{sT0}, s2, 4")
    a(f"s_lshl_b32 s{sT0}, s{sT0}, 8")
    a(f"s_add_u32 s{sT0}, s{sT0}, {W_CNT}")
    a(f"v_mov_b32 v{hT}, s{sT0}")
    a(f"v_mov_b32 v{hT+1}, 1")
    a(f"s_mov_b64 exec, 1")
    a(f"global_atomic_add v{hT}, v{hT+1}, {sr(sWS)}")
    a(f"s_mov_b64 exec, -1")
    a.label("L_h_noarr")
    a(f"s_cmp_lg_u32 s2, 0")
    a(f"s_cbranch_scc1 L_hend")
    a(f"v_and_b32 v{hT}, {NCNT-1}, v0")
    a(f"v_lshlrev_b32 v{hT}, 8, v{hT}")
    a(f"v_add_u32 v{hT}, {W_CNT}, v{hT}")
    a(f"s_lshl_b32 s{sT0}, s{sHW}, 9")
    a(f"v_lshlrev_b32 v{hT+1}, 3, v0")
    a(f"v_add_u32 v{hT+1}, s{sT0}, v{hT+1}")
    a(f"global_load_dwordx2 v[{hT+4}:{hT+5}], v{hT+1}, {sr(sX)}")
    a(f"v_lshlrev_b32 v{hT+3}, 1, v{hT+1}")
    a.label("L_fin_poll")
    a(f"global_load_dword v{hT+2}, v{hT}, {sr(sWS)} sc0 sc1")
    a("s_waitcnt vmcnt(0)")
    a(f"v_cmp_ne_u32 vcc, {256//NCNT}, v{hT+2}")
    a(f"s_cbranch_vccnz L_fin_poll")
    stamp(8)
    for rep in range(NREP):
        a(f"global_load_dwordx4 {vr(hW + rep*4)}, v{hT+3}, {sr(sWS)} sc0 sc1")
        a(f"v_add_u32 v{hT+3}, 4096, v{hT+3}")
    a(f"v_lshlrev_b32 v{hT+8}, 16, v{hT+4}")
    a(f"v_and_b32 v{hT+9}, 0xffff0000, v{hT+4}")
    a(f"v_lshlrev_b32 v{hT+10}, 16, v{hT+5}")
    a(f"v_and_b32 v{hT+11}, 0xffff0000, v{hT+5}")
    for rep in range(NREP):
        a(f"s_waitcnt vmcnt({NREP-1-rep})")
        for e in range(4):
            a(f"v_add_f32 v{hT+8+e}, v{hT+8+e}, v{hW+rep*4+e}")
    a(f"v_cvt_pk_bf16_f32 v{hT+12}, v{hT+8}, v{hT+9}")
    a(f"v_cvt_pk_bf16_f32 v{hT+13}, v{hT+10}, v{hT+11}")
    a(f"global_store_dwordx2 v{hT+1}, v[{hT+12}:{hT+13}], {sr(sOUT)}")
    a.label("L_hend")
    stamp(9)
    dump_stamps(10, hT)
    a.label("L_end")
    a("s_endpgm")

    kd = f""".section .rodata,"a"
.p2align 6
.amdhsa_kernel {NAME}
  .amdhsa_next_free_vgpr 256
  .amdhsa_next_free_sgpr 102
  .amdhsa_accum_offset 256
  .amdhsa_group_segment_fixed_size 0
  .amdhsa_kernarg_size 96
  .amdhsa_user_sgpr_count 2
  .amdhsa_user_sgpr_kernarg_segment_ptr 1
  .amdhsa_system_sgpr_workgroup_id_x 1
.end_amdhsa_kernel
"""
    txt = HEADER + f"; @launch grid=(256,1,1) block=(512,1,1) lds={lds_bytes(p.NL)}\n"
    txt += f'.amdgcn_target "amdgcn-amd-amdhsa--gfx950"\n.text\n.globl {NAME}\n.p2align 8\n.type {NAME},@function\n'
    txt += a.text() + kd
    return txt

def emit_selectors(a, vSEL, vT):
    a(f"v_lshrrev_b32 v{vT}, 3, v2")
    a(f"v_mul_u32_u24 v{vT}, 0x0202, v{vT}")
    a(f"v_add_u32 v{vT}, 0x0100, v{vT}")
    a(f"v_lshlrev_b32 v{vT+1}, 16, v{vT}")
    a(f"v_or_b32 v{vT+1}, 0x0c0c, v{vT+1}")
    a(f"v_or_b32 v{vT}, 0x0c0c0000, v{vT}")
    a(f"v_and_b32 v{vT+2}, 1, v2")
    a(f"v_cmp_eq_u32 vcc, 1, v{vT+2}")
    a("s_nop 1")
    a(f"v_cndmask_b32 v{vT}, v{vT}, v{vT+1}, vcc")
    a(f"v_bfe_u32 v{vT+2}, v2, 1, 2")
    a(f"v_mov_b32 v{vT+1}, 0x0c0c0c0c")
    for r in range(4):
        a(f"v_cmp_eq_u32 vcc, {r}, v{vT+2}")
        a("s_nop 1")
        a(f"v_cndmask_b32 v{vSEL+r}, v{vT+1}, v{vT}, vcc")

def wave_allreduce_add(a, v, sT):
    a("s_nop 1")
    a(f"v_add_f32_dpp v{v}, v{v}, v{v} quad_perm:[1,0,3,2] row_mask:0xf bank_mask:0xf")
    a("s_nop 1")
    a(f"v_add_f32_dpp v{v}, v{v}, v{v} quad_perm:[2,3,0,1] row_mask:0xf bank_mask:0xf")
    a("s_nop 1")
    a(f"v_add_f32_dpp v{v}, v{v}, v{v} row_half_mirror row_mask:0xf bank_mask:0xf")
    a("s_nop 1")
    a(f"v_add_f32_dpp v{v}, v{v}, v{v} row_mirror row_mask:0xf bank_mask:0xf")
    a("s_nop 1")
    for k in range(4):
        a(f"v_readlane_b32 s{sT+k}, v{v}, {16*k}")
    a("s_nop 1")
    a(f"v_mov_b32 v{v}, s{sT}")
    a(f"v_add_f32 v{v}, s{sT+1}, v{v}")
    a(f"v_add_f32 v{v}, s{sT+2}, v{v}")
    a(f"v_add_f32 v{v}, s{sT+3}, v{v}")

def emit_wait_flag(a, tag, sDBG, vT):
    a(f"v_mov_b32 v{vT}, 0")
    a(f"s_branch L_flag1_{tag}")
    a.label(f"L_flag_{tag}")
    a("s_sleep 48")
    a.label(f"L_flag1_{tag}")
    a(f"global_load_dword v{vT+1}, v{vT}, s[{sDBG}:{sDBG+1}] offset:4 sc0 sc1")
    a("s_waitcnt vmcnt(0)")
    a(f"v_cmp_eq_u32 vcc, 0, v{vT+1}")
    a(f"s_cbranch_vccnz L_flag_{tag}")

def emit_y_addr(a, vaddr, hDA, sT, sB, sHW):
    a(f"s_and_b32 s{sT}, s2, {NREP-1}")
    a(f"s_lshl_b32 s{sT}, s{sT}, 12")
    a(f"s_lshl_b32 s{sT+1}, s{sB}, 11")
    a(f"s_add_u32 s{sT}, s{sT}, s{sT+1}")
    a(f"s_lshl_b32 s{sT+1}, s{sHW}, 9")
    a(f"s_add_u32 s{sT}, s{sT}, s{sT+1}")
    a(f"v_add_u32 v{vaddr}, s{sT}, v{hDA}")

def emit_atomic_y(a, D, vaddr, sWS, sTmp):
    a(f"s_mov_b32 s{sTmp}, 0x00ff00ff"); a(f"s_mov_b32 s{sTmp+1}, 0x00ff00ff")
    a(f"s_mov_b64 exec, s[{sTmp}:{sTmp+1}]")
    for r in range(4):
        a(f"global_atomic_add_f32 v{vaddr}, v{D+r}, s[{sWS}:{sWS+1}] offset:{r*32}")
    a(f"s_mov_b64 exec, -1")

if __name__ == "__main__":
    out = sys.argv[1] if len(sys.argv) > 1 else OUT
    if out == "-": out = OUT
    for kv in sys.argv[2:]:
        k, v = kv.split("=", 1)
        cur = getattr(P, k)
        setattr(P, k, (v == "1") if isinstance(cur, bool) else type(cur)(v))
    open(out, "w").write(gen())
    print("wrote", out)
```

```python
import sys, os, math, struct

NAME = "parallel_sum__mha_block_cached__glu_gated_swiglu__decode_kernel"
OUT = "parallel_sum__mha_block_cached__glu_gated_swiglu__decode.s"

HEADER = """; Kernarg layout for this problem (96 bytes, ptrs only, base s[0:1]):
"""

class P:
    d = 5
    dA = 5
    NR = 48
    NL = 32
    NB = 64
    dQ = 3
    dF = 1
    dW = 3
    kvflags = "nt"
    wflags = ""
    stamps = False
    stampset = 'A'
    noffn = False
    nowo = False
    noml = False
    dE = 7
    prio = 0
    vtouch = False
    fmap = True
    dA0 = 5
    nA0 = 0
    fsleep = 120
    ctl = False
    cdelta = 1
    csleep = 64
    wmap = 3
    GE = 8
    vsig = 22

class Asm:
    def __init__(self):
        self.L = []
    def __call__(self, s):
        self.L.append("    " + s)
    def label(self, s):
        self.L.append(s + ":")
    def c(self, s):
        self.L.append("    ; " + s)
    def text(self):
        return "\n".join(self.L) + "\n"

def vr(b, n=4):
    return f"v[{b}:{b+n-1}]"
def sr(b, n=2):
    return f"s[{b}:{b+n-1}]"
def f32bits(x):
    return struct.unpack("<I", struct.pack("<f", x))[0]

RS = 1040
L_ST = 0
L_XP = 16640
L_QP = L_XP + 8192
L_Z = L_QP + 2048
L_ML = L_Z
L_KF = L_Z + 32
L_F = L_Z + 64
L_VP = L_Z + 80
L_FC = L_Z + 96
L_FR = L_Z + 100
L_FI = L_Z + 104
L_PB = L_Z + 112
L_FG = L_Z + 132
L_FS = L_Z + 136
L_MD = L_Z + 128
L_GA = L_Z + 512
L_UA = L_Z + 1024
L_OA = L_Z + 2048
L_KB = L_OA + 2048
def lds_bytes(NL): return (L_KB + 4 * NL * 1024 + 255) // 256 * 256

W_ACC = 0
NREP = 8
W_CNT = 32768
NCNT = 16
W_FF = 40960
W_ML = W_FF + 28*4096
W_PR = 32768 + 4096
W_FFC = 32768 + 4096
ZERO_BYTES = 32768 + 4096 + 2048

SCALE = (128 ** -0.5) * math.log2(math.e)

def gen(p=P):
    a = Asm()
    d = p.d
    NR, NL, NB = p.NR, p.NL, p.NB
    NS = NR + NL
    def stamp(k, which="A"):
        if p.stamps and p.stampset == which:
            a(f"s_memrealtime s[{82+2*k}:{83+2*k}]")
    def dump_stamps(n, vtmp):
        if not p.stamps: return
        a("s_waitcnt lgkmcnt(0)")
        a(f"s_lshl_b32 s81, s2, 3")
        a(f"s_add_u32 s81, s81, s3")
        a(f"s_lshl_b32 s81, s81, 6")
        a(f"s_add_u32 s81, s81, 0x100000")
        a(f"v_mov_b32 v{vtmp}, s81")
        a("s_mov_b64 exec, 1")
        for k in range(n):
            a(f"v_mov_b32 v{vtmp+1}, s{82+2*k}")
            a(f"global_store_dword v{vtmp}, v{vtmp+1}, s[30:31] offset:{4*k}")
        a("s_mov_b64 exec, -1")
    sX, sK, sV, sWQ, sWO, sW1, sW3, sW2, sOUT, sDBG, sWS = 8, 10, 12, 14, 16, 20, 22, 24, 26, 28, 30
    sH, sB, sC, sBH = 32, 33, 34, 35
    SRD_K, SRD_V, SRD_W = 36, 40, 44
    sSUB = 48
    sLB = 54
    sM0 = 56
    sCUR, sNXT = 64, 65
    sHW, sK8, sFIRST = 66, 67, 81
    sT0 = 68
    sWV = 3

    a.label(NAME)
    a(f"s_cmp_ge_u32 s2, 256")
    a(f"s_cbranch_scc1 L_end")
    a(f"s_load_dwordx16 s[8:23], s[0:1], 0")
    a(f"s_load_dwordx8 s[24:31], s[0:1], 64")
    a(f"v_lshrrev_b32 v1, 6, v0")
    a(f"v_and_b32 v0, 63, v0")
    a(f"v_readfirstlane_b32 s{sWV}, v1")
    if p.wmap == 0:
        a(f"s_and_b32 s{sH}, s2, 31")
        a(f"s_bfe_u32 s{sB}, s2, 0x10005")
        a(f"s_lshr_b32 s{sC}, s2, 6")
    elif p.wmap == 1:
        a(f"s_and_b32 s{sC}, s2, 1")
        a(f"s_lshl_b32 s{sC}, s{sC}, 1")
        a(f"s_bfe_u32 s{sB}, s2, 0x10003")
        a(f"s_or_b32 s{sC}, s{sC}, s{sB}")
        a(f"s_bfe_u32 s{sH}, s2, 0x30004")
        a(f"s_lshl_b32 s{sH}, s{sH}, 2")
        a(f"s_bfe_u32 s{sB}, s2, 0x20001")
        a(f"s_or_b32 s{sH}, s{sH}, s{sB}")
        a(f"s_lshr_b32 s{sB}, s2, 7")
    elif p.wmap == 3:
        a(f"s_bfe_u32 s{sC}, s2, 0x20003")
        a(f"s_and_b32 s{sH}, s2, 3")
        a(f"s_bfe_u32 s{sB}, s2, 0x20005")
        a(f"s_lshl_b32 s{sB}, s{sB}, 2")
        a(f"s_or_b32 s{sH}, s{sH}, s{sB}")
        a(f"s_bfe_u32 s{sB}, s2, 0x10002")
        a(f"s_lshl_b32 s{sB}, s{sB}, 4")
        a(f"s_or_b32 s{sH}, s{sH}, s{sB}")
        a(f"s_lshr_b32 s{sB}, s2, 7")
    elif p.wmap == 2:
        a(f"s_and_b32 s{sC}, s2, 3")
        a(f"s_bfe_u32 s{sH}, s2, 0x50002")
        a(f"s_lshr_b32 s{sB}, s2, 7")
    elif p.wmap == 5:
        a(f"s_bfe_u32 s{sC}, s2, 0x20003")
        a(f"s_bfe_u32 s{sH}, s2, 0x30005")
        a(f"s_and_b32 s{sB}, s2, 3")
        a(f"s_lshl_b32 s{sB}, s{sB}, 3")
        a(f"s_or_b32 s{sH}, s{sH}, s{sB}")
        a(f"s_bfe_u32 s{sB}, s2, 0x10002")
    a(f"s_lshl_b32 s{sBH}, s{sB}, 5")
    a(f"s_add_u32 s{sBH}, s{sBH}, s{sH}")
    a(f"v_and_b32 v2, 15, v0")
    a(f"v_lshrrev_b32 v3, 4, v0")
    stamp(0); stamp(0, "S")
    a(f"s_cmp_ge_u32 s{sWV}, 4")
    a(f"s_cbranch_scc1 L_helper")

    vKO0, vKO1, vVO0, vVO1 = 4, 5, 6, 7
    vSA, vSR, vMR, vL = 8, 9, 10, 11
    vX0, vX1, vMN, vA, vE0, vE1, vMW, vPG = 12, 13, 14, 15, 16, 17, 18, 19
    vD, vD2, vSEL = 20, 24, 28
    vBQ = 32
    vBT, vS0, vS1, vP = 32, 36, 44, 52
    vPA = 56
    vLB = 1
    vT = 56
    vSL = 64

    if p.prio: a(f"s_setprio {p.prio}")
    t0, t1, t2 = vX0, vX1, vMN
    a(f"v_lshrrev_b32 v{t0}, 2, v2")
    a(f"v_and_b32 v{t1}, 3, v2")
    a(f"v_lshlrev_b32 v{t0}, 8, v{t0}")
    a(f"v_lshlrev_b32 v{t1}, 4, v{t1}")
    a(f"v_lshlrev_b32 v{t2}, 6, v3")
    a(f"v_add3_u32 v{vKO0}, v{t0}, v{t1}, v{t2}")
    a(f"s_lshl_b32 s{sT0}, s{sWV}, 13")
    a(f"s_lshl_b32 s{sT0+1}, s{sBH}, 2")
    a(f"s_add_u32 s{sT0+1}, s{sT0+1}, s{sC}")
    a(f"s_lshl_b32 s{sT0+1}, s{sT0+1}, 20")
    a(f"v_add_u32 v{vKO0}, s{sT0}, v{vKO0}")
    a(f"v_add_u32 v{vKO1}, 0x1000, v{vKO0}")
    a(f"s_mov_b32 s{SRD_K+2}, 0x100000")
    a(f"s_mov_b32 s{SRD_K+3}, 0x00020000")
    a(f"s_mov_b32 s{sCUR}, 0")
    a(f"s_waitcnt lgkmcnt(0)")
    stamp(1, "S")
    a(f"s_add_u32 s{SRD_K}, s{sK}, s{sT0+1}")
    a(f"s_addc_u32 s{SRD_K+1}, s{sK+1}, 0")

    G0K = (NS + 16) // 8
    assert NS % 16 == 0 and NR >= 32 and NL % 8 == 0
    def slot(i):
        if i < NR: return vSL + 4 * i
        if i < NS: return vSL + 4 * (16 + ((i - NR) % 16))
        if i < 8 * G0K: return vSL + 4 * (i % 16)
        return vSL + 4 * (i % 8)
    def kimm(i):
        ii = i & 7
        return (vKO1 if ii >= 4 else vKO0), (ii & 3) * 1024
    def kload(i, soff):
        vo, imm = kimm(i)
        if NR <= i < NS:
            c = (i - NR) * 1024 - imm
            a(f"s_add_u32 m0, s{sLB}, {c & 0xffffffff:#x}")
            a("s_nop 0")
            a(f"buffer_load_dwordx4 v{vo}, {sr(SRD_K,4)}, {soff} offen offset:{imm} {p.kvflags} lds")
        else:
            a(f"buffer_load_dwordx4 {vr(slot(i))}, v{vo}, {sr(SRD_K,4)}, {soff} offen offset:{imm} {p.kvflags}")
    def vload(i, soff):
        ii = i & 7
        vo = vVO1 if ii >= 4 else vVO0
        imm = (ii & 3) * 1024
        a(f"buffer_load_dwordx4 {vr(vSL + 4*ii)}, v{vo}, {sr(SRD_V,4)}, {soff} offen offset:{imm} {p.kvflags}")
    cur_grp = [0]
    def kload_u(i):
        g = i >> 3
        if g != cur_grp[0]:
            assert g == cur_grp[0] + 1
            a(f"s_add_u32 s{sCUR}, s{sCUR}, 32768")
            cur_grp[0] = g
        kload(i, f"s{sCUR}")

    def setup1():
        a(f"s_add_u32 s{SRD_V}, s{sV}, s{sT0+1}")
        a(f"s_addc_u32 s{SRD_V+1}, s{sV+1}, 0")
        a(f"s_mov_b32 s{SRD_V+2}, 0x100000")
        a(f"s_mov_b32 s{SRD_V+3}, 0x00020000")
        a(f"v_lshlrev_b32 v{vVO0}, 4, v0")
        a(f"v_add_u32 v{vVO0}, s{sT0}, v{vVO0}")
        a(f"v_add_u32 v{vVO1}, 0x1000, v{vVO0}")
        a(f"s_mul_i32 s{sLB}, s{sWV}, {NL*1024}")
        a(f"s_add_u32 s{sLB}, s{sLB}, {L_KB}")
        for k in range(1, 4):
            mk = 0x11111111 << k
            a(f"s_mov_b32 s{sSUB+2*(k-1)}, {mk:#x}"); a(f"s_mov_b32 s{sSUB+2*(k-1)+1}, {mk:#x}")
        for m in range(4):
            mk = 0x000f000f << (4 * m)
            a(f"s_mov_b32 s{sM0+2*m}, {mk:#x}"); a(f"s_mov_b32 s{sM0+2*m+1}, {mk:#x}")
    def setup2():
        a(f"s_mul_i32 s{sT0}, s{sWV}, {4*RS}")
        a(f"v_mul_u32_u24 v{vSR}, {RS}, v3")
        a(f"v_add_u32 v{vSR}, s{sT0}, v{vSR}")
        a(f"v_lshrrev_b32 v{t1}, 2, v2")
        a(f"v_lshl_add_u32 v{vSA}, v{t1}, 2, v{vSR}")
        a(f"v_mov_b32 v{vMR}, 0xff7fffff")
        a(f"v_mov_b32 v{vL}, 0")
        a(f"v_and_b32 v1, 3, v2")
        a(f"v_lshlrev_b32 v1, 5, v1")
        a(f"v_lshl_add_u32 v1, v3, 7, v1")
    def setup3():
        emit_selectors(a, vSEL, t0)
    qa, qb = vD, vX0
    bchunks = []
    def b_read(hw):
        def f():
            dst = qa if hw == 0 else qb
            for hf in range(2):
                a(f"ds_read_b128 {vr(dst + 4*hf)}, v1 offset:{L_QP + hw*512 + hf*16}")
        return f
    def b_add():
        a("s_waitcnt lgkmcnt(0)")
        for e in range(8):
            a(f"v_add_f32 v{qa+e}, v{qa+e}, v{qb+e}")
    def b_scale():
        a(f"s_mov_b32 s{sT0}, {f32bits(SCALE):#x}")
        for e in range(8):
            a(f"v_mul_f32 v{qa+e}, s{sT0}, v{qa+e}")
    def b_split(r):
        def f():
            q0, q1 = qa + 2*r, qa + 2*r + 1
            H, h0, h1, Lp = qb, qb+1, qb+2, qb+3
            a(f"v_cvt_pk_bf16_f32 v{H}, v{q0}, v{q1}")
            a(f"v_lshlrev_b32 v{h0}, 16, v{H}")
            a(f"v_and_b32 v{h1}, 0xffff0000, v{H}")
            a(f"v_sub_f32 v{h0}, v{q0}, v{h0}")
            a(f"v_sub_f32 v{h1}, v{q1}, v{h1}")
            a(f"v_cvt_pk_bf16_f32 v{Lp}, v{h0}, v{h1}")
            for m in range(4):
                a(f"v_cndmask_b32 v{vBQ + (m*2+0)*4 + r}, 0, v{H}, {sr(sM0+2*m)}")
                a(f"v_cndmask_b32 v{vBQ + (m*2+1)*4 + r}, 0, v{Lp}, {sr(sM0+2*m)}")
        return f
    def seq(*fs):
        def f():
            for g_ in fs: g_()
        return f
    bchunks = [seq(b_read(0), b_read(1)), seq(b_add, b_read(2)), seq(b_add, b_read(3)), seq(b_add, b_scale),
               b_split(0), b_split(1), b_split(2), b_split(3)]

    for i in range(NS):
        if i == NB:
            stamp(1); stamp(5, "S")
            a("s_barrier")
            stamp(2); stamp(6, "S")
        dcur = p.dA0 if i < p.nA0 else p.dA
        if i >= dcur:
            a(f"s_waitcnt vmcnt({dcur-1})")
        if i == p.dA: stamp(3, "S")
        if i == 16: stamp(4, "S")
        kload_u(i)
        if i == p.dA - 1: stamp(2, "S"); setup1()
        if i == p.dA: setup2()
        if i == p.dA + 1: setup3()
        if i >= NB and bchunks:
            bchunks.pop(0)()
    if NB >= NS:
        stamp(1); stamp(5, "S")
        a("s_barrier")
        stamp(2); stamp(6, "S")
    while bchunks:
        bchunks.pop(0)()
    a(f"v_lshlrev_b32 v{vLB}, 4, v0")
    a(f"v_add_u32 v{vLB}, s{sLB}, v{vLB}")
    stamp(3); stamp(7, "S")

    def kconsume(i):
        ii = i & 7
        m = ii & 3
        D = vD if ii < 4 else vD2
        for hl in range(2):
            b = vBQ + (m*2+hl)*4
            c = "0" if (m == 0 and hl == 0) else vr(D)
            a(f"v_mfma_f32_16x16x32_bf16 {vr(D)}, {vr(slot(i))}, {vr(b)}, {c}")
    def kpost():
        a("s_nop 7")
        for X_, D in ((vX0, vD), (vX1, vD2)):
            a(f"v_cndmask_b32 v{X_}, v{D}, v{D+1}, {sr(sSUB)}")
            a(f"v_cndmask_b32 v{X_}, v{X_}, v{D+2}, {sr(sSUB+2)}")
            a(f"v_cndmask_b32 v{X_}, v{X_}, v{D+3}, {sr(sSUB+4)}")
        a("s_nop 0")
        a(f"v_add_f32_dpp v{vX0}, v{vX0}, v{vX0} quad_perm:[1,0,3,2] row_mask:0xf bank_mask:0xf")
        a(f"v_add_f32_dpp v{vX1}, v{vX1}, v{vX1} quad_perm:[1,0,3,2] row_mask:0xf bank_mask:0xf")
        a("s_nop 1")
        a(f"v_add_f32_dpp v{vX0}, v{vX0}, v{vX0} quad_perm:[2,3,0,1] row_mask:0xf bank_mask:0xf")
        a(f"v_add_f32_dpp v{vX1}, v{vX1}, v{vX1} quad_perm:[2,3,0,1] row_mask:0xf bank_mask:0xf")
        a(f"v_max3_f32 v{vMN}, v{vMR}, v{vX0}, v{vX1}")
        a(f"ds_write_b32 v{vSA}, v{vX0} offset:{L_ST}")
        a(f"ds_write_b32 v{vSA}, v{vX1} offset:{L_ST+16}")
        a(f"v_sub_f32 v{vA}, v{vMR}, v{vMN}")
        a(f"v_sub_f32 v{vE0}, v{vX0}, v{vMN}")
        a(f"v_sub_f32 v{vE1}, v{vX1}, v{vMN}")
        a(f"v_exp_f32 v{vA}, v{vA}")
        a(f"v_exp_f32 v{vE0}, v{vE0}")
        a(f"v_exp_f32 v{vE1}, v{vE1}")
        a(f"v_mov_b32 v{vMR}, v{vMN}")
        a(f"v_add_u32 v{vSA}, 32, v{vSA}")
        a(f"v_fma_f32 v{vL}, v{vL}, v{vA}, v{vE0}")
        a(f"v_add_f32 v{vL}, v{vL}, v{vE1}")

    issued = NS
    def lds_fetch(grp):
        for ii in range(8):
            i = grp * 8 + ii
            a(f"ds_read_b128 {vr(slot(i))}, v{vLB} offset:{(i-NR)*1024}")
    for grp in range(G0K):
        nxt = grp + 1
        is_lds = NR <= grp * 8 < NS
        if is_lds:
            a("s_waitcnt lgkmcnt(0)")
        if NR <= nxt * 8 < NS and nxt * 8 + 7 < issued:
            a(f"s_waitcnt vmcnt({min(issued - 1 - (nxt*8+7), 63)})")
            lds_fetch(nxt)
        for ii in range(8):
            i = grp * 8 + ii
            if not is_lds:
                oa = issued - 1 - i
                if oa < p.dA + d + 12:
                    a(f"s_waitcnt vmcnt({min(oa, 63)})")
            if i >= NS and i + d >= issued:
                a(f"s_waitcnt vmcnt({min(d-1, issued - 1 - i)})")
                kload_u(issued); issued += 1
            kconsume(i)
        kpost()
        if grp * 8 + 7 < NS:
            a(f"s_waitcnt vmcnt({d-1})")
            kload_u(issued); issued += 1
    assert issued == 8 * G0K + d, (issued, 8 * G0K + d)
    a(f"s_lshl_b32 s{sT0}, s{sWV}, 2")
    a(f"v_mov_b32 v{vA}, s{sT0}")
    a(f"v_mov_b32 v{vE0}, 1")
    a(f"ds_write_b32 v{vA}, v{vE0} offset:{L_PB}")
    stamp(4)
    ngA = G0K
    vDB = vSL + 4 * 8
    SETS = {0: (vD, vD2), 1: (vDB, vDB + 4)}
    def kconsume2(ii, st):
        m = ii & 3
        D = SETS[st][0 if ii < 4 else 1]
        for hl in range(2):
            b = vBQ + (m*2+hl)*4
            c = "0" if (m == 0 and hl == 0) else vr(D)
            a(f"v_mfma_f32_16x16x32_bf16 {vr(D)}, {vr(vSL + 4*ii)}, {vr(b)}, {c}")
    def post_piece(k, st):
        Da, Db = SETS[st]
        if k == 0 or k == 1:
            X_, D = ((vX0, Da), (vX1, Db))[k]
            a(f"v_cndmask_b32 v{X_}, v{D}, v{D+1}, {sr(sSUB)}")
            a(f"v_cndmask_b32 v{X_}, v{X_}, v{D+2}, {sr(sSUB+2)}")
            a(f"v_cndmask_b32 v{X_}, v{X_}, v{D+3}, {sr(sSUB+4)}")
        elif k == 2 or k == 3:
            qp = "[1,0,3,2]" if k == 2 else "[2,3,0,1]"
            a(f"v_add_f32_dpp v{vX0}, v{vX0}, v{vX0} quad_perm:{qp} row_mask:0xf bank_mask:0xf")
            a(f"v_add_f32_dpp v{vX1}, v{vX1}, v{vX1} quad_perm:{qp} row_mask:0xf bank_mask:0xf")
        elif k == 4:
            a(f"v_max3_f32 v{vMN}, v{vMR}, v{vX0}, v{vX1}")
            a(f"ds_write_b32 v{vSA}, v{vX0} offset:{L_ST}")
            a(f"ds_write_b32 v{vSA}, v{vX1} offset:{L_ST+16}")
        elif k == 5:
            a(f"v_sub_f32 v{vA}, v{vMR}, v{vMN}")
            a(f"v_sub_f32 v{vE0}, v{vX0}, v{vMN}")
            a(f"v_sub_f32 v{vE1}, v{vX1}, v{vMN}")
        elif k == 6:
            a(f"v_exp_f32 v{vA}, v{vA}")
            a(f"v_exp_f32 v{vE0}, v{vE0}")
            a(f"v_exp_f32 v{vE1}, v{vE1}")
            a(f"v_mov_b32 v{vMR}, v{vMN}")
            a(f"v_add_u32 v{vSA}, 32, v{vSA}")
        elif k == 7:
            a(f"v_fma_f32 v{vL}, v{vL}, v{vA}, v{vE0}")
            a(f"v_add_f32 v{vL}, v{vL}, v{vE1}")
    def kgroup(st, prev, last=False):
        for ii in range(8):
            a(f"s_waitcnt vmcnt({d-1})")
            n = ii + d
            if n < 8:
                kload(8*G0K + n, f"s{sCUR}")
            elif last:
                vload(n & 7, "0")
            else:
                kload(8*G0K + 8 + (n & 7), f"s{sNXT}")
            kconsume2(ii, st)
            if prev is not None:
                post_piece(ii, prev)
    def kadv():
        a(f"s_mov_b32 s{sCUR}, s{sNXT}")
        a(f"s_add_u32 s{sNXT}, s{sNXT}, 32768")
    a(f"s_mov_b32 s{sCUR}, {ngA*32768}")
    a(f"s_mov_b32 s{sNXT}, {(ngA+1)*32768}")
    assert ngA % 2 == 0
    kgroup(0, None); kadv()
    a.label("L_kloop")
    kgroup(1, 0); kadv()
    kgroup(0, 1); kadv()
    a(f"s_cmp_lt_u32 s{sCUR}, {31*32768}")
    a(f"s_cbranch_scc1 L_kloop")
    kgroup(1, 0, last=True)
    a("s_nop 7")
    for k in range(8):
        post_piece(k, 1)
        if k in (1, 2): a("s_nop 1")
    a("s_nop 1")
    a(f"v_max_f32_dpp v{vMN}, v{vMR}, v{vMR} row_half_mirror row_mask:0xf bank_mask:0xf")
    a("s_nop 1")
    a(f"v_max_f32_dpp v{vMN}, v{vMN}, v{vMN} row_mirror row_mask:0xf bank_mask:0xf")
    a("s_nop 1")
    for k in range(4):
        a(f"v_readlane_b32 s{sT0+k}, v{vMN}, {16*k}")
    a("s_nop 1")
    a(f"v_mov_b32 v{vMW}, s{sT0}")
    a(f"v_max_f32 v{vMW}, s{sT0+1}, v{vMW}")
    a(f"v_max_f32 v{vMW}, s{sT0+2}, v{vMW}")
    a(f"v_max_f32 v{vMW}, s{sT0+3}, v{vMW}")
    a(f"v_sub_f32 v{vA}, v{vMR}, v{vMW}")
    a(f"v_exp_f32 v{vA}, v{vA}")
    a("s_nop 0")
    a(f"v_mul_f32 v{vL}, v{vL}, v{vA}")
    a("s_nop 1")
    a(f"v_add_f32_dpp v{vL}, v{vL}, v{vL} row_half_mirror row_mask:0xf bank_mask:0xf")
    a("s_nop 1")
    a(f"v_add_f32_dpp v{vL}, v{vL}, v{vL} row_mirror row_mask:0xf bank_mask:0xf")
    a("s_nop 1")
    for k in range(4):
        a(f"v_readlane_b32 s{sT0+k}, v{vL}, {16*k}")
    a("s_nop 1")
    a(f"v_mov_b32 v{vL}, s{sT0}")
    a(f"v_add_f32 v{vL}, s{sT0+1}, v{vL}")
    a(f"v_add_f32 v{vL}, s{sT0+2}, v{vL}")
    a(f"v_add_f32 v{vL}, s{sT0+3}, v{vL}")
    a(f"s_lshl_b32 s{sT0}, s{sWV}, 3")
    a(f"v_mov_b32 v{vT}, s{sT0}")
    a(f"v_mov_b32 v{vT+2}, v{vMW}")
    a(f"v_mov_b32 v{vT+3}, v{vL}")
    a(f"ds_write_b64 v{vT}, v[{vT+2}:{vT+3}] offset:{L_ML}")
    a(f"s_lshl_b32 s{sT0}, s{sWV}, 2")
    a(f"v_mov_b32 v{vPA}, s{sT0}")
    a(f"v_mov_b32 v{vT+4}, 1")
    a("s_waitcnt lgkmcnt(0)")
    a(f"ds_write_b32 v{vPA}, v{vT+4} offset:{L_KF}")
    stamp(5)
    for r in range(4):
        a(f"v_mov_b32 v{vD+r}, 0")
        a(f"v_mov_b32 v{vD2+r}, 0")
    a(f"v_mov_b32 v{vPG}, 0")
    a(f"ds_read_b128 {vr(vS0)}, v{vSR} offset:{L_ST}")
    a(f"ds_read_b128 {vr(vS0+4)}, v{vSR} offset:{L_ST+16}")
    a(f"v_add_u32 v{vSR}, 32, v{vSR}")
    def vconsume(ii, S):
        t, hi, lo, Pk = vP, vP+1, vP+2, vP+3
        a(f"v_sub_f32 v{t}, v{S+ii}, v{vMW}")
        a(f"v_exp_f32 v{t}, v{t}")
        a("s_nop 0")
        a(f"v_and_b32 v{hi}, 0xffff0000, v{t}")
        a(f"v_sub_f32 v{lo}, v{t}, v{hi}")
        a(f"v_cvt_pk_bf16_f32 v{Pk}, v{hi}, v{lo}")
        for r in range(4):
            a(f"v_perm_b32 v{vBT+r}, v{Pk}, v{Pk}, v{vSEL+r}")
        a("s_nop 1")
        D = vD if (ii & 1) == 0 else vD2
        a(f"v_mfma_f32_16x16x32_bf16 {vr(D)}, {vr(vSL+4*ii)}, {vr(vBT)}, {vr(D)}")
    def vgroup(S, Sn, dc, dprev=None):
        a("s_waitcnt lgkmcnt(0)")
        a(f"ds_read_b128 {vr(Sn)}, v{vSR} offset:{L_ST}")
        a(f"ds_read_b128 {vr(Sn+4)}, v{vSR} offset:{L_ST+16}")
        a(f"v_add_u32 v{vSR}, 32, v{vSR}")
        for ii in range(8):
            if dprev is not None and dprev < dc and ii == 0:
                a(f"s_waitcnt vmcnt({dprev-1})")
                for n in range(dprev, dc + 1):
                    vload(n & 7, f"s{sCUR}" if n < 8 else f"s{sNXT}")
            elif dprev is not None and dprev > dc and ii + dc < dprev:
                a(f"s_waitcnt vmcnt({dprev-1-ii})")
            else:
                n = ii + dc
                a(f"s_waitcnt vmcnt({dc-1})")
                vload(n & 7, f"s{sCUR}" if n < 8 else f"s{sNXT}")
            vconsume(ii, S)
    def adv():
        a(f"s_mov_b32 s{sCUR}, s{sNXT}")
        a(f"s_add_u32 s{sNXT}, s{sNXT}, 32768")
    a(f"s_mov_b32 s{sCUR}, 0")
    a(f"s_mov_b32 s{sNXT}, 32768")
    dE, GE = p.dE, p.GE
    assert GE % 2 == 0 and GE >= 4
    G0 = 32 - GE
    vMD = vT + 1; vZ = vT + 2
    a(f"v_mov_b32 v{vZ}, 0")
    def vpair(d1, dprev, tag):
        a(f"v_add_u32 v{vPG}, 2, v{vPG}")
        a(f"ds_write_b32 v{vPA}, v{vPG} offset:{L_VP}")
        if p.ctl: a(f"ds_read_b32 v{vMD}, v{vZ} offset:{L_MD}")
        vgroup(vS0, vS1, d1, dprev); adv()
        vgroup(vS1, vS0, d1); adv()
        if p.ctl: a(f"v_readfirstlane_b32 s{sT0}, v{vMD}")
        a(f"s_cmp_ge_u32 s{sCUR}, {G0*32768}")
        a(f"s_cbranch_scc1 L_vend_{'L' if d1 == d else 'H'}")
    if p.ctl:
        assert dE > d
        a.label("L_vL")
        vpair(d, None, "LL")
        a(f"s_cmp_eq_u32 s{sT0}, 0")
        a(f"s_cbranch_scc1 L_vL")
        a.label("L_vLH")
        vpair(dE, d, "LH")
        a(f"s_cmp_eq_u32 s{sT0}, 0")
        a(f"s_cbranch_scc1 L_vHL")
        a.label("L_vH")
        vpair(dE, None, "HH")
        a(f"s_cmp_lg_u32 s{sT0}, 0")
        a(f"s_cbranch_scc1 L_vH")
        a.label("L_vHL")
        vpair(d, dE, "HL")
        a(f"s_cmp_eq_u32 s{sT0}, 0")
        a(f"s_cbranch_scc1 L_vL")
        a(f"s_branch L_vLH")
        a.label("L_vend_H")
        vgroup(vS0, vS1, dE); adv()
        vgroup(vS1, vS0, dE); adv()
        a("s_branch L_vend_J")
    else:
        a.label("L_vL")
        vpair(d, None, "LL")
        a(f"s_branch L_vL")
    a.label("L_vend_L")
    vgroup(vS0, vS1, dE, d); adv()
    vgroup(vS1, vS0, dE); adv()
    a.label("L_vend_J")
    if GE > 4:
        a.label("L_vloop2")
        for half in range(2):
            vgroup(vS0 if half == 0 else vS1, vS1 if half == 0 else vS0, dE)
            adv()
        a(f"s_cmp_lt_u32 s{sCUR}, {30*32768}")
        a(f"s_cbranch_scc1 L_vloop2")
    vgroup(vS0, vS1, dE)
    a(f"s_mov_b32 s{sCUR}, s{sNXT}")
    a("s_waitcnt lgkmcnt(0)")
    for ii in range(8):
        n = ii + dE
        issued_before = min(ii + dE, 8)
        a(f"s_waitcnt vmcnt({issued_before - 1 - ii})")
        if n < 8:
            vload(n, f"s{sCUR}")
        vconsume(ii, vS1)
    stamp(6)
    a(f"v_mov_b32 v{vT}, 0")
    a.label("L_fr_poll")
    a(f"ds_read_b32 v{vT+1}, v{vT} offset:{L_FR}")
    a(f"s_lshl_b32 s{sT0}, s{sWV}, 2")
    a(f"v_mov_b32 v{vT+2}, s{sT0}")
    a(f"ds_read_b32 v{vT+3}, v{vT+2} offset:{L_F}")
    a("s_waitcnt lgkmcnt(0)")
    a(f"v_cmp_eq_u32 vcc, 0, v{vT+1}")
    a(f"s_cbranch_vccnz L_fr_poll")
    a(f"v_and_b32 v{vT}, 7, v2")
    a(f"v_lshlrev_b32 v{vT}, 1, v{vT}")
    a(f"v_lshl_add_u32 v{vT}, v3, 6, v{vT}")
    a(f"v_lshrrev_b32 v{vT+1}, 3, v2")
    a(f"v_lshl_add_u32 v{vT}, v{vT+1}, 8, v{vT}")
    a(f"s_lshl_b32 s{sT0}, s{sWV}, 9")
    a(f"v_add_u32 v{vT}, s{sT0}, v{vT}")
    a(f"s_mov_b32 s{sT0+2}, 0xff00ff00"); a(f"s_mov_b32 s{sT0+3}, 0xff00ff00")
    for r in range(4):
        a(f"v_add_f32 v{vD+r}, v{vD+r}, v{vD2+r}")
    a("s_nop 1")
    for r in range(4):
        a(f"v_add_f32_dpp v{vD+r}, v{vD+r}, v{vD+r} row_ror:8 row_mask:0xf bank_mask:0xf")
    for r in range(4):
        a(f"v_mul_f32 v{vD+r}, v{vD+r}, v{vT+3}")
    for r in range(4):
        H, hf_, lo = vD2, vD2+1, vD2+2
        a(f"v_cvt_pk_bf16_f32 v{H}, v{vD+r}, v{vD+r}")
        a(f"v_and_b32 v{hf_}, 0xffff0000, v{H}")
        a(f"v_sub_f32 v{lo}, v{vD+r}, v{hf_}")
        a(f"v_cvt_pk_bf16_f32 v{lo}, v{lo}, v{lo}")
        a(f"v_cndmask_b32 v{lo}, v{H}, v{lo}, {sr(sT0+2)}")
        a(f"ds_write_b16 v{vT}, v{lo} offset:{L_OA + r*16}")
    a("s_waitcnt lgkmcnt(0)")
    a("s_barrier")
    stamp(7)
    dump_stamps(8, vT)
    a("s_endpgm")

    a.label("L_helper")
    hSEL = 4
    hB = 8
    hD = 12
    hP = 16
    hT = 48
    hVO = 96
    hDA = 98
    hG = 100
    hW = 128
    a(f"s_sub_u32 s{sHW}, s{sWV}, 4")
    a(f"v_lshlrev_b32 v{hT}, 4, v0")
    a(f"s_lshl_b32 s{sT0}, s{sB}, 10")
    a(f"s_mov_b32 s{SRD_W+2}, 0x400000"); a(f"s_mov_b32 s{SRD_W+3}, 0x00020000")
    a(f"v_lshlrev_b32 v{hVO}, 18, v3")
    a(f"v_lshl_add_u32 v{hVO}, v2, 4, v{hVO}")
    if p.wmap == 0:
        a(f"s_lshr_b32 s{sK8}, s2, 5")
    elif p.wmap == 5:
        a(f"s_lshl_b32 s{sK8}, s{sC}, 1")
    elif p.wmap == 3:
        a(f"s_lshl_b32 s{sK8}, s{sB}, 2")
        a(f"s_add_u32 s{sK8}, s{sK8}, s{sC}")
    else:
        a(f"s_lshl_b32 s{sK8}, s{sB}, 2")
        a(f"s_and_b32 s{sT0+1}, s{sC}, 1")
        a(f"s_lshl_b32 s{sT0+1}, s{sT0+1}, 1")
        a(f"s_add_u32 s{sK8}, s{sK8}, s{sT0+1}")
        a(f"s_lshr_b32 s{sT0+1}, s{sC}, 1")
        a(f"s_add_u32 s{sK8}, s{sK8}, s{sT0+1}")
    a("s_waitcnt lgkmcnt(0)")
    stamp(1, "S")
    a(f"s_add_u32 s{sT0+2}, s{sX}, s{sT0}")
    a(f"s_addc_u32 s{sT0+3}, s{sX+1}, 0")
    a(f"global_load_dwordx4 {vr(hT+4)}, v{hT}, {sr(sT0+2)}")
    a(f"s_mov_b32 s{SRD_W}, s{sWQ}"); a(f"s_mov_b32 s{SRD_W+1}, s{sWQ+1}")
    a(f"s_lshl_b32 s{sT0}, s{sHW}, 20")
    a(f"s_lshl_b32 s{sT0+1}, s{sH}, 8")
    a(f"s_add_u32 s{sT0}, s{sT0}, s{sT0+1}")

    def gemv_step(W, Pk, first, D=hD):
        for r in range(4):
            a(f"v_perm_b32 v{hB+r}, v{Pk}, v{Pk}, v{hSEL+r}")
        a("s_nop 1")
        a(f"v_mfma_f32_16x16x32_bf16 {vr(D)}, {vr(W)}, {vr(hB)}, {'0' if first else vr(D)}")

    X, S, Q = hT + 8, hT + 16, hT + 24
    sR = sT0 + 4
    chunks = []
    def chunk(f): chunks.append(f)
    def c_sel():
        emit_selectors(a, hSEL, hT+8)
    def c_clear():
        a(f"s_cmp_lg_u32 s{sHW}, 0")
        a(f"s_cbranch_scc1 L_h_noclr")
        for r in range(4): a(f"v_mov_b32 v{hT+8+r}, 0")
        a(f"ds_write_b128 v{hT}, {vr(hT+8)} offset:{L_Z}")
        a(f"ds_write_b128 v{hT}, {vr(hT+8)} offset:{L_Z+1024}")
        a.label("L_h_noclr")
        a(f"v_and_b32 v{hDA}, 7, v2")
        a(f"v_lshlrev_b32 v{hDA}, 2, v{hDA}")
        a(f"v_lshl_add_u32 v{hDA}, v3, 7, v{hDA}")
    def c_ln1():
        for r in range(4):
            a(f"v_lshlrev_b32 v{X+2*r}, 16, v{hT+4+r}")
            a(f"v_and_b32 v{X+2*r+1}, 0xffff0000, v{hT+4+r}")
        a(f"v_add_f32 v{S}, v{X}, v{X+1}")
        for e in range(2, 8):
            a(f"v_add_f32 v{S}, v{S}, v{X+e}")
    def c_ln2():
        wave_allreduce_add(a, S, sR)
    def c_ln3():
        a(f"v_mul_f32 v{S}, {f32bits(1.0/512):#x}, v{S}")
        for e in range(8):
            a(f"v_sub_f32 v{X+e}, v{X+e}, v{S}")
        a(f"v_mul_f32 v{S+1}, v{X}, v{X}")
        for e in range(1, 8):
            a(f"v_fmac_f32 v{S+1}, v{X+e}, v{X+e}")
    def c_ln4():
        wave_allreduce_add(a, S + 1, sR)
    def c_ln5():
        a(f"v_mov_b32 v{S+2}, {f32bits(1e-5):#x}")
        a(f"v_fmac_f32 v{S+2}, {f32bits(1.0/512):#x}, v{S+1}")
        a(f"v_sqrt_f32 v{S+2}, v{S+2}")
        a("s_nop 0")
        a(f"v_rcp_f32 v{S+2}, v{S+2}")
        a("s_nop 0")
        for e in range(8):
            a(f"v_mul_f32 v{X+e}, v{X+e}, v{S+2}")
    def c_ln6(lo, hi):
        def f():
            for e in range(lo, hi):
                a(f"v_cvt_pk_bf16_f32 v{S+3}, v{X+e}, v{X+e}")
                a(f"v_and_b32 v{S+3}, 0xffff0000, v{S+3}")
                a(f"v_sub_f32 v{S+4}, v{X+e}, v{S+3}")
                a(f"v_cvt_pk_bf16_f32 v{Q+e}, v{S+3}, v{S+4}")
        return f
    def c_ln7():
        a(f"s_lshl_b32 s{sR}, s{sHW}, 11")
        a(f"v_lshlrev_b32 v{hT+1}, 5, v0")
        a(f"v_add_u32 v{hT+1}, s{sR}, v{hT+1}")
        a(f"ds_write_b128 v{hT+1}, {vr(Q)} offset:{L_XP}")
        a(f"ds_write_b128 v{hT+1}, {vr(Q+4)} offset:{L_XP+16}")
        a(f"s_mul_i32 s{sR}, s{sHW}, {2048+512}")
        a(f"v_lshlrev_b32 v{hT+1}, 7, v3")
        a(f"v_add_u32 v{hT+1}, s{sR}, v{hT+1}")
    def c_ln8():
        a("s_waitcnt lgkmcnt(0)")
        for i in range(8):
            a(f"s_add_u32 s{sR}, s{sK8}, {i}")
            a(f"s_and_b32 s{sR}, s{sR}, 7")
            a(f"s_lshl_b32 s{sR}, s{sR}, 4")
            a(f"v_add_u32 v{hT+2}, s{sR}, v{hT+1}")
            a(f"ds_read_b128 {vr(hP+4*i)}, v{hT+2} offset:{L_XP}")
    def c_ln9():
        a("s_waitcnt lgkmcnt(0)")
        stamp(4, "S")
    pre = [c_sel, c_clear]
    post = [c_ln1, c_ln2, c_ln3, c_ln4, c_ln5, c_ln6(0, 4), c_ln6(4, 8), c_ln7, c_ln8, c_ln9]
    dQ = p.dQ
    next_gemv = 0
    for n in range(32):
        i, r = n >> 2, n & 3
        if n >= dQ:
            a(f"s_waitcnt vmcnt({dQ-1})")
            if n == dQ: stamp(3, "S")
        if r == 0:
            a(f"s_add_u32 s{sT0+1}, s{sK8}, {i}")
            a(f"s_and_b32 s{sT0+1}, s{sT0+1}, 7")
            a(f"s_lshl_b32 s{sT0+1}, s{sT0+1}, 15")
            a(f"s_add_u32 s{sT0+1}, s{sT0+1}, s{sT0}")
        else:
            a(f"s_add_u32 s{sT0+1}, s{sT0+1}, 8192")
        a(f"buffer_load_dwordx4 {vr(hW+4*n)}, v{hVO}, {sr(SRD_W,4)}, s{sT0+1} offen {p.wflags}")
        if pre:
            pre.pop(0)()
        elif n >= dQ and post:
            post.pop(0)()
        elif n >= dQ:
            landed = n - dQ
            k = 0
            while next_gemv <= landed and k < 3:
                gemv_step(hW+4*next_gemv, hP+next_gemv, next_gemv == 0); next_gemv += 1; k += 1
    stamp(2, "S")
    assert not post
    while next_gemv < 32:
        a(f"s_waitcnt vmcnt({31-next_gemv})")
        gemv_step(hW+4*next_gemv, hP+next_gemv, next_gemv == 0); next_gemv += 1
    stamp(6, "S")
    a(f"s_lshl_b32 s{sT0}, s{sHW}, 9")
    a(f"v_add_u32 v{hT}, s{sT0}, v{hDA}")
    a("s_nop 7")
    for r in range(4):
        a(f"v_add_f32_dpp v{hD+r}, v{hD+r}, v{hD+r} row_ror:8 row_mask:0xf bank_mask:0xf")
    for r in range(4):
        a(f"ds_write_b32 v{hT}, v{hD+r} offset:{L_QP + r*32}")
    a("s_waitcnt lgkmcnt(0)")
    stamp(2); stamp(7, "S")
    a("s_barrier")

    def paced_gemv(stride, first, D, dF, cnt=32, Wb=None):
        Wb = hW if Wb is None else Wb
        def ld(n):
            a(f"buffer_load_dwordx4 {vr(Wb+4*n)}, v{hVO}, {sr(SRD_W,4)}, s{sT0} offen {p.wflags}")
            a(f"s_add_u32 s{sT0}, s{sT0}, {stride}")
        for n in range(min(dF, cnt)): ld(n)
        a("s_waitcnt lgkmcnt(0)")
        for n in range(cnt):
            a(f"s_waitcnt vmcnt({min(dF-1, cnt-1-n)})")
            if n + dF < cnt: ld(n + dF)
            gemv_step(Wb+4*n, hP+n, first and n == 0, D)

    a(f"s_cmp_lg_u32 s{sHW}, 1")
    a(f"s_cbranch_scc1 L_h_noinit")
    a(f"s_cmp_lg_u32 s2, 0")
    a(f"s_cbranch_scc1 L_h_noinit")
    for r in range(4):
        a(f"v_mov_b32 v{hT+4+r}, 0")
    a(f"v_lshlrev_b32 v{hT}, 4, v0")
    assert ZERO_BYTES % 2048 == 0
    a(f"s_mov_b32 s{sT0}, {ZERO_BYTES // 2048}")
    a.label("L_zero")
    a(f"global_store_dwordx4 v{hT}, {vr(hT+4)}, {sr(sWS)} sc0 sc1")
    a(f"global_store_dwordx4 v{hT}, {vr(hT+4)}, {sr(sWS)} offset:1024 sc0 sc1")
    a(f"v_add_u32 v{hT}, 2048, v{hT}")
    a(f"s_sub_u32 s{sT0}, s{sT0}, 1")
    a(f"s_cmp_lg_u32 s{sT0}, 0")
    a(f"s_cbranch_scc1 L_zero")
    a("s_waitcnt vmcnt(0)")
    a(f"v_lshlrev_b32 v{hT}, 2, v0")
    a(f"v_add_u32 v{hT}, 32, v{hT}")
    a(f"v_mov_b32 v{hT+1}, 8")
    a(f"v_mov_b32 v{hT+2}, 1")
    a(f"v_cmp_lt_u32 vcc, 7, v0")
    a("s_nop 1")
    a(f"v_cndmask_b32 v{hT+1}, v{hT+1}, v{hT+2}, vcc")
    a(f"s_mov_b64 exec, 0x1ff")
    a(f"global_atomic_add v{hT}, v{hT+1}, {sr(sDBG)}")
    a(f"s_mov_b64 exec, -1")
    a.label("L_h_noinit")

    if p.noffn: a("s_branch L_h_noffn")
    sJ = sFIRST
    if p.fmap:
        a(f"s_bitcmp1_b32 s{sH}, 3")
        a(f"s_cbranch_scc1 L_h_noffn")
        a(f"s_and_b32 s{sJ}, s{sH}, 7")
        a(f"s_lshr_b32 s{sT0}, s{sH}, 4")
        a(f"s_lshl_b32 s{sT0}, s{sT0}, 3")
        a(f"s_or_b32 s{sJ}, s{sJ}, s{sT0}")
    else:
        a(f"s_mov_b32 s{sJ}, s{sH}")
    a(f"s_cmp_ge_u32 s{sJ}, 14")
    a(f"s_cbranch_scc1 L_h_noffn")
    a(f"v_mul_u32_u24 v{hVO}, {8*3584}, v3")
    a(f"v_lshl_add_u32 v{hVO}, v2, 4, v{hVO}")
    a(f"s_lshl_b32 s{sT0+8}, s{sC}, 2")
    a(f"s_add_u32 s{sT0+8}, s{sT0+8}, s{sHW}")
    a(f"s_lshl_b32 s{sT0}, s{sHW}, 11")
    a(f"s_lshl_b32 s{sT0+1}, s{sT0+8}, 7")
    a(f"s_add_u32 s{sT0}, s{sT0}, s{sT0+1}")
    a(f"v_lshlrev_b32 v{hT+1}, 5, v3")
    a(f"v_add_u32 v{hT+1}, s{sT0}, v{hT+1}")
    for i in range(2):
        a(f"ds_read_b128 {vr(hP+4*i)}, v{hT+1} offset:{L_XP+16*i}")
    for mat, (sP, Lacc) in enumerate([(sW1, L_GA), (sW3, L_UA)]):
        a(f"s_mov_b32 s{SRD_W}, s{sP}"); a(f"s_mov_b32 s{SRD_W+1}, s{sP+1}")
        a(f"s_mov_b32 s{SRD_W+2}, {512*3584}")
        a(f"s_mul_i32 s{sT0}, s{sT0+8}, {32*3584}")
        a(f"s_lshl_b32 s{sT0+1}, s{sJ}, 8")
        a(f"s_add_u32 s{sT0}, s{sT0}, s{sT0+1}")
        paced_gemv(3584, True, hD, p.dF, 8)
        a("s_nop 7")
        for r in range(4):
            a(f"v_add_f32_dpp v{hD+r}, v{hD+r}, v{hD+r} row_ror:8 row_mask:0xf bank_mask:0xf")
        a(f"s_mov_b32 s{sT0+6}, 0x00ff00ff"); a(f"s_mov_b32 s{sT0+7}, 0x00ff00ff")
        a(f"s_mov_b64 exec, {sr(sT0+6)}")
        for r in range(4):
            a(f"ds_add_f32 v{hDA}, v{hD+r} offset:{Lacc + r*32}")
        a(f"s_mov_b64 exec, -1")
    a("s_waitcnt lgkmcnt(0)")
    a(f"v_mov_b32 v{hT}, 0")
    a(f"v_mov_b32 v{hT+1}, 1")
    a(f"s_mov_b64 exec, 1")
    a(f"ds_add_u32 v{hT}, v{hT+1} offset:{L_FC}")
    a(f"s_mov_b64 exec, -1")
    a.label("L_ffn_sync")
    a("s_sleep 4")
    a(f"ds_read_b32 v{hT+1}, v{hT} offset:{L_FC}")
    a("s_waitcnt lgkmcnt(0)")
    a(f"v_cmp_ne_u32 vcc, 4, v{hT+1}")
    a(f"s_cbranch_vccnz L_ffn_sync")
    a(f"s_lshl_b32 s{sT0}, s{sHW}, 8")
    a(f"v_lshlrev_b32 v{hT+2}, 2, v0")
    a(f"v_add_u32 v{hT+2}, s{sT0}, v{hT+2}")
    a(f"ds_read_b32 v{hT+3}, v{hT+2} offset:{L_GA}")
    a(f"s_mul_i32 s{sT0+9}, s{sB}, 14")
    a(f"s_add_u32 s{sT0+9}, s{sT0+9}, s{sJ}")
    a(f"s_lshl_b32 s{sT0+1}, s{sT0+9}, 12")
    a(f"s_add_u32 s{sT0+1}, s{sT0+1}, {W_FF}")
    a(f"s_lshl_b32 s{sT0+2}, s{sC}, 10")
    a(f"s_add_u32 s{sT0+2}, s{sT0+2}, s{sT0+1}")
    a(f"v_add_u32 v{hT+2}, s{sT0+2}, v{hT+2}")
    a("s_waitcnt lgkmcnt(0)")
    a(f"global_store_dword v{hT+2}, v{hT+3}, {sr(sWS)} sc0 sc1")
    a(f"v_mov_b32 v{hT+4}, 0")
    a(f"v_mov_b32 v{hT+1}, 1")
    a("s_waitcnt vmcnt(0)")
    a(f"s_mov_b64 exec, 1")
    a(f"ds_add_u32 v{hT+4}, v{hT+1} offset:{L_FS}")
    a(f"s_mov_b64 exec, -1")
    a(f"s_cmp_lg_u32 s{sHW}, 0")
    a(f"s_cbranch_scc1 L_ffn_wait")
    a.label("L_ffn_st")
    a("s_sleep 4")
    a(f"ds_read_b32 v{hT+1}, v{hT+4} offset:{L_FS}")
    a("s_waitcnt lgkmcnt(0)")
    a(f"v_cmp_ne_u32 vcc, 4, v{hT+1}")
    a(f"s_cbranch_vccnz L_ffn_st")
    a(f"s_branch L_ffn_z1")
    a.label("L_ffn_z")
    a("s_sleep 64")
    a.label("L_ffn_z1")
    a(f"global_load_dword v{hT+1}, v{hT+4}, {sr(sDBG)} offset:64 sc0 sc1")
    a("s_waitcnt vmcnt(0)")
    a(f"v_cmp_eq_u32 vcc, 0, v{hT+1}")
    a(f"s_cbranch_vccnz L_ffn_z")
    a(f"s_lshl_b32 s{sT0+2}, s{sT0+9}, 6")
    a(f"s_add_u32 s{sT0+2}, s{sT0+2}, {W_FFC}")
    a(f"v_mov_b32 v{hT}, s{sT0+2}")
    a(f"v_mov_b32 v{hT+1}, 1")
    a(f"s_mov_b64 exec, 1")
    a(f"global_atomic_add v{hT}, v{hT+1}, {sr(sWS)}")
    a(f"s_mov_b64 exec, -1")
    a.label("L_ffn_poll")
    a(f"s_sleep {p.fsleep}")
    a(f"global_load_dword v{hT+1}, v{hT}, {sr(sWS)} sc0 sc1")
    a("s_waitcnt vmcnt(0)")
    a(f"v_cmp_ne_u32 vcc, 4, v{hT+1}")
    a(f"s_cbranch_vccnz L_ffn_poll")
    a(f"v_lshlrev_b32 v{hT+2}, 4, v0")
    a(f"v_add_u32 v{hT+3}, s{sT0+1}, v{hT+2}")
    for cc in range(4):
        a(f"global_load_dwordx4 {vr(hT+8+4*cc)}, v{hT+3}, {sr(sWS)} offset:{cc*1024} sc0 sc1")
    a("s_waitcnt vmcnt(0)")
    for cc in range(1, 4):
        for e in range(4):
            a(f"v_add_f32 v{hT+8+e}, v{hT+8+e}, v{hT+8+4*cc+e}")
    a(f"ds_write_b128 v{hT+2}, {vr(hT+8)} offset:{L_GA}")
    a(f"v_mov_b32 v{hT+1}, 1")
    a("s_waitcnt lgkmcnt(0)")
    a(f"ds_write_b32 v{hT+4}, v{hT+1} offset:{L_FG}")
    a.label("L_ffn_wait")
    a("s_sleep 8")
    a(f"ds_read_b32 v{hT+1}, v{hT+4} offset:{L_FG}")
    a("s_waitcnt lgkmcnt(0)")
    a(f"v_cmp_eq_u32 vcc, 0, v{hT+1}")
    a(f"s_cbranch_vccnz L_ffn_wait")
    a(f"s_lshl_b32 s{sT0}, s{sHW}, 7")
    a(f"v_lshlrev_b32 v{hT+2}, 5, v3")
    a(f"v_add_u32 v{hT+2}, s{sT0}, v{hT+2}")
    U = hT + 8
    for i in range(2):
        a(f"ds_read_b128 {vr(hP+4*i)}, v{hT+2} offset:{L_GA+16*i}")
        a(f"ds_read_b128 {vr(U+4*i)}, v{hT+2} offset:{L_UA+16*i}")
    a("s_waitcnt lgkmcnt(0)")
    a(f"s_mov_b32 s{sT0}, {f32bits(-math.log2(math.e)):#x}")
    a("s_waitcnt vmcnt(0)")
    for n in range(8):
        g_, u_ = hP + n, U + n
        a(f"v_mul_f32 v{hT}, s{sT0}, v{g_}")
        a(f"v_exp_f32 v{hT}, v{hT}")
        a("s_nop 0")
        a(f"v_add_f32 v{hT}, 1.0, v{hT}")
        a(f"v_rcp_f32 v{hT}, v{hT}")
        a("s_nop 0")
        a(f"v_mul_f32 v{hT}, v{hT}, v{g_}")
        a(f"v_mul_f32 v{hT}, v{hT}, v{u_}")
        a(f"v_cvt_pk_bf16_f32 v{hT+1}, v{hT}, v{hT}")
        a(f"v_and_b32 v{hT+1}, 0xffff0000, v{hT+1}")
        a(f"v_sub_f32 v{hT+2}, v{hT}, v{hT+1}")
        a(f"v_cvt_pk_bf16_f32 v{g_}, v{hT+1}, v{hT+2}")
    a(f"s_mov_b32 s{SRD_W}, s{sW2}"); a(f"s_mov_b32 s{SRD_W+1}, s{sW2+1}")
    a(f"s_mov_b32 s{SRD_W+2}, {1792*1024}")
    a(f"v_lshlrev_b32 v{hVO}, 13, v3")
    a(f"v_lshl_add_u32 v{hVO}, v2, 4, v{hVO}")
    a(f"s_lshl_b32 s{sT0}, s{sJ}, 17")
    a(f"s_lshl_b32 s{sT0+2}, s{sHW}, 15")
    a(f"s_add_u32 s{sT0}, s{sT0}, s{sT0+2}")
    a(f"s_lshl_b32 s{sT0+2}, s{sC}, 8")
    a(f"s_add_u32 s{sT0}, s{sT0}, s{sT0+2}")
    paced_gemv(1024, True, hD, p.dF, 8)
    a("s_nop 7")
    for r in range(4):
        a(f"v_add_f32_dpp v{hD+r}, v{hD+r}, v{hD+r} row_ror:8 row_mask:0xf bank_mask:0xf")
    emit_y_addr(a, hT+4, hDA, sT0+4, sB, sC)
    emit_atomic_y(a, hD, hT+4, sWS, sT0+6)
    a.label("L_h_noffn")
    stamp(3)

    a(f"s_lshl_b32 s{sT0}, s{sHW}, 2")
    a(f"v_mov_b32 v{hT}, s{sT0}")
    a.label("L_pb_poll")
    a("s_sleep 16")
    a(f"ds_read_b32 v{hT+1}, v{hT} offset:{L_PB}")
    a("s_waitcnt lgkmcnt(0)")
    a(f"v_cmp_eq_u32 vcc, 0, v{hT+1}")
    a(f"s_cbranch_vccnz L_pb_poll")
    a(f"s_mov_b32 s{SRD_W}, s{sWO}"); a(f"s_mov_b32 s{SRD_W+1}, s{sWO+1}")
    a(f"s_mov_b32 s{SRD_W+2}, 0x400000")
    a(f"v_lshlrev_b32 v{hVO}, 10, v3")
    a(f"v_lshl_add_u32 v{hVO}, v2, 4, v{hVO}")
    a(f"s_lshl_b32 s{sT0}, s{sH}, 17")
    a(f"s_lshl_b32 s{sT0+2}, s{sHW}, 8")
    a(f"s_add_u32 s{sT0}, s{sT0}, s{sT0+2}")
    a(f"s_lshl_b32 s{sT0+3}, s{sHW}, 15")
    a(f"s_add_u32 s{sT0+3}, s{sT0+3}, {L_KB}")
    for n in range(0 if p.nowo else 32):
        if n >= p.dW:
            a(f"s_waitcnt vmcnt({p.dW-1})")
        a(f"s_add_u32 m0, s{sT0+3}, {n*1024}")
        a("s_nop 0")
        a(f"buffer_load_dwordx4 v{hVO}, {sr(SRD_W,4)}, s{sT0} offen {p.wflags} lds")
        a(f"s_add_u32 s{sT0}, s{sT0}, 4096")
    a(f"v_lshrrev_b32 v{hT}, 2, v2")
    a(f"v_lshlrev_b32 v{hT}, 8, v{hT}")
    a(f"v_and_b32 v{hT+1}, 3, v2")
    a(f"v_lshl_add_u32 v{hT}, v{hT+1}, 3, v{hT}")
    a(f"v_lshl_add_u32 v{hT}, v3, 11, v{hT}")
    a(f"v_add_u32 v{hT}, s{sT0+3}, v{hT}")
    a("s_waitcnt vmcnt(0)")
    for ct in range(8):
        for ks in range(4):
            for hf in range(2):
                a(f"ds_read_b64_tr_b16 v[{hW + (ct*4+ks)*4 + 2*hf}:{hW + (ct*4+ks)*4 + 2*hf + 1}], v{hT} offset:{(32*ks + 4*hf)*256 + ct*32}")
        a("s_waitcnt lgkmcnt(0)")
    stamp(4)
    if p.vtouch:
        a(f"s_cmp_lg_u32 s{sHW}, 1")
        a(f"s_cbranch_scc1 L_h_novt")
        a(f"s_lshl_b32 s{sT0}, s{sBH}, 2")
        a(f"s_add_u32 s{sT0}, s{sT0}, s{sC}")
        a(f"s_lshl_b32 s{sT0}, s{sT0}, 20")
        a(f"s_add_u32 s{sT0+2}, s{sV}, s{sT0}")
        a(f"s_addc_u32 s{sT0+3}, s{sV+1}, 0")
        a(f"v_lshlrev_b32 v{hT}, 14, v0")
        a(f"global_load_dword v{hT+1}, v{hT}, {sr(sT0+2)} nt")
        a.label("L_h_novt")

    if p.ctl:
        a(f"s_cmp_lg_u32 s{sHW}, 2")
        a(f"s_cbranch_scc1 L_h_noctl")
        emit_wait_flag(a, "ctl", sDBG, hT)
        a(f"s_lshl_b32 s{sT0}, s2, 2")
        a(f"s_add_u32 s{sT0}, s{sT0}, {W_PR}")
        a(f"v_mov_b32 v{hT+2}, s{sT0}")
        a(f"s_and_b32 s{sT0+1}, s{sT0}, 0xffffffe0")
        a(f"v_and_b32 v{hT+3}, 7, v0")
        a(f"v_lshlrev_b32 v{hT+3}, 2, v{hT+3}")
        a(f"v_add_u32 v{hT+3}, s{sT0+1}, v{hT+3}")
        a(f"v_mov_b32 v{hT}, 0")
        a.label("L_ctl_loop")
        a(f"s_sleep {p.csleep}")
        a(f"ds_read_b32 v{hT+4}, v{hT} offset:{L_VP}")
        a("s_waitcnt lgkmcnt(0)")
        a(f"v_add_u32 v{hT+5}, 1, v{hT+4}")
        a(f"s_mov_b64 exec, 1")
        a(f"global_store_dword v{hT+2}, v{hT+5}, {sr(sWS)} sc0 sc1")
        a(f"s_mov_b64 exec, -1")
        a(f"global_load_dword v{hT+6}, v{hT+3}, {sr(sWS)} sc0 sc1")
        a("s_waitcnt vmcnt(0)")
        a(f"v_cmp_ne_u32 vcc, 0, v{hT+6}")
        a(f"v_mov_b32 v{hT+7}, 0")
        a(f"v_add_u32 v{hT+8}, {p.cdelta}, v{hT+5}")
        a(f"v_cndmask_b32 v{hT+7}, v{hT+7}, v{hT+8}, vcc")
        a(f"v_sub_u32 v{hT+6}, v{hT+6}, v{hT+7}")
        for ctrl in ("quad_perm:[1,0,3,2]", "quad_perm:[2,3,0,1]", "row_half_mirror"):
            a("s_nop 1")
            a(f"v_add_u32_dpp v{hT+6}, v{hT+6}, v{hT+6} {ctrl} row_mask:0xf bank_mask:0xf")
        a(f"v_cmp_lt_i32 vcc, 0, v{hT+6}")
        a(f"v_mov_b32 v{hT+7}, 0")
        a("s_nop 0")
        a(f"v_cndmask_b32 v{hT+7}, v{hT+7}, 1, vcc")
        a(f"ds_write_b32 v{hT}, v{hT+7} offset:{L_MD}")
        a(f"v_cmp_gt_u32 vcc, {32 - p.GE}, v{hT+4}")
        a(f"s_cbranch_vccnz L_ctl_loop")
        a.label("L_h_noctl")

    if p.noml: a("s_branch L_h_noml")
    a(f"s_cmp_lg_u32 s{sHW}, 0")
    a(f"s_cbranch_scc1 L_h_noml")
    a(f"v_mov_b32 v{hT}, 0")
    a.label("L_ml_poll")
    a("s_sleep 16")
    a(f"ds_read_b128 {vr(hT+4)}, v{hT} offset:{L_KF}")
    a("s_waitcnt lgkmcnt(0)")
    a(f"v_and_b32 v{hT+4}, v{hT+4}, v{hT+5}")
    a(f"v_and_b32 v{hT+6}, v{hT+6}, v{hT+7}")
    a(f"v_and_b32 v{hT+4}, v{hT+4}, v{hT+6}")
    a(f"v_cmp_eq_u32 vcc, 1, v{hT+4}")
    a(f"s_cbranch_vccz L_ml_poll")
    a(f"ds_read_b128 {vr(hT+4)}, v{hT} offset:{L_ML}")
    a(f"ds_read_b128 {vr(hT+8)}, v{hT} offset:{L_ML+16}")
    a("s_waitcnt lgkmcnt(0)")
    m = [hT+4, hT+6, hT+8, hT+10]; l = [hT+5, hT+7, hT+9, hT+11]
    MC, LC = hT+12, hT+13
    a(f"v_max_f32 v{MC}, v{m[0]}, v{m[1]}")
    a(f"v_max3_f32 v{MC}, v{MC}, v{m[2]}, v{m[3]}")
    for k in range(4):
        a(f"v_sub_f32 v{hT+16+k}, v{m[k]}, v{MC}")
    for k in range(4):
        a(f"v_exp_f32 v{hT+16+k}, v{hT+16+k}")
    a("s_nop 0")
    a(f"v_mul_f32 v{LC}, v{l[0]}, v{hT+16}")
    for k in range(1, 4):
        a(f"v_fmac_f32 v{LC}, v{l[k]}, v{hT+16+k}")
    a(f"s_lshl_b32 s{sT0}, s{sBH}, 5")
    a(f"s_lshl_b32 s{sT0+1}, s{sC}, 3")
    a(f"s_add_u32 s{sT0+1}, s{sT0+1}, s{sT0}")
    a(f"s_add_u32 s{sT0+1}, s{sT0+1}, {W_ML}")
    a(f"v_mov_b32 v{hT+20}, s{sT0+1}")
    a(f"s_lshr_b32 s{sT0+2}, s{sBH}, 3")
    a(f"s_lshl_b32 s{sT0+2}, s{sT0+2}, 2")
    a(f"s_add_u32 s{sT0+2}, s{sT0+2}, 32")
    a(f"s_and_b32 s{sT0+3}, s{sBH}, 7")
    a(f"s_lshl_b32 s{sT0+3}, s{sT0+3}, 2")
    a(f"s_lshl_b32 s{sT0+4}, 1, s{sT0+3}")
    a(f"v_mov_b32 v{hT+21}, s{sT0+2}")
    a(f"v_mov_b32 v{hT+22}, s{sT0+4}")
    a(f"s_mov_b64 exec, 1")
    a(f"global_store_dwordx2 v{hT+20}, v[{MC}:{LC}], {sr(sWS)} sc0 sc1")
    a("s_waitcnt vmcnt(0)")
    a(f"global_atomic_add v{hT+21}, v{hT+22}, {sr(sDBG)}")
    a(f"s_mov_b64 exec, -1")
    a.label("L_vp_poll")
    a("s_sleep 32")
    a(f"ds_read_b32 v{hT+23}, v{hT} offset:{L_VP}")
    a("s_waitcnt lgkmcnt(0)")
    a(f"v_cmp_gt_u32 vcc, {p.vsig}, v{hT+23}")
    a(f"s_cbranch_vccnz L_vp_poll")
    a.label("L_grp_poll")
    a(f"global_load_dword v{hT+23}, v{hT+21}, {sr(sDBG)} sc0 sc1")
    a("s_waitcnt vmcnt(0)")
    a(f"v_lshrrev_b32 v{hT+25}, s{sT0+3}, v{hT+23}")
    a(f"v_and_b32 v{hT+25}, 7, v{hT+25}")
    a(f"v_and_b32 v{hT+23}, 8, v{hT+23}")
    a(f"v_or_b32 v{hT+23}, v{hT+23}, v{hT+25}")
    a(f"v_cmp_eq_u32 vcc, 12, v{hT+23}")
    a(f"s_cbranch_vccnz L_grp_done")
    a("s_sleep 64")
    a("s_branch L_grp_poll")
    a.label("L_grp_done")
    a(f"v_and_b32 v{hT+24}, 3, v0")
    a(f"v_lshlrev_b32 v{hT+24}, 3, v{hT+24}")
    a(f"s_add_u32 s{sT0}, s{sT0}, {W_ML}")
    a(f"v_add_u32 v{hT+24}, s{sT0}, v{hT+24}")
    a(f"global_load_dwordx2 v[{hT+26}:{hT+27}], v{hT+24}, {sr(sWS)} sc0 sc1")
    a("s_waitcnt vmcnt(0)")
    GM, GL = hT+28, hT+29
    a(f"v_max_f32_dpp v{GM}, v{hT+26}, v{hT+26} quad_perm:[1,0,3,2] row_mask:0xf bank_mask:0xf")
    a("s_nop 1")
    a(f"v_max_f32_dpp v{GM}, v{GM}, v{GM} quad_perm:[2,3,0,1] row_mask:0xf bank_mask:0xf")
    a("s_nop 1")
    a(f"v_sub_f32 v{GL}, v{hT+26}, v{GM}")
    a(f"v_exp_f32 v{GL}, v{GL}")
    a("s_nop 0")
    a(f"v_mul_f32 v{GL}, v{GL}, v{hT+27}")
    a("s_nop 1")
    a(f"v_add_f32_dpp v{GL}, v{GL}, v{GL} quad_perm:[1,0,3,2] row_mask:0xf bank_mask:0xf")
    a("s_nop 1")
    a(f"v_add_f32_dpp v{GL}, v{GL}, v{GL} quad_perm:[2,3,0,1] row_mask:0xf bank_mask:0xf")
    a("s_nop 1")
    a(f"v_rcp_f32 v{GL}, v{GL}")
    for k in range(4):
        a(f"v_sub_f32 v{hT+16+k}, v{m[k]}, v{GM}")
    for k in range(4):
        a(f"v_exp_f32 v{hT+16+k}, v{hT+16+k}")
    a("s_nop 0")
    for k in range(4):
        a(f"v_mul_f32 v{hT+16+k}, v{hT+16+k}, v{GL}")
    a(f"ds_write_b128 v{hT}, {vr(hT+16)} offset:{L_F}")
    a(f"v_mov_b32 v{hT+30}, 1")
    a("s_waitcnt lgkmcnt(0)")
    a(f"ds_write_b32 v{hT}, v{hT+30} offset:{L_FR}")
    a.label("L_h_noml")
    a(f"s_and_b32 s{sT0+4}, s2, {NREP-1}")
    a(f"s_lshl_b32 s{sT0+4}, s{sT0+4}, 12")
    a(f"s_lshl_b32 s{sT0+5}, s{sB}, 11")
    a(f"s_add_u32 s{sT0+4}, s{sT0+4}, s{sT0+5}")
    a(f"s_lshl_b32 s{sT0+5}, s{sHW}, 9")
    a(f"s_add_u32 s{sT0+4}, s{sT0+4}, s{sT0+5}")
    a(f"v_lshrrev_b32 v{hT+40}, 1, v3")
    a(f"v_lshlrev_b32 v{hT+40}, 6, v{hT+40}")
    a(f"v_lshl_add_u32 v{hT+40}, v2, 2, v{hT+40}")
    a(f"v_add_u32 v{hT+40}, s{sT0+4}, v{hT+40}")
    a(f"v_and_b32 v{hT+41}, 7, v2")
    a(f"v_lshlrev_b32 v{hT+41}, 8, v{hT+41}")
    a(f"v_lshl_add_u32 v{hT+41}, v3, 4, v{hT+41}")
    a(f"s_mov_b32 s{sT0+6}, 0"); a(f"s_mov_b32 s{sT0+7}, -1")
    a(f"v_mov_b32 v{hT+42}, 0")
    a("s_waitcnt vmcnt(0) lgkmcnt(0)")
    stamp(5)
    a("s_barrier")
    stamp(6)
    AF = hP
    for ks in range(4):
        a(f"ds_read_b128 {vr(AF+4*ks)}, v{hT+41} offset:{L_OA + ks*64}")
    DD = hT
    for ks in range(4):
        a(f"s_waitcnt lgkmcnt({3-ks})")
        for ct in range(8):
            a(f"v_mfma_f32_16x16x32_bf16 {vr(DD+4*ct)}, {vr(AF+4*ks)}, {vr(hW+(ct*4+ks)*4)}, {'0' if ks == 0 else vr(DD+4*ct)}")
    for ct in range(8):
        if ct == 0: a("s_nop 3")
        a(f"v_add_f32 v{DD+4*ct}, v{DD+4*ct}, v{DD+4*ct+1}")
        a(f"v_add_f32 v{DD+4*ct+2}, v{DD+4*ct+2}, v{DD+4*ct+3}")
    for ct in range(8):
        a(f"v_add_f32 v{DD+4*ct}, v{DD+4*ct}, v{DD+4*ct+2}")
    for pr in range(4):
        a(f"v_cndmask_b32 v{DD+8*pr}, v{DD+8*pr}, v{DD+8*pr+4}, {sr(sT0+6)}")
        a(f"global_atomic_add_f32 v{hT+40}, v{DD+8*pr}, {sr(sWS)} offset:{pr*128}")
    a("s_waitcnt vmcnt(0)")
    stamp(7)
    a("s_barrier")
    a(f"s_cmp_lg_u32 s{sHW}, 0")
    a(f"s_cbranch_scc1 L_h_noarr")
    a(f"s_lshr_b32 s{sT0}, s2, 4")
    a(f"s_lshl_b32 s{sT0}, s{sT0}, 8")
    a(f"s_add_u32 s{sT0}, s{sT0}, {W_CNT}")
    a(f"v_mov_b32 v{hT}, s{sT0}")
    a(f"v_mov_b32 v{hT+1}, 1")
    a(f"s_mov_b64 exec, 1")
    a(f"global_atomic_add v{hT}, v{hT+1}, {sr(sWS)}")
    a(f"s_mov_b64 exec, -1")
    a.label("L_h_noarr")
    a(f"s_cmp_lg_u32 s2, 0")
    a(f"s_cbranch_scc1 L_hend")
    a(f"v_and_b32 v{hT}, {NCNT-1}, v0")
    a(f"v_lshlrev_b32 v{hT}, 8, v{hT}")
    a(f"v_add_u32 v{hT}, {W_CNT}, v{hT}")
    a(f"s_lshl_b32 s{sT0}, s{sHW}, 9")
    a(f"v_lshlrev_b32 v{hT+1}, 3, v0")
    a(f"v_add_u32 v{hT+1}, s{sT0}, v{hT+1}")
    a(f"global_load_dwordx2 v[{hT+4}:{hT+5}], v{hT+1}, {sr(sX)}")
    a(f"v_lshlrev_b32 v{hT+3}, 1, v{hT+1}")
    a.label("L_fin_poll")
    a(f"global_load_dword v{hT+2}, v{hT}, {sr(sWS)} sc0 sc1")
    a("s_waitcnt vmcnt(0)")
    a(f"v_cmp_ne_u32 vcc, {256//NCNT}, v{hT+2}")
    a(f"s_cbranch_vccnz L_fin_poll")
    stamp(8)
    for rep in range(NREP):
        a(f"global_load_dwordx4 {vr(hW + rep*4)}, v{hT+3}, {sr(sWS)} sc0 sc1")
        a(f"v_add_u32 v{hT+3}, 4096, v{hT+3}")
    a(f"v_lshlrev_b32 v{hT+8}, 16, v{hT+4}")
    a(f"v_and_b32 v{hT+9}, 0xffff0000, v{hT+4}")
    a(f"v_lshlrev_b32 v{hT+10}, 16, v{hT+5}")
    a(f"v_and_b32 v{hT+11}, 0xffff0000, v{hT+5}")
    for rep in range(NREP):
        a(f"s_waitcnt vmcnt({NREP-1-rep})")
        for e in range(4):
            a(f"v_add_f32 v{hT+8+e}, v{hT+8+e}, v{hW+rep*4+e}")
    a(f"v_cvt_pk_bf16_f32 v{hT+12}, v{hT+8}, v{hT+9}")
    a(f"v_cvt_pk_bf16_f32 v{hT+13}, v{hT+10}, v{hT+11}")
    a(f"global_store_dwordx2 v{hT+1}, v[{hT+12}:{hT+13}], {sr(sOUT)}")
    a.label("L_hend")
    stamp(9)
    dump_stamps(10, hT)
    a.label("L_end")
    a("s_endpgm")

    kd = f""".section .rodata,"a"
.p2align 6
.amdhsa_kernel {NAME}
  .amdhsa_next_free_vgpr 256
  .amdhsa_next_free_sgpr 102
  .amdhsa_accum_offset 256
  .amdhsa_group_segment_fixed_size 0
  .amdhsa_kernarg_size 96
  .amdhsa_user_sgpr_count 2
  .amdhsa_user_sgpr_kernarg_segment_ptr 1
  .amdhsa_system_sgpr_workgroup_id_x 1
.end_amdhsa_kernel
"""
    txt = HEADER + f"; @launch grid=(256,1,1) block=(512,1,1) lds={lds_bytes(p.NL)}\n"
    txt += f'.amdgcn_target "amdgcn-amd-amdhsa--gfx950"\n.text\n.globl {NAME}\n.p2align 8\n.type {NAME},@function\n'
    txt += a.text() + kd
    return txt

def emit_selectors(a, vSEL, vT):
    a(f"v_lshrrev_b32 v{vT}, 3, v2")
    a(f"v_mul_u32_u24 v{vT}, 0x0202, v{vT}")
    a(f"v_add_u32 v{vT}, 0x0100, v{vT}")
    a(f"v_lshlrev_b32 v{vT+1}, 16, v{vT}")
    a(f"v_or_b32 v{vT+1}, 0x0c0c, v{vT+1}")
    a(f"v_or_b32 v{vT}, 0x0c0c0000, v{vT}")
    a(f"v_and_b32 v{vT+2}, 1, v2")
    a(f"v_cmp_eq_u32 vcc, 1, v{vT+2}")
    a("s_nop 1")
    a(f"v_cndmask_b32 v{vT}, v{vT}, v{vT+1}, vcc")
    a(f"v_bfe_u32 v{vT+2}, v2, 1, 2")
    a(f"v_mov_b32 v{vT+1}, 0x0c0c0c0c")
    for r in range(4):
        a(f"v_cmp_eq_u32 vcc, {r}, v{vT+2}")
        a("s_nop 1")
        a(f"v_cndmask_b32 v{vSEL+r}, v{vT+1}, v{vT}, vcc")

def wave_allreduce_add(a, v, sT):
    a("s_nop 1")
    a(f"v_add_f32_dpp v{v}, v{v}, v{v} quad_perm:[1,0,3,2] row_mask:0xf bank_mask:0xf")
    a("s_nop 1")
    a(f"v_add_f32_dpp v{v}, v{v}, v{v} quad_perm:[2,3,0,1] row_mask:0xf bank_mask:0xf")
    a("s_nop 1")
    a(f"v_add_f32_dpp v{v}, v{v}, v{v} row_half_mirror row_mask:0xf bank_mask:0xf")
    a("s_nop 1")
    a(f"v_add_f32_dpp v{v}, v{v}, v{v} row_mirror row_mask:0xf bank_mask:0xf")
    a("s_nop 1")
    for k in range(4):
        a(f"v_readlane_b32 s{sT+k}, v{v}, {16*k}")
    a("s_nop 1")
    a(f"v_mov_b32 v{v}, s{sT}")
    a(f"v_add_f32 v{v}, s{sT+1}, v{v}")
    a(f"v_add_f32 v{v}, s{sT+2}, v{v}")
    a(f"v_add_f32 v{v}, s{sT+3}, v{v}")

def emit_wait_flag(a, tag, sDBG, vT):
    a(f"v_mov_b32 v{vT}, 0")
    a(f"s_branch L_flag1_{tag}")
    a.label(f"L_flag_{tag}")
    a("s_sleep 48")
    a.label(f"L_flag1_{tag}")
    a(f"global_load_dword v{vT+1}, v{vT}, s[{sDBG}:{sDBG+1}] offset:4 sc0 sc1")
    a("s_waitcnt vmcnt(0)")
    a(f"v_cmp_eq_u32 vcc, 0, v{vT+1}")
    a(f"s_cbranch_vccnz L_flag_{tag}")

def emit_y_addr(a, vaddr, hDA, sT, sB, sHW):
    a(f"s_and_b32 s{sT}, s2, {NREP-1}")
    a(f"s_lshl_b32 s{sT}, s{sT}, 12")
    a(f"s_lshl_b32 s{sT+1}, s{sB}, 11")
    a(f"s_add_u32 s{sT}, s{sT}, s{sT+1}")
    a(f"s_lshl_b32 s{sT+1}, s{sHW}, 9")
    a(f"s_add_u32 s{sT}, s{sT}, s{sT+1}")
    a(f"v_add_u32 v{vaddr}, s{sT}, v{hDA}")

def emit_atomic_y(a, D, vaddr, sWS, sTmp):
    a(f"s_mov_b32 s{sTmp}, 0x00ff00ff"); a(f"s_mov_b32 s{sTmp+1}, 0x00ff00ff")
    a(f"s_mov_b64 exec, s[{sTmp}:{sTmp+1}]")
    for r in range(4):
        a(f"global_atomic_add_f32 v{vaddr}, v{D+r}, s[{sWS}:{sWS+1}] offset:{r*32}")
    a(f"s_mov_b64 exec, -1")

if __name__ == "__main__":
    out = sys.argv[1] if len(sys.argv) > 1 else OUT
    if out == "-": out = OUT
    for kv in sys.argv[2:]:
        k, v = kv.split("=", 1)
        cur = getattr(P, k)
        setattr(P, k, (v == "1") if isinstance(cur, bool) else type(cur)(v))
    open(out, "w").write(gen())
    print("wrote", out)
```
